```python
import torch

def _softmax(x, axis=-1):
    return torch.softmax(x, dim=axis)
def _gelu(x):
    return torch.nn.functional.gelu(x, approximate="tanh")
def _silu(x):
    return torch.nn.functional.silu(x)
def _sigmoid(x):
    return torch.sigmoid(x)
def _layernorm(x, axis=-1, eps=1e-5):
    m = x.mean(dim=axis, keepdim=True)
    v = x.var(dim=axis, keepdim=True, unbiased=False)
    return (x - m) / torch.sqrt(v + eps)
def _scatter_add(tgt, idx, src, axis=0):
    return tgt.clone().index_add_(axis, idx, src)
def _segment_sum(src, seg, n):
    out = torch.zeros((n,) + src.shape[1:], dtype=src.dtype)
    return out.index_add_(0, seg, src)
def _pad(x, pw):
    flat = tuple(v for pair in reversed(pw) for v in pair)
    return torch.nn.functional.pad(x, flat)

kernel_name = 'gated_mix__sliding_local_dilated__dense_activation_squared_relu__prompt'

def setup_inputs():

    _w = (lambda a: (lambda t: t.to(torch.bfloat16) if t.is_floating_point() else t)(torch.as_tensor(a)))
    def _A_setup():
        B, S, D = 1, 2048, 448
        return {
            "x": _w((lambda *s: torch.randn(*s, dtype=torch.bfloat16) * 0.05)(B, S, D)),
            "wqkv": _w((lambda *s: torch.randn(*s, dtype=torch.bfloat16) * 0.8)(D, 3 * D)),
            "wo": _w((lambda *s: torch.randn(*s, dtype=torch.bfloat16) * 0.05)(D, D)),
        }
    _A_in = _A_setup()

    def _B_setup():
        B, S, D, F = 1, 2048, 448, 1792
        return {
            "x": _w((lambda *s: torch.randn(*s, dtype=torch.bfloat16) * 0.05)(B, S, D)),
            "w1": _w((lambda *s: torch.randn(*s, dtype=torch.bfloat16) * 0.1)(D, F)),
            "b1": _w((lambda *s: torch.randn(*s, dtype=torch.bfloat16) * 0.1)(F)),
            "w2": _w((lambda *s: torch.randn(*s, dtype=torch.bfloat16) * 0.1)(F, D)),
            "b2": _w((lambda *s: torch.randn(*s, dtype=torch.bfloat16) * 0.1)(D)),
        }
    _B_in = _B_setup()

    return {
        "A_x": _A_in["x"],
        "A_wqkv": _A_in["wqkv"],
        "A_wo": _A_in["wo"],
        "B_x": _B_in["x"],
        "B_w1": _B_in["w1"],
        "B_b1": _B_in["b1"],
        "B_w2": _B_in["w2"],
        "B_b2": _B_in["b2"],
        "gate_w": _w((lambda *s: torch.randn(*s, dtype=torch.bfloat16) * 0.05)(448) * 16.0),
    }

def reference(A_x, A_wqkv, A_wo, B_x, B_w1, B_b1, B_w2, B_b2, gate_w):
    def _A_ref(x, wqkv, wo):
        B, S, D = x.shape
        H = 16; Dh = D // H
        W, dil = 8, 2
        qkv = (lambda x, *d: x.permute(*d))((x @ wqkv).reshape(B, S, 3, H, Dh), 2, 0, 3, 1, 4)
        q, k, v = qkv[0], qkv[1], qkv[2]
        scale = Dh ** -0.5
        pos = torch.arange(S)
        off = torch.arange(W) * dil
        idx = pos[:, None] - off[None, :]
        mask = idx >= 0
        idx_c = torch.where(mask, idx, 0).reshape(-1)
        kg = k[:, :, idx_c, :].reshape(B, H, S, W, Dh)
        vg = v[:, :, idx_c, :].reshape(B, H, S, W, Dh)
        logits = torch.einsum("bhsd,bhswd->bhsw", q, kg) * scale
        logits = torch.where(mask[None, None, :, :], logits, -1e9)
        attn = _softmax(logits, axis=-1)
        o = torch.einsum("bhsw,bhswd->bhsd", attn, vg)
        return (lambda x, *d: x.permute(*d))(o, 0, 2, 1, 3).reshape(B, S, D) @ wo

    def _B_ref(x, w1, b1, w2, b2):
        h = torch.einsum("bsd,df->bsf", x, w1) + b1
        zero = torch.zeros_like(h)
        r = torch.where(h > zero, h, zero)
        h = r * r
        out = torch.einsum("bsf,fd->bsd", h, w2) + b2
        return out

    x = A_x
    g = _sigmoid((x * gate_w).sum(-1, keepdims=True))
    a = _A_ref(x, A_wqkv, A_wo)
    b = _B_ref(x, B_w1, B_b1, B_w2, B_b2)
    return g * a + (1 - g) * b
```

```python
import sys

NAME = "gated_mix__sliding_local_dilated__dense_activation_squared_relu__prompt"

WS_A2 = 0
WS_W2R = 0x900000
WS_WQR = WS_W2R + 7 * 72 * 4096
WS_G = WS_WQR + 16 * 14 * 6144
WS_FA = WS_G + 16 * 32 * 256
WS_FB = WS_FA + 32 * 16 * 2 * 128
WS_FWQ = WS_FB + 32 * 16 * 2 * 128
WS_FW2 = WS_FWQ + 16 * 128
WS_END = WS_FW2 + 28 * 128

L_W1 = 0
L_SB01 = 114688
L_XB = 129024
L_RP = 137216
L_FL = 151552
L_END = L_FL + 256
L_RED = 0


def sb_addr(ks):
    return L_SB01 + 7168 * ks if ks < 2 else 7168 * (ks - 2)


SPIN_MAX = 1 << 15


class Asm:
    def __init__(self):
        self.lines = []
        self.nlab = 0
        self.tail = []

    def e(self, s):
        self.lines.append("  " + s)

    def c(self, s):
        self.lines.append("  ; " + s)

    def lab(self, l):
        self.lines.append(l + ":")

    def newlab(self, p="L"):
        self.nlab += 1
        return f"{p}_{self.nlab}"


class Cnt:
    def __init__(self, a, name, mx):
        self.a, self.name, self.mx = a, name, mx
        self.n = 0
        self.done = 0

    def issue(self):
        self.n += 1
        return self.n

    def wait(self, tok):
        if tok is None or tok <= self.done:
            return
        k = min(self.n - tok, self.mx)
        self.a.e(f"s_waitcnt {self.name}({k})")
        self.done = self.n - k

    def drain(self):
        self.a.e(f"s_waitcnt {self.name}(0)")
        self.done = self.n

    def mark_drained(self):
        self.done = self.n


def vr(b, n=1):
    return f"v{b}" if n == 1 else f"v[{b}:{b+n-1}]"


def sr(b, n=1):
    return f"s{b}" if n == 1 else f"s[{b}:{b+n-1}]"


S_X, S_WQKV, S_WO, S_BX, S_W1, S_B1, S_W2, S_B2 = 8, 10, 12, 14, 16, 18, 20, 22
S_GATE, S_OUT, S_DBG, S_WS = 24, 26, 28, 30
SRD_WS, SRD_X, SRD_A, SRD_B, SRD_O = 32, 36, 40, 44, 48
S_WAVE, S_XCD, S_IDX, S_M, S_J, S_RB, S_NT = 52, 53, 54, 55, 56, 57, 58
S_T0, S_T1, S_T2, S_T3, S_T4, S_T5 = 60, 61, 62, 63, 64, 65
S_SPIN = 66
S_NONCE = 67
S_W = 68
S_SO0, S_SO1 = 70, 71
S_BASEA, S_BASEW = 72, 73


def mk_srd(a, d, p, nbytes):
    a.e(f"s_mov_b32 s{d}, s{p}")
    a.e(f"s_and_b32 s{d+1}, s{p+1}, 0xffff")
    a.e(f"s_mov_b32 s{d+2}, {nbytes}")
    a.e(f"s_mov_b32 s{d+3}, 0x00020000")


def lds_wait_min4(a, lg, vaddr, vtmp, off, need, pre_tok=None):
    if pre_tok is None:
        a.e(f"ds_read_b128 {vr(vtmp,4)}, {vr(vaddr)} offset:{off}")
        pre_tok = lg.issue()
    lg.wait(pre_tok)
    ok = a.newlab("Lok")
    spin = a.newlab("Lspin")
    a.e(f"v_min3_u32 {vr(vtmp)}, {vr(vtmp)}, {vr(vtmp+1)}, {vr(vtmp+2)}")
    a.e(f"v_min_u32 {vr(vtmp)}, {vr(vtmp)}, {vr(vtmp+3)}")
    a.e(f"v_cmp_gt_u32 vcc, {need}, {vr(vtmp)}")
    a.e(f"s_cbranch_vccnz {spin}")
    a.lab(ok)
    t = a.tail
    t.append(f"{spin}:")
    t.append(f"  s_mov_b32 s{S_SPIN}, 0")
    t.append(f"{spin}_l:")
    t.append(f"  ds_read_b128 {vr(vtmp,4)}, {vr(vaddr)} offset:{off}")
    t.append(f"  s_add_u32 s{S_SPIN}, s{S_SPIN}, 1")
    t.append(f"  s_cmp_gt_u32 s{S_SPIN}, {SPIN_MAX*8}")
    t.append(f"  s_waitcnt lgkmcnt(0)")
    t.append(f"  s_cbranch_scc1 {ok}")
    t.append(f"  v_min3_u32 {vr(vtmp)}, {vr(vtmp)}, {vr(vtmp+1)}, {vr(vtmp+2)}")
    t.append(f"  v_min_u32 {vr(vtmp)}, {vr(vtmp)}, {vr(vtmp+3)}")
    t.append(f"  v_cmp_gt_u32 vcc, {need}, {vr(vtmp)}")
    t.append(f"  s_cbranch_vccnz {spin}_l")
    t.append(f"  s_branch {ok}")


def lds_wait_word(a, lg, vaddr, vtmp, off, need, pre_tok=None):
    if pre_tok is None:
        a.e(f"ds_read_b32 {vr(vtmp)}, {vr(vaddr)} offset:{off}")
        pre_tok = lg.issue()
    lg.wait(pre_tok)
    ok = a.newlab("Lok")
    spin = a.newlab("Lspin")
    a.e(f"v_cmp_gt_u32 vcc, {need}, {vr(vtmp)}")
    a.e(f"s_cbranch_vccnz {spin}")
    a.lab(ok)
    t = a.tail
    t.append(f"{spin}:")
    t.append(f"  s_mov_b32 s{S_SPIN}, 0")
    t.append(f"{spin}_l:")
    t.append(f"  ds_read_b32 {vr(vtmp)}, {vr(vaddr)} offset:{off}")
    t.append(f"  s_add_u32 s{S_SPIN}, s{S_SPIN}, 1")
    t.append(f"  s_cmp_gt_u32 s{S_SPIN}, {SPIN_MAX*8}")
    t.append(f"  s_waitcnt lgkmcnt(0)")
    t.append(f"  s_cbranch_scc1 {ok}")
    t.append(f"  v_cmp_gt_u32 vcc, {need}, {vr(vtmp)}")
    t.append(f"  s_cbranch_vccnz {spin}_l")
    t.append(f"  s_branch {ok}")


def lds_signal(a, lg, vaddr, vtmp, val):
    a.e(f"v_mov_b32 {vr(vtmp)}, {val}")
    a.e("s_mov_b64 exec, 1")
    a.e(f"ds_write_b32 {vr(vaddr)}, {vr(vtmp)}")
    lg.issue()
    a.e("s_mov_b64 exec, -1")


def get_nonce(a, lg, vzero_fl, vtmp, vdst):
    lds_wait_word(a, lg, vzero_fl, vdst, 32, 1)


def flag_store(a, vm, vnonce, vzero, soff):
    a.e("s_mov_b64 exec, 1")
    a.e(f"buffer_store_dword {vr(vnonce)}, {vr(vzero)}, {sr(SRD_WS,4)}, s{soff} offen sc1")
    vm.issue()
    a.e("s_mov_b64 exec, -1")


def flag_poll(a, vm, polls, vnonce, sleep=1):
    top = a.newlab("Lpoll")
    done = a.newlab("Lpdone")
    a.e(f"s_mov_b32 s{S_SPIN}, 0")
    a.lab(top)
    for (vd, vo, so) in polls:
        a.e(f"buffer_load_dword {vr(vd)}, {vr(vo)}, {sr(SRD_WS,4)}, s{so} offen sc1")
        vm.issue()
    a.e(f"s_add_u32 s{S_SPIN}, s{S_SPIN}, 1")
    a.e(f"s_waitcnt vmcnt(0)")
    vm.mark_drained()
    vd0 = polls[0][0]
    a.e(f"v_xor_b32 {vr(vd0)}, {vr(vd0)}, {vr(vnonce)}")
    for (vd, vo, so) in polls[1:]:
        a.e(f"v_xor_b32 {vr(vd)}, {vr(vd)}, {vr(vnonce)}")
        a.e(f"v_or_b32 {vr(vd0)}, {vr(vd0)}, {vr(vd)}")
    a.e(f"v_cmp_ne_u32 vcc, 0, {vr(vd0)}")
    a.e(f"s_cbranch_vccz {done}")
    a.e(f"s_cmp_gt_u32 s{S_SPIN}, {SPIN_MAX}")
    a.e(f"s_cbranch_scc1 {done}")
    if sleep:
        a.e(f"s_sleep {sleep}")
    a.e(f"s_branch {top}")
    a.lab(done)


def mfma(a, d, A, B, C):
    c = "0" if C is None else vr(C, 4)
    a.e(f"v_mfma_f32_16x16x32_bf16 {vr(d,4)}, {vr(A,4)}, {vr(B,4)}, {c}")


def gen_p1(a, P, has_a):
    vm = Cnt(a, "vmcnt", 63)
    lg = Cnt(a, "lgkmcnt", 15)
    V_LANE = 0
    V_T = 1
    V_XOFF = 8
    V_WOFF = 9
    V_XW, V_XR = 10, 11
    V_FL = 12
    V_PROG = 13
    V_L16 = 14
    V_ZERO = 15
    V_TA = 16
    V_F = 24
    V_NONCE = 28
    V_SIG = 29
    V_PA, V_QA = 30, 31
    V_X = 32
    V_ACC = 144
    V_WR = 208
    V_E = 240
    NR = 8

    def X(T, ks):
        return V_X + (T * 14 + ks) * 4

    def ACC(T, t):
        return V_ACC + (T * 8 + t) * 4

    a.c("==== P1 program (has_a=%d) ====" % has_a)
    mk_srd(a, SRD_X, S_X, 2048 * 896)
    if has_a:
        mk_srd(a, SRD_A, S_W1, 448 * 3584)
        mk_srd(a, SRD_B, S_B1, 1792 * 2)
    a.e(f"s_lshl_b32 s{S_T0}, s{S_M}, 7")
    a.e(f"s_lshl_b32 s{S_T1}, s{S_W}, 5")
    a.e(f"s_add_u32 s{S_T0}, s{S_T0}, s{S_T1}")
    a.e(f"v_lshrrev_b32 v1, 2, v{V_LANE}")
    a.e(f"v_and_b32 v2, 3, v{V_LANE}")
    a.e(f"v_add_u32 v3, s{S_T0}, v1")
    a.e(f"v_mul_u32_u24 v3, 896, v3")
    a.e(f"v_lshl_add_u32 v{V_XOFF}, v2, 4, v3")
    a.e(f"s_mov_b32 s{S_T2}, {16*896}")
    if has_a:
        a.e(f"v_lshrrev_b32 v4, 4, v{V_LANE}")
        a.e(f"s_and_b32 s{S_T3}, s{S_W}, 1")
        a.e(f"s_lshl_b32 s{S_T3}, s{S_T3}, 2")
        a.e(f"v_add_u32 v5, s{S_T3}, v4")
        a.e(f"v_bfe_u32 v6, v{V_LANE}, 1, 3")
        a.e(f"v_xor_b32 v6, v6, v5")
        a.e(f"v_and_b32 v7, 1, v{V_LANE}")
        a.e(f"v_lshl_add_u32 v6, v6, 1, v7")
        a.e(f"s_lshl_b32 s{S_T3}, s{S_W}, 3")
        a.e(f"v_add_u32 v4, s{S_T3}, v4")
        a.e(f"v_mul_u32_u24 v4, 3584, v4")
        a.e(f"v_lshl_add_u32 v4, v6, 4, v4")
        a.e(f"s_lshl_b32 s{S_T3}, s{S_J}, 8")
        a.e(f"v_add_u32 v{V_WOFF}, s{S_T3}, v4")
        a.e(f"v_lshrrev_b32 v4, 4, v{V_LANE}")
        a.e(f"v_lshl_add_u32 v{V_T+6}, v4, 3, s{S_T3}")
        a.e(f"s_lshl_b32 m0, s{S_W}, 11")
        a.e(f"s_mov_b32 s{S_SO0}, 0")
        a.e(f"s_mov_b32 s{S_SO1}, {4*3584-1024}")
    xtok = {}
    dtok = {}
    btok = []
    for ks in range(14):
        for T in range(2):
            so = "0" if T == 0 else f"s{S_T2}"
            a.e(f"buffer_load_dwordx4 {vr(X(T,ks),4)}, v{V_XOFF}, {sr(SRD_X,4)}, {so} offen offset:{ks*64}")
            xtok[(T, ks)] = vm.issue()
        if has_a:
            a.e(f"buffer_load_dwordx4 v{V_WOFF}, {sr(SRD_A,4)}, s{S_SO0} offen lds")
            vm.issue()
            a.e(f"buffer_load_dwordx4 v{V_WOFF}, {sr(SRD_A,4)}, s{S_SO1} offen offset:1024 lds")
            dtok[ks] = vm.issue()
            if ks < 13:
                a.e(f"s_add_u32 m0, m0, 8192")
                a.e(f"s_add_u32 s{S_SO0}, s{S_SO0}, {32*3584}")
                a.e(f"s_add_u32 s{S_SO1}, s{S_SO1}, {32*3584}")
            if ks == 0:
                for t in range(8):
                    a.e(f"buffer_load_dwordx2 {vr(V_E+2*t,2)}, v{V_T+6}, {sr(SRD_B,4)}, 0 offen offset:{t*32}")
                    btok.append(vm.issue())
    mk_srd(a, SRD_WS, S_WS, WS_END)
    a.e(f"v_lshlrev_b32 v{V_L16}, 4, v{V_LANE}")
    a.e(f"v_mov_b32 v{V_ZERO}, 0")
    a.e(f"v_mov_b32 v{V_FL}, {L_FL}")
    a.e(f"s_lshl_b32 s{S_T3}, s{S_W}, 2")
    a.e(f"s_add_u32 s{S_T3}, s{S_T3}, {L_FL}")
    a.e(f"v_mov_b32 v{V_PROG}, s{S_T3}")
    a.e(f"s_lshl_b32 s{S_T3}, s{S_W}, 11")
    a.e(f"s_add_u32 s{S_T3}, s{S_T3}, {L_XB}")
    a.e(f"v_lshlrev_b32 v3, 1, v2")
    a.e(f"v_xor_b32 v3, v3, v1")
    a.e(f"v_lshlrev_b32 v3, 4, v3")
    a.e(f"v_lshl_add_u32 v3, v2, 8, v3")
    a.e(f"v_add_u32 v{V_XW}, s{S_T3}, v3")
    a.e(f"v_and_b32 v1, 15, v{V_LANE}")
    a.e(f"v_lshrrev_b32 v2, 4, v{V_LANE}")
    a.e(f"v_lshlrev_b32 v3, 1, v2")
    a.e(f"v_xor_b32 v3, v3, v1")
    a.e(f"v_lshlrev_b32 v3, 4, v3")
    a.e(f"v_lshl_add_u32 v3, v2, 8, v3")
    a.e(f"v_add_u32 v{V_XR}, s{S_T3}, v3")
    if has_a:
        a.e(f"v_bfe_u32 v3, v{V_LANE}, 2, 2")
        a.e(f"v_and_b32 v4, 1, v2")
        a.e(f"v_lshl_add_u32 v4, v4, 2, v3")
        a.e(f"v_lshl_add_u32 v5, v2, 3, v3")
        a.e(f"v_lshlrev_b32 v5, 8, v5")
        a.e(f"v_and_b32 v6, 3, v{V_LANE}")
        a.e(f"v_lshl_add_u32 v5, v6, 3, v5")
        for t in range(8):
            a.e(f"v_xor_b32 v6, {t}, v4")
            a.e(f"v_lshl_add_u32 v{V_TA+t}, v6, 5, v5")
    a.e(f"v_lshrrev_b32 v3, 2, v1")
    a.e(f"v_lshlrev_b32 v4, 1, v3")
    a.e(f"v_mov_b32 v5, 0x78")
    a.e(f"v_lshrrev_b32 v4, v4, v5")
    a.e(f"v_and_b32 v4, 3, v4")
    a.e(f"v_xor_b32 v4, v4, v2")
    a.e(f"v_lshl_add_u32 v4, v1, 2, v4")
    a.e(f"v_lshlrev_b32 v4, 4, v4")
    a.e(f"v_add_u32 v4, 6144, v4")
    a.e(f"s_lshl_b32 s{S_T3}, s{S_W}, 10")
    a.e(f"s_add_u32 s{S_T3}, s{S_T3}, 2048")
    a.e(f"v_add_u32 v5, s{S_T3}, v{V_L16}")
    a.e(f"s_cmp_lt_u32 s{S_W}, 2")
    a.e(f"s_cselect_b64 vcc, -1, 0")
    a.e(f"v_cndmask_b32 v{V_PA}, v4, v5, vcc")
    a.e(f"v_cndmask_b32 v{V_QA}, v5, v4, vcc")
    a.e("s_barrier")

    xr_tok = {}

    def x_transpose(ks):
        for T in range(2):
            vm.wait(xtok[(T, ks)])
            a.e(f"ds_write_b128 v{V_XW}, {vr(X(T,ks),4)} offset:{T*1024}")
            lg.issue()
            a.e(f"ds_read_b128 {vr(X(T,ks),4)}, v{V_XR} offset:{T*1024}")
            xr_tok[(T, ks)] = lg.issue()

    st_toks = []
    if has_a:
        vm.wait(btok[-1])
        for t in range(8):
            for T in range(2):
                d = ACC(T, t)
                a.e(f"v_lshlrev_b32 v{d}, 16, v{V_E+2*t}")
                a.e(f"v_and_b32 v{d+1}, 0xffff0000, v{V_E+2*t}")
                a.e(f"v_lshlrev_b32 v{d+2}, 16, v{V_E+2*t+1}")
                a.e(f"v_and_b32 v{d+3}, 0xffff0000, v{V_E+2*t+1}")
        a.e(f"s_lshr_b32 s{S_T3}, s{S_W}, 1")
        a.e(f"s_lshl_b32 s{S_RB}, s{S_M}, 1")
        a.e(f"s_add_u32 s{S_RB}, s{S_RB}, s{S_T3}")
        a.e(f"s_mul_i32 s{S_T3}, s{S_RB}, 72")
        a.e(f"s_lshl_b32 s{S_T4}, s{S_J}, 2")
        a.e(f"s_add_u32 s{S_T3}, s{S_T3}, s{S_T4}")
        a.e(f"s_lshl_b32 s{S_T3}, s{S_T3}, 12")
        a.e(f"s_and_b32 s{S_T4}, s{S_W}, 1")
        a.e(f"s_lshl_b32 s{S_T4}, s{S_T4}, 11")
        a.e(f"s_add_u32 s{S_BASEA}, s{S_T3}, s{S_T4}")

        LA = P["LA"]
        SIG = P["SIG"]
        CHK = P["CHK"]
        NF = 112
        rtok = {}
        sig_done = set()
        chk_done = set()
        chk_pre = {}

        def signal(s):
            if s in sig_done or s >= 14:
                return
            sig_done.add(s)
            x_transpose(s)
            vm.wait(dtok[s])
            lds_signal(a, lg, V_PROG, V_SIG, s + 1)

        def chk_issue(s):
            if s in chk_pre or s >= 14:
                return
            a.e(f"ds_read_b128 {vr(V_F,4)}, v{V_FL}")
            chk_pre[s] = lg.issue()

        def check(s):
            if s in chk_done:
                return
            chk_done.add(s)
            signal(s)
            lds_wait_min4(a, lg, V_FL, V_F, 0, s + 1, chk_pre.get(s))

        def rd(n):
            ks, t = divmod(n, 8)
            check(ks)
            if ks == 8 and t == 0:
                for tt in range(8):
                    a.e(f"v_add_u32 v{V_TA+tt}, 0x10000, v{V_TA+tt}")
            d = V_WR + (n % NR) * 4
            off = (ks % 8) * 8192
            a.e(f"ds_read_b64_tr_b16 {vr(d,2)}, v{V_TA+t} offset:{off}")
            lg.issue()
            a.e(f"ds_read_b64_tr_b16 {vr(d+2,2)}, v{V_TA+t} offset:{off+1024}")
            rtok[n] = lg.issue()

        def epi(T, b):
            e = V_E + ((2 * b + T) % 4) * 4
            for h in range(2):
                s = ACC(T, 2 * b + h)
                for i in range(4):
                    a.e(f"v_max_f32 v{V_T+i}, 0, v{s+i}")
                a.e(f"v_mul_f32 v{V_T}, v{V_T}, v{V_T}")
                a.e(f"v_mul_f32 v{V_T+1}, v{V_T+1}, v{V_T+1}")
                a.e(f"v_mul_f32 v{V_T+2}, v{V_T+2}, v{V_T+2}")
                a.e(f"v_mul_f32 v{V_T+3}, v{V_T+3}, v{V_T+3}")
                a.e(f"v_cvt_pk_bf16_f32 v{e+2*h}, v{V_T}, v{V_T+1}")
                a.e(f"v_cvt_pk_bf16_f32 v{e+2*h+1}, v{V_T+2}, v{V_T+3}")
            a.e(f"s_add_u32 s{S_T3}, s{S_BASEA}, {b*4096}")
            a.e(f"buffer_store_dwordx4 {vr(e,4)}, v{V_L16}, {sr(SRD_WS,4)}, s{S_T3} offen offset:{T*1024} sc1")
            st_toks.append(vm.issue())

        for s in range(14):
            if s * 8 - SIG <= 0:
                signal(s)
        for n in range(min(LA, NF)):
            rd(n)
        for n in range(NF):
            ks, t = divmod(n, 8)
            for s in range(14):
                if s * 8 - SIG == n:
                    signal(s)
                if s * 8 - LA - CHK == n:
                    chk_issue(s)
            if n + LA < NF:
                rd(n + LA)
            lg.wait(rtok[n])
            for T in range(2):
                lg.wait(xr_tok[(T, ks)])
                mfma(a, ACC(T, t), V_WR + (n % NR) * 4, X(T, ks), ACC(T, t))
            if ks == 12 and t == 0:
                pass
            if ks == 13 and t == 0:
                lds_signal(a, lg, V_PROG, V_SIG, 15)
            if ks == 13 and t >= 4 and t % 2 == 1:
                b = (t - 5) // 2
                epi(0, b)
                epi(1, b)
        lds_signal(a, lg, V_PROG, V_SIG, 16)
        a.e("s_nop 7")
        for b in (2, 3):
            if b == 3:
                a.e("s_nop 3")
            epi(0, b)
            epi(1, b)
        get_nonce(a, lg, V_FL, V_T, V_NONCE)
        a.e(f"s_lshl_b32 s{S_T3}, s{S_RB}, 4")
        a.e(f"s_add_u32 s{S_T3}, s{S_T3}, s{S_J}")
        a.e(f"s_lshl_b32 s{S_T3}, s{S_T3}, 1")
        a.e(f"s_and_b32 s{S_T4}, s{S_W}, 1")
        a.e(f"s_add_u32 s{S_T3}, s{S_T3}, s{S_T4}")
        a.e(f"s_lshl_b32 s{S_T5}, s{S_T3}, 7")
        a.e(f"s_add_u32 s{S_T3}, s{S_T5}, {WS_FA}")
        vm.drain()
        flag_store(a, vm, V_NONCE, V_ZERO, S_T3)
    else:
        lds_signal(a, lg, V_PROG, V_SIG, 16)
        for ks in range(14):
            x_transpose(ks)
        a.e(f"s_lshr_b32 s{S_T3}, s{S_W}, 1")
        a.e(f"s_lshl_b32 s{S_RB}, s{S_M}, 1")
        a.e(f"s_add_u32 s{S_RB}, s{S_RB}, s{S_T3}")
        get_nonce(a, lg, V_FL, V_T, V_NONCE)
        a.e(f"s_lshl_b32 s{S_T3}, s{S_RB}, 4")
        a.e(f"s_add_u32 s{S_T3}, s{S_T3}, s{S_J}")
        a.e(f"s_lshl_b32 s{S_T3}, s{S_T3}, 1")
        a.e(f"s_and_b32 s{S_T4}, s{S_W}, 1")
        a.e(f"s_add_u32 s{S_T3}, s{S_T3}, s{S_T4}")
        a.e(f"s_lshl_b32 s{S_T5}, s{S_T3}, 7")
        lg.drain()
    return vm, lg


def gen_p1_stage_b(a, P):
    vm = Cnt(a, "vmcnt", 63)
    lg = Cnt(a, "lgkmcnt", 15)
    V_LANE = 0
    V_T = 1
    V_FL = 12
    V_PROG = 13
    V_L16 = 14
    V_ZERO = 15
    V_SBA = 16
    V_F = 24
    V_NONCE = 28
    V_SIG = 29
    V_PA, V_QA = 30, 31
    V_X = 32
    V_ACC = 144
    V_HALO = 192
    V_WR = 196
    V_M = 236
    NR = 10

    def X(T, ks):
        return V_X + (T * 14 + ks) * 4

    def ACC(T, c):
        return V_ACC + (T * 6 + c) * 4

    a.c("==== P1 stage B ====")
    a.e("s_waitcnt lgkmcnt(0)")
    bases = {0: 0, 1: 64512, 2: L_SB01}

    def reg_off(ks):
        ad = sb_addr(ks)
        if ks < 2:
            return 2, ad - L_SB01
        if ks <= 10:
            return 0, ad
        return 1, ad - 64512
    for k, bv in bases.items():
        a.e(f"v_add_u32 v{V_SBA+k}, {bv}, v{V_L16}")
        a.e(f"v_add_u32 v{V_SBA+3+k}, {bv}, v{V_PA}")
        a.e(f"v_add_u32 v{V_M+17+k}, {bv}, v{V_QA}")
    VQ = V_M + 17
    V_MC = V_M
    V_MP = V_M + 4
    V_MP0 = V_M + 8
    a.e(f"v_and_b32 v1, 15, v{V_LANE}")
    a.e(f"v_lshrrev_b32 v2, 4, v{V_LANE}")
    a.e(f"v_lshlrev_b32 v2, 2, v2")
    a.e(f"v_sub_u32 v3, v1, v2")
    a.e(f"v_mov_b32 v4, 0xf149f2ca")
    a.e(f"s_or_b32 s{S_T3}, s{S_M}, s{S_W}")
    for e in range(4):
        a.e(f"v_subrev_u32 v5, {e}, v3")
        a.e(f"v_and_b32 v6, 0x80000001, v5")
        a.e(f"v_cmp_eq_u32 vcc, 0, v6")
        a.e("s_nop 1")
        a.e(f"v_cndmask_b32 v{V_MC+e}, v4, 0, vcc")
        a.e(f"v_sub_u32 v6, -2, v5")
        a.e(f"v_and_b32 v6, 0x80000001, v6")
        a.e(f"v_cmp_eq_u32 vcc, 0, v6")
        a.e("s_nop 1")
        a.e(f"v_cndmask_b32 v{V_MP+e}, v4, 0, vcc")
    a.e(f"s_cmp_eq_u32 s{S_T3}, 0")
    a.e(f"s_cselect_b64 vcc, -1, 0")
    for e in range(4):
        a.e(f"v_cndmask_b32 v{V_MP0+e}, v{V_MP+e}, v4, vcc")

    LA = P["LAB"]
    NFK = 8
    NF = 14 * NFK
    rtok = {}
    chk = set()
    pre = {}

    def rd(n):
        ks, c = divmod(n, NFK)
        if ks not in chk:
            chk.add(ks)
            lds_wait_word(a, lg, V_FL, V_F + (ks & 1), 16 + 4 * (ks & 3), (ks >> 2) + 1, pre.get(ks))
        if c == 4 and ks + 1 < 14:
            a.e(f"ds_read_b32 {vr(V_F + ((ks+1) & 1))}, {vr(V_FL)} offset:{16 + 4 * ((ks+1) & 3)}")
            pre[ks + 1] = lg.issue()
        k, off = reg_off(ks)
        d = V_WR + (n % NR) * 4
        if c < 6:
            a.e(f"ds_read_b128 {vr(d,4)}, v{V_SBA+k} offset:{off + c*1024}")
        elif c == 6:
            a.e(f"ds_read_b128 {vr(d,4)}, v{V_SBA+3+k} offset:{off}")
        else:
            a.e(f"ds_read_b128 {vr(d,4)}, v{VQ+k} offset:{off}")
        rtok[n] = lg.issue()

    for n in range(LA):
        rd(n)
    for n in range(NF):
        ks, c = divmod(n, NFK)
        if n + LA < NF:
            rd(n + LA)
        w = V_WR + (n % NR) * 4
        if c < 6:
            lg.wait(rtok[n])
            for T in range(2):
                C = None if ks == 0 else ACC(T, c)
                if c < 4:
                    mfma(a, ACC(T, c), w, X(T, ks), C)
                else:
                    mfma(a, ACC(T, c), X(T, ks), w, C)
        elif c == 7:
            lg.wait(rtok[n])
            wp = V_WR + ((n - 1) % NR) * 4
            mfma(a, V_HALO, wp, w, None if ks == 0 else V_HALO)

    a.c("---- attention ----")
    R = V_X
    QF = [R, R + 4]
    KF = [R + 8, R + 12]
    KP = R + 16
    VV = [R + 20, R + 26]
    VPX = R + 32
    HX = R + 36
    VT1 = R + 40
    SC = [R + 44, R + 48]
    SP = [R + 52, R + 56]
    PF = [R + 60, R + 64]
    OO = [[R + 68, R + 72], [R + 76, R + 80]]
    OP = [R + 84, R + 88]
    TM = R + 92
    ZG = [R + 104, R + 105]
    GO = R + 106
    V_EXW, V_EXH, V_EXR = R + 108, R + 109, R + 110
    a.e(f"s_lshl_b32 s{S_T3}, s{S_W}, 11")
    a.e(f"s_add_u32 s{S_T3}, s{S_T3}, {L_XB}")
    a.e(f"v_add_u32 v{V_EXR}, s{S_T3}, v{V_L16}")
    a.e(f"v_add_u32 v{V_EXW}, 2048, v{V_EXR}")
    a.e(f"s_lshr_b32 s{S_T3}, s{S_W}, 1")
    a.e(f"s_lshl_b32 s{S_T3}, s{S_T3}, 10")
    a.e(f"s_and_b32 s{S_T4}, s{S_W}, 1")
    a.e(f"s_lshl_b32 s{S_T4}, s{S_T4}, 3")
    a.e(f"s_add_u32 s{S_T3}, s{S_T3}, s{S_T4}")
    a.e(f"s_add_u32 s{S_T3}, s{S_T3}, {L_XB}")
    a.e(f"v_add_u32 v{V_EXH}, s{S_T3}, v{V_L16}")
    a.e("s_nop 7")

    def pk(d, s):
        a.e(f"v_cvt_pk_bf16_f32 v{d}, v{s}, v{s+1}")
        a.e(f"v_cvt_pk_bf16_f32 v{d+1}, v{s+2}, v{s+3}")

    pk(KF[1], ACC(1, 2)); pk(KF[1] + 2, ACC(1, 3))
    pk(VT1, ACC(1, 4)); pk(VT1 + 2, ACC(1, 5))
    pk(HX, V_HALO)
    skip = a.newlab("Lnoex")
    a.e(f"s_cmp_eq_u32 s{S_W}, 3")
    a.e(f"s_cbranch_scc1 {skip}")
    a.e(f"ds_write_b128 v{V_EXW}, {vr(KF[1],4)}")
    a.e(f"ds_write_b128 v{V_EXW}, {vr(VT1,4)} offset:1024")
    a.lab(skip)
    a.e(f"ds_write_b64 v{V_EXH}, {vr(HX,2)}")
    a.e("s_waitcnt lgkmcnt(0)")
    lg.mark_drained()
    lds_signal(a, lg, V_PROG, V_SIG, 17)
    pk(QF[0], ACC(0, 0)); pk(QF[0] + 2, ACC(0, 1))
    pk(QF[1], ACC(1, 0)); pk(QF[1] + 2, ACC(1, 1))
    pk(KF[0], ACC(0, 2)); pk(KF[0] + 2, ACC(0, 3))
    for dt in range(2):
        pk(VV[dt] + 2, ACC(0, 4 + dt))
        a.e(f"v_mov_b32 v{VV[dt]+4}, v{VT1+2*dt}")
        a.e(f"v_mov_b32 v{VV[dt]+5}, v{VT1+2*dt+1}")
    a.e("s_nop 1")
    mfma(a, SC[1], KF[1], QF[1], None)
    mfma(a, SP[1], KF[0], QF[1], None)
    mfma(a, SC[0], KF[0], QF[0], None)
    for T in range(2):
        z = ACC(T, 1)
        a.e(f"v_mov_b32 v{TM}, v{z}")
        a.e(f"v_mov_b32 v{TM+1}, v{z}")
        a.e("s_nop 1")
        a.e(f"v_permlane32_swap_b32 v{TM}, v{TM+1}")
        a.e("s_nop 1")
        a.e(f"v_mov_b32 v{TM}, v{TM+1}")
        a.e("s_nop 1")
        a.e(f"v_permlane16_swap_b32 v{TM}, v{TM+1}")
        a.e("s_nop 1")
        a.e(f"v_mul_f32 v{TM+1}, 0xbfb8aa3b, v{TM+1}")
        a.e(f"v_exp_f32 v{TM+1}, v{TM+1}")
        a.e("s_nop 0")
        a.e(f"v_add_f32 v{TM+1}, 1.0, v{TM+1}")
        a.e(f"v_rcp_f32 v{ZG[T]}, v{TM+1}")
        a.e("s_nop 0")
        a.e(f"v_sub_f32 v{GO+T}, 1.0, v{ZG[T]}")
    CL = (28 ** -0.5) * 1.4426950408889634
    import struct
    clbits = struct.unpack("<I", struct.pack("<f", CL))[0]
    a.e(f"s_mov_b32 s{S_T3}, 0x{clbits:08x}")

    def xreduce(op, x):
        a.e(f"v_mov_b32 v{TM+8}, v{x}")
        a.e("s_nop 1")
        a.e(f"v_permlane32_swap_b32 v{x}, v{TM+8}")
        a.e("s_nop 1")
        a.e(f"{op} v{x}, v{x}, v{TM+8}")
        a.e(f"v_mov_b32 v{TM+8}, v{x}")
        a.e("s_nop 1")
        a.e(f"v_permlane16_swap_b32 v{x}, v{TM+8}")
        a.e("s_nop 1")
        a.e(f"{op} v{x}, v{x}, v{TM+8}")

    def softmax_pv(T):
        mp = V_MP if T == 1 else V_MP0
        for e in range(4):
            a.e(f"v_fma_f32 v{SP[T]+e}, v{SP[T]+e}, s{S_T3}, v{mp+e}")
            a.e(f"v_fma_f32 v{SC[T]+e}, v{SC[T]+e}, s{S_T3}, v{V_MC+e}")
        m = TM + 9
        a.e(f"v_max3_f32 v{m}, v{SP[T]}, v{SP[T]+1}, v{SP[T]+2}")
        a.e(f"v_max3_f32 v{m}, v{m}, v{SP[T]+3}, v{SC[T]}")
        a.e(f"v_max3_f32 v{m}, v{m}, v{SC[T]+1}, v{SC[T]+2}")
        a.e(f"v_max_f32 v{m}, v{m}, v{SC[T]+3}")
        xreduce("v_max_f32", m)
        for e in range(4):
            a.e(f"v_sub_f32 v{SP[T]+e}, v{SP[T]+e}, v{m}")
            a.e(f"v_sub_f32 v{SC[T]+e}, v{SC[T]+e}, v{m}")
        for e in range(4):
            a.e(f"v_exp_f32 v{SP[T]+e}, v{SP[T]+e}")
            a.e(f"v_exp_f32 v{SC[T]+e}, v{SC[T]+e}")
        a.e("s_nop 0")
        pk(PF[T], SP[T]); pk(PF[T] + 2, SC[T])
        s = TM + 10
        a.e(f"v_add_f32 v{s}, v{SP[T]}, v{SP[T]+1}")
        a.e(f"v_add_f32 v{s}, v{s}, v{SP[T]+2}")
        for dt in range(2):
            mfma(a, OO[T][dt], VV[dt] + 2 * T, PF[T], None)
        a.e(f"v_add_f32 v{s}, v{s}, v{SP[T]+3}")
        for e in range(4):
            a.e(f"v_add_f32 v{s}, v{s}, v{SC[T]+e}")
        xreduce("v_add_f32", s)
        a.e(f"v_rcp_f32 v{s}, v{s}")
        a.e("s_nop 0")
        a.e(f"v_mul_f32 v{s}, v{s}, v{ZG[T]}")
        for dt in range(2):
            for e in range(4):
                a.e(f"v_mul_f32 v{OO[T][dt]+e}, v{OO[T][dt]+e}, v{s}")
        pk(OP[T], OO[T][0]); pk(OP[T] + 2, OO[T][1])
        a.e(f"buffer_store_dwordx4 {vr(OP[T],4)}, v{V_L16}, {sr(SRD_WS,4)}, s{S_T4} offen offset:{T*1024} sc1")
        vm.issue()

    a.e(f"s_mul_i32 s{S_T4}, s{S_RB}, 72")
    a.e(f"s_add_u32 s{S_T4}, s{S_T4}, s{S_J}")
    a.e(f"s_add_u32 s{S_T4}, s{S_T4}, 56")
    a.e(f"s_lshl_b32 s{S_T4}, s{S_T4}, 12")
    a.e(f"s_and_b32 s{S_T0}, s{S_W}, 1")
    a.e(f"s_lshl_b32 s{S_T1}, s{S_T0}, 11")
    a.e(f"s_add_u32 s{S_T4}, s{S_T4}, s{S_T1}")
    softmax_pv(1)
    a.e(f"s_lshl_b32 s{S_T1}, s{S_J}, 5")
    a.e(f"s_add_u32 s{S_T1}, s{S_T1}, s{S_RB}")
    a.e(f"s_lshl_b32 s{S_T1}, s{S_T1}, 8")
    a.e(f"s_lshl_b32 s{S_T0}, s{S_T0}, 3")
    a.e(f"s_add_u32 s{S_T1}, s{S_T1}, s{S_T0}")
    a.e(f"s_add_u32 s{S_T1}, s{S_T1}, {WS_G}")
    a.e("s_mov_b64 exec, 0xffff")
    a.e(f"buffer_store_dwordx2 {vr(GO,2)}, v{V_L16}, {sr(SRD_WS,4)}, s{S_T1} offen sc1")
    vm.issue()
    a.e("s_mov_b64 exec, -1")
    lds_wait_min4(a, lg, V_FL, V_F, 0, 17)
    a.e(f"ds_read_b128 {vr(KP,4)}, v{V_EXR}")
    a.e(f"ds_read_b128 {vr(VPX,4)}, v{V_EXR} offset:1024")
    a.e("s_waitcnt lgkmcnt(0)")
    lg.issue(); lg.issue(); lg.mark_drained()
    lds_signal(a, lg, V_PROG, V_SIG, 18)
    mfma(a, SP[0], KP, QF[0], None)
    for dt in range(2):
        a.e(f"v_mov_b32 v{VV[dt]}, v{VPX+2*dt}")
        a.e(f"v_mov_b32 v{VV[dt]+1}, v{VPX+2*dt+1}")
    a.e("s_nop 4")
    softmax_pv(0)
    a.e(f"s_add_u32 s{S_T3}, s{S_T5}, {WS_FB}")
    vm.drain()
    flag_store(a, vm, V_NONCE, V_ZERO, S_T3)
    a.e("s_endpgm")


def gen_p2(a, P):
    vm = Cnt(a, "vmcnt", 63)
    lg = Cnt(a, "lgkmcnt", 15)
    V_LANE = 0
    V_T = 1
    V_L16 = 10
    V_ZERO = 11
    V_FL = 12
    V_NONCE = 13
    V_SIG = 14
    V_BF = 15
    V_F = 16
    V_P0, V_P1 = 20, 21
    V_PO0, V_PO1 = 22, 23
    V_G = 24
    V_HO = 28
    V_ACC = 32
    V_POOL = 96
    NSLOT = 10
    R = V_POOL

    def ACC(ct, rt):
        return V_ACC + (ct * 4 + rt) * 4

    a.c("==== P2 program ====")
    mk_srd(a, SRD_WS, S_WS, WS_END)
    a.e(f"v_lshlrev_b32 v{V_L16}, 4, v{V_LANE}")
    a.e(f"v_mov_b32 v{V_ZERO}, 0")
    a.e(f"v_mov_b32 v{V_FL}, {L_FL}")
    a.e(f"v_lshrrev_b32 v1, 4, v{V_LANE}")
    a.e(f"v_bfe_u32 v2, v{V_LANE}, 2, 2")
    a.e(f"v_and_b32 v3, 3, v{V_LANE}")
    l_wq, l_w2, l_nonce, l_join = a.newlab("Lwq"), a.newlab("Lw2"), a.newlab("Lnonce"), a.newlab("Ljoin")
    a.e(f"s_cmp_eq_u32 s{S_W}, 0")
    a.e(f"s_cbranch_scc1 {l_wq}")
    a.e(f"s_cmp_eq_u32 s{S_W}, 3")
    a.e(f"s_cbranch_scc1 {l_nonce}")

    a.lab(l_w2)
    l_w2skip = a.newlab("Lw2skip")
    a.e(f"s_lshl_b32 s{S_T0}, s2, 1")
    a.e(f"s_add_u32 s{S_T0}, s{S_T0}, s{S_W}")
    a.e(f"s_sub_u32 s{S_T0}, s{S_T0}, 1")
    a.e(f"s_cmp_ge_u32 s{S_T0}, 504")
    a.e(f"s_cbranch_scc1 {l_w2skip}")
    a.e(f"s_mul_i32 s{S_T1}, s{S_T0}, 911")
    a.e(f"s_lshr_b32 s{S_T1}, s{S_T1}, 16")
    a.e(f"s_mul_i32 s{S_T2}, s{S_T1}, 72")
    a.e(f"s_sub_u32 s{S_T2}, s{S_T0}, s{S_T2}")
    a.e(f"s_cmp_lt_u32 s{S_T2}, 56")
    a.e(f"s_cselect_b32 s{SRD_A}, s{S_W2}, s{S_WO}")
    a.e(f"s_cselect_b32 s{SRD_A+1}, s{S_W2+1}, s{S_WO+1}")
    a.e(f"s_cselect_b32 s{SRD_A+2}, {1792*896}, {448*896}") if False else None
    a.e(f"s_mov_b32 s{S_T3}, {1792*896}")
    a.e(f"s_mov_b32 s{S_T4}, {448*896}")
    a.e(f"s_cselect_b32 s{SRD_A+2}, s{S_T3}, s{S_T4}")
    a.e(f"s_mov_b32 s{SRD_A+3}, 0x00020000")
    a.e(f"s_cselect_b64 vcc, 0, -1")
    a.e(f"s_lshl_b32 s{S_T3}, s{S_T2}, 5")
    a.e(f"s_sub_u32 s{S_T4}, s{S_T2}, 56")
    a.e(f"s_mul_i32 s{S_T4}, s{S_T4}, 28")
    a.e(f"s_cmp_lt_u32 s{S_T2}, 56")
    a.e(f"s_cselect_b32 s{S_T3}, s{S_T3}, s{S_T4}")
    a.e(f"s_and_b32 s{SRD_A+1}, s{SRD_A+1}, 0xffff")
    a.e(f"s_mul_i32 s{S_T3}, s{S_T3}, 896")
    a.e(f"s_lshl_b32 s{S_T4}, s{S_T1}, 7")
    a.e(f"s_add_u32 s{S_T3}, s{S_T3}, s{S_T4}")
    a.e(f"v_lshrrev_b32 v4, 3, v{V_LANE}")
    a.e(f"v_mul_u32_u24 v4, 896, v4")
    a.e(f"v_and_b32 v5, 7, v{V_LANE}")
    a.e(f"v_lshl_add_u32 v4, v5, 4, v4")
    a.e(f"s_mov_b32 vcc_lo, 0")
    a.e(f"v_mov_b32 v5, 0x40000000")
    a.e("s_nop 1")
    a.e(f"v_cndmask_b32 v5, v4, v5, vcc")
    a.e(f"s_lshl_b32 s{S_T4}, s{S_W}, 12")
    a.e(f"s_add_u32 m0, s{S_T4}, {L_RP + 6144 - 4096}")
    for i in range(4):
        vo = 5 if i == 3 else 4
        a.e(f"buffer_load_dwordx4 v{vo}, {sr(SRD_A,4)}, s{S_T3} offen offset:{i*1024} lds")
        vm.issue()
        if i < 3:
            a.e(f"s_add_u32 s{S_T3}, s{S_T3}, {8*896-1024}")
    a.e("s_barrier")
    a.e(f"v_lshl_add_u32 v4, v1, 2, v2")
    a.e(f"v_lshlrev_b32 v4, 7, v4")
    a.e(f"v_lshl_add_u32 v4, v3, 3, v4")
    a.e(f"v_add_u32 v4, m0, v4")
    a.e(f"s_lshl_b32 s{S_T3}, s{S_T0}, 12")
    a.e(f"s_add_u32 s{S_T3}, s{S_T3}, {WS_W2R}")
    vm.drain()
    for ct in range(4):
        for hh in range(2):
            a.e(f"ds_read_b64_tr_b16 {vr(R+ct*4+hh*2,2)}, v4 offset:{hh*2048+ct*32}")
    a.e("s_waitcnt lgkmcnt(0)")
    for ct in range(4):
        a.e(f"buffer_store_dwordx4 {vr(R+ct*4,4)}, v{V_L16}, {sr(SRD_WS,4)}, s{S_T3} offen offset:{ct*1024} sc1")
        vm.issue()
    a.e(f"s_mul_i32 s{S_T3}, s{S_T2}, 4682")
    a.e(f"s_lshr_b32 s{S_T3}, s{S_T3}, 16")
    a.e(f"s_mul_i32 s{S_T4}, s{S_T3}, 14")
    a.e(f"s_sub_u32 s{S_T4}, s{S_T2}, s{S_T4}")
    a.e(f"s_sub_u32 s{S_T5}, s{S_T2}, 56")
    a.e(f"s_lshr_b32 s{S_T0}, s{S_T5}, 2")
    a.e(f"s_and_b32 s{S_T5}, s{S_T5}, 3")
    a.e(f"s_add_u32 s{S_T5}, s{S_T5}, 14")
    a.e(f"s_cmp_lt_u32 s{S_T2}, 56")
    a.e(f"s_cselect_b32 s{S_T3}, s{S_T3}, s{S_T0}")
    a.e(f"s_cselect_b32 s{S_T4}, s{S_T4}, s{S_T5}")
    a.e(f"s_lshl_b32 s{S_T1}, s{S_T1}, 2")
    a.e(f"s_add_u32 s{S_T1}, s{S_T1}, s{S_T3}")
    a.e(f"s_lshl_b32 s{S_T1}, s{S_T1}, 7")
    a.e(f"s_lshl_b32 s{S_T4}, s{S_T4}, 2")
    a.e(f"s_add_u32 s{S_T1}, s{S_T1}, s{S_T4}")
    a.e(f"s_add_u32 s{S_T1}, s{S_T1}, {WS_FW2}")
    get_nonce(a, lg, V_FL, V_T, V_NONCE)
    vm.drain()
    flag_store(a, vm, V_NONCE, V_ZERO, S_T1)
    a.e(f"s_branch {l_join}")
    a.lab(l_w2skip)
    a.e("s_barrier")
    get_nonce(a, lg, V_FL, V_T, V_NONCE)
    a.e(f"s_branch {l_join}")

    a.lab(l_wq)
    a.e(f"s_cmp_ge_u32 s2, 224")
    a.e(f"s_cbranch_scc1 {l_w2skip}")
    mk_srd(a, SRD_A, S_WQKV, 448 * 2688)
    mk_srd(a, SRD_B, S_GATE, 448 * 2)
    a.e(f"s_mul_i32 s{S_T0}, s2, 4682")
    a.e(f"s_lshr_b32 s{S_T0}, s{S_T0}, 16")
    a.e(f"s_mul_i32 s{S_T1}, s{S_T0}, 14")
    a.e(f"s_sub_u32 s{S_T1}, s2, s{S_T1}")
    a.e(f"v_lshrrev_b32 v4, 2, v{V_LANE}")
    a.e(f"v_mul_u32_u24 v5, 2688, v4")
    a.e(f"v_lshl_add_u32 v5, v3, 4, v5")
    a.e(f"v_lshlrev_b32 v6, 1, v4")
    a.e(f"s_mul_i32 s{S_T2}, s{S_T1}, {32*2688}")
    a.e(f"s_mul_i32 s{S_T3}, s{S_T0}, 56")
    a.e(f"s_add_u32 s{S_T2}, s{S_T2}, s{S_T3}")
    a.e(f"s_add_u32 s{S_T3}, s{S_T2}, {16*2688}")
    a.e(f"s_lshl_b32 s{S_T4}, s{S_T1}, 6")
    for i in range(6):
        seg, hf = i >> 1, i & 1
        so = S_T3 if hf else S_T2
        a.e(f"buffer_load_dwordx4 {vr(R+i*4,4)}, v5, {sr(SRD_A,4)}, s{so} offen offset:{seg*896}")
        vm.issue()
    a.e(f"buffer_load_ushort v7, v6, {sr(SRD_B,4)}, s{S_T4} offen")
    vm.issue()
    a.e(f"buffer_load_ushort v8, v6, {sr(SRD_B,4)}, s{S_T4} offen offset:32")
    vm.issue()
    a.e("s_barrier")
    a.e(f"v_mul_u32_u24 v4, 192, v4")
    a.e(f"v_lshl_add_u32 v4, v3, 4, v4")
    a.e(f"v_add_u32 v4, {L_RP}, v4")
    a.e(f"v_cmp_eq_u32 vcc, 3, v3")
    a.e(f"v_lshl_add_u32 v9, v1, 3, v2")
    a.e(f"v_mul_u32_u24 v9, 192, v9")
    a.e(f"v_lshl_add_u32 v9, v3, 3, v9")
    a.e(f"v_add_u32 v9, {L_RP}, v9")
    vm.drain()
    for i in range(6):
        seg, hf = i >> 1, i & 1
        if seg == 0:
            a.e(f"v_cndmask_b32 v{R+i*4+2}, v{R+i*4+2}, v{7+hf}, vcc")
        else:
            a.e(f"v_cndmask_b32 v{R+i*4+2}, v{R+i*4+2}, v{V_ZERO}, vcc")
        a.e(f"v_cndmask_b32 v{R+i*4+3}, v{R+i*4+3}, v{V_ZERO}, vcc")
        a.e(f"ds_write_b128 v4, {vr(R+i*4,4)} offset:{hf*3072+seg*64}")
    Q = R + 24
    for c6 in range(6):
        for hh in range(2):
            a.e(f"ds_read_b64_tr_b16 {vr(Q+c6*4+hh*2,2)}, v9 offset:{hh*768+c6*32}")
    a.e(f"s_mul_i32 s{S_T2}, s2, 6144")
    a.e(f"s_add_u32 s{S_T2}, s{S_T2}, {WS_WQR}")
    a.e(f"s_add_u32 s{S_T3}, s{S_T2}, 4096")
    a.e("s_waitcnt lgkmcnt(0)")
    for c6 in range(6):
        so = S_T2 if c6 < 4 else S_T3
        a.e(f"buffer_store_dwordx4 {vr(Q+c6*4,4)}, v{V_L16}, {sr(SRD_WS,4)}, s{so} offen offset:{(c6%4)*1024} sc1")
        vm.issue()
    a.e(f"s_lshl_b32 s{S_T0}, s{S_T0}, 7")
    a.e(f"s_lshl_b32 s{S_T1}, s{S_T1}, 2")
    a.e(f"s_add_u32 s{S_T0}, s{S_T0}, s{S_T1}")
    a.e(f"s_add_u32 s{S_T0}, s{S_T0}, {WS_FWQ}")
    get_nonce(a, lg, V_FL, V_T, V_NONCE)
    vm.drain()
    flag_store(a, vm, V_NONCE, V_ZERO, S_T0)
    a.e(f"s_branch {l_join}")

    a.lab(l_nonce)
    mk_srd(a, SRD_O, S_DBG, 256)
    a.e(f"v_lshlrev_b32 v4, 2, v{V_LANE}")
    a.e(f"v_add_u32 v4, {L_FL}, v4")
    a.e(f"ds_write_b32 v4, v{V_ZERO}")
    l_rd, l_have = a.newlab("Lnrd"), a.newlab("Lnhave")
    a.e(f"s_cmp_lg_u32 s2, 0")
    a.e(f"s_cbranch_scc1 {l_rd}")
    a.e(f"s_memrealtime {sr(S_T0,2)}")
    a.e("s_waitcnt lgkmcnt(0)")
    a.e(f"s_lshl_b32 s{S_T0}, s{S_T0}, 1")
    a.e(f"s_or_b32 s{S_T0}, s{S_T0}, 1")
    a.e(f"v_mov_b32 v{V_NONCE}, s{S_T0}")
    a.e("s_mov_b64 exec, 1")
    a.e(f"buffer_store_dword v{V_NONCE}, v{V_ZERO}, {sr(SRD_O,4)}, 0 offen sc1")
    a.e("s_mov_b64 exec, -1")
    a.e("s_barrier")
    a.e(f"s_branch {l_have}")
    a.lab(l_rd)
    a.e("s_waitcnt lgkmcnt(0)")
    a.e("s_barrier")
    a.e(f"s_mov_b32 s{S_SPIN}, 0")
    l_nl = a.newlab("Lnloop")
    a.lab(l_nl)
    a.e(f"buffer_load_dword v{V_NONCE}, v{V_ZERO}, {sr(SRD_O,4)}, 0 offen sc1")
    a.e(f"s_add_u32 s{S_SPIN}, s{S_SPIN}, 1")
    a.e("s_waitcnt vmcnt(0)")
    a.e(f"v_cmp_ne_u32 vcc, 0, v{V_NONCE}")
    a.e(f"s_cbranch_vccnz {l_have}")
    a.e(f"s_cmp_gt_u32 s{S_SPIN}, {SPIN_MAX}")
    a.e(f"s_cbranch_scc0 {l_nl}")
    a.e(f"v_mov_b32 v{V_NONCE}, 1")
    a.lab(l_have)
    a.e("s_mov_b64 exec, 1")
    a.e(f"ds_write_b32 v{V_FL}, v{V_NONCE} offset:32")
    a.e("s_mov_b64 exec, -1")

    a.lab(l_join)
    vm = Cnt(a, "vmcnt", 63)
    lg = Cnt(a, "lgkmcnt", 15)
    a.e("s_waitcnt lgkmcnt(0)")
    mk_srd(a, SRD_X, S_X, 2048 * 896)
    a.e(f"s_lshl_b32 s{S_T0}, s{S_W}, 2")
    a.e(f"s_add_u32 s{S_T0}, s{S_T0}, {L_FL+16}")
    a.e(f"v_mov_b32 v{V_BF}, s{S_T0}")
    a.e(f"s_and_b32 s{S_RB}, s{S_IDX}, 3")
    a.e(f"s_lshl_b32 s{S_T0}, s{S_XCD}, 2")
    a.e(f"s_add_u32 s{S_RB}, s{S_RB}, s{S_T0}")
    a.e(f"s_lshr_b32 s{S_NT}, s{S_IDX}, 2")
    a.e(f"v_lshrrev_b32 v4, 2, v{V_LANE}")
    a.e(f"v_lshrrev_b32 v5, 4, v{V_LANE}")
    a.e(f"v_lshlrev_b32 v5, 1, v5")
    a.e(f"v_mov_b32 v6, 0x78")
    a.e(f"v_lshrrev_b32 v5, v5, v6")
    a.e(f"v_and_b32 v5, 3, v5")
    a.e(f"v_xor_b32 v5, v5, v3")
    a.e(f"s_lshl_b32 s{S_T0}, s{S_M}, 7")
    a.e(f"s_sub_u32 s{S_T0}, s{S_T0}, 16")
    a.e(f"s_max_i32 s{S_T0}, s{S_T0}, 0")
    a.e(f"v_add_u32 v4, s{S_T0}, v4")
    a.e(f"v_mul_u32_u24 v4, 896, v4")
    a.e(f"v_lshl_add_u32 v4, v5, 4, v4")
    a.e(f"v_mov_b32 v5, 0x40000000")
    a.e(f"s_cmp_eq_u32 s{S_M}, 0")
    a.e(f"s_cselect_b64 vcc, -1, 0")
    a.e(f"v_cndmask_b32 v{V_HO}, v4, v5, vcc")
    a.e(f"v_min_u32 v{V_PO0}, 13, v{V_LANE}")
    a.e(f"v_lshlrev_b32 v{V_PO0}, 2, v{V_PO0}")
    a.e(f"v_min_u32 v{V_PO1}, 17, v{V_LANE}")
    a.e(f"v_lshlrev_b32 v{V_PO1}, 2, v{V_PO1}")
    a.e(f"s_lshl_b32 s{S_T0}, s{S_J}, 7")
    a.e(f"s_add_u32 s{S_T0}, s{S_T0}, {WS_FWQ}")
    a.e(f"s_min_u32 s{S_T1}, s{S_NT}, 6")
    a.e(f"s_lshl_b32 s{S_T1}, s{S_T1}, 2")
    a.e(f"s_add_u32 s{S_T1}, s{S_T1}, s{S_W}")
    a.e(f"s_lshl_b32 s{S_T1}, s{S_T1}, 7")
    a.e(f"s_add_u32 s{S_T1}, s{S_T1}, {WS_FW2}")
    flag_poll(a, vm, [(V_P0, V_PO0, S_T0), (V_P1, V_PO1, S_T1)], V_NONCE)
    bthr = 12 + (P["SIG"] + 7) // 8
    if bthr > 14:
        bthr = 15
    lds_wait_min4(a, lg, V_FL, V_F, 0, max(bthr, P["BTHR"]))
    a.e(f"s_mul_i32 s{S_T0}, s{S_J}, 14")
    a.e(f"s_add_u32 s{S_T0}, s{S_T0}, s{S_W}")
    a.e(f"s_mul_i32 s{S_T0}, s{S_T0}, 6144")
    a.e(f"s_add_u32 s{S_T0}, s{S_T0}, {WS_WQR}")
    a.e(f"s_lshl_b32 s{S_T2}, s{S_W}, 6")
    a.e(f"s_mul_i32 s{S_T3}, s{S_W}, 7168")
    dm_tok = []
    l_dskip = a.newlab("Ldskip")
    for n in range(4):
        if n == 3:
            a.e(f"s_cmp_ge_u32 s{S_W}, 2")
            a.e(f"s_cbranch_scc1 {l_dskip}")
        if n == 0:
            a.e(f"s_add_u32 s{S_T4}, s{S_T3}, {L_SB01}")
            a.e(f"s_sub_u32 s{S_T5}, s{S_T3}, {2*7168}")
            a.e(f"s_cmp_lt_u32 s{S_W}, 2")
            a.e(f"s_cselect_b32 m0, s{S_T4}, s{S_T5}")
        else:
            a.e(f"s_add_u32 m0, s{S_T3}, {7168*(4*n-2)}")
        a.e(f"s_add_u32 s{S_T4}, s{S_T0}, 4096")
        for c6 in range(4):
            a.e(f"buffer_load_dwordx4 v{V_L16}, {sr(SRD_WS,4)}, s{S_T0} offen offset:{c6*1024} sc1 lds")
            vm.issue()
        a.e(f"s_add_u32 m0, m0, 4096")
        a.e(f"s_sub_u32 s{S_T5}, s{S_T2}, 2048") if False else None
        a.e("s_nop 0")
        for c6 in range(2):
            a.e(f"buffer_load_dwordx4 v{V_L16}, {sr(SRD_WS,4)}, s{S_T4} offen offset:{c6*1024} sc1 lds")
            vm.issue()
        a.e(f"s_add_u32 m0, m0, 2048")
        a.e("s_nop 0")
        a.e(f"buffer_load_dwordx4 v{V_HO}, {sr(SRD_X,4)}, s{S_T2} offen lds")
        dm_tok.append(vm.issue())
        if n < 3:
            a.e(f"s_add_u32 s{S_T0}, s{S_T0}, {4*6144}")
            a.e(f"s_add_u32 s{S_T2}, s{S_T2}, 256")
    a.lab(l_dskip)
    l_noP2 = a.newlab("LnoP2")
    a.e(f"s_cmp_ge_u32 s{S_NT}, 7")
    a.e(f"s_cbranch_scc1 {l_noP2}")

    a.e(f"s_mul_i32 s{S_BASEA}, s{S_RB}, {72*4096}")
    a.e(f"s_mul_i32 s{S_BASEW}, s{S_NT}, {72*4096}")
    a.e(f"s_add_u32 s{S_BASEW}, s{S_BASEW}, {WS_W2R}")
    a.e(f"s_mul_i32 s{S_T0}, s{S_W}, {14*4096}")
    a.e(f"s_lshl_b32 s{S_T1}, s{S_W}, 14")
    a.e(f"s_add_u32 s{S_T1}, s{S_T1}, {56*4096}")
    S_AH, S_AO, S_WH, S_WO_ = 74, 75, 76, 77
    a.e(f"s_add_u32 s{S_AH}, s{S_BASEA}, s{S_T0}")
    a.e(f"s_add_u32 s{S_AO}, s{S_BASEA}, s{S_T1}")
    a.e(f"s_add_u32 s{S_WH}, s{S_BASEW}, s{S_T0}")
    a.e(f"s_add_u32 s{S_WO_}, s{S_BASEW}, s{S_T1}")

    free = list(range(NSLOT))
    wslot, aslot, wtok, atok = {}, {}, {}, {}

    def load_blk(kind, i):
        s = free.pop(0)
        base = V_POOL + s * 16
        if kind == "W":
            sb = S_WH if i < 14 else S_WO_
        else:
            sb = S_AH if i < 14 else S_AO
        off = (i if i < 14 else i - 14) * 4096
        so = S_SO0 if kind == "W" else S_SO1
        a.e(f"s_add_u32 s{so}, s{sb}, {off}")
        for q in range(4):
            a.e(f"buffer_load_dwordx4 {vr(base+q*4,4)}, v{V_L16}, {sr(SRD_WS,4)}, s{so} offen offset:{q*1024} sc1")
            tok = vm.issue()
        if kind == "W":
            wslot[i], wtok[i] = s, tok
        else:
            aslot[i], atok[i] = s, tok

    NWPRE = P["NWPRE"]
    npre_ops = NWPRE * 4
    for i in range(NWPRE):
        load_blk("W", i)
    mk_srd(a, SRD_B, S_B2, 448 * 2)
    a.e(f"v_lshrrev_b32 v4, 4, v{V_LANE}")
    a.e(f"s_lshl_b32 s{S_T0}, s{S_NT}, 7")
    a.e(f"v_lshl_add_u32 v4, v4, 3, s{S_T0}")
    a.e(f"v_mov_b32 v5, 0x40000000")
    a.e(f"s_cmp_eq_u32 s{S_W}, 0")
    a.e(f"s_cselect_b64 vcc, -1, 0")
    a.e(f"v_cndmask_b32 v4, v5, v4, vcc")
    VB = V_POOL + (NSLOT - 1) * 16
    for ct in range(4):
        a.e(f"buffer_load_dwordx2 {vr(VB+2*ct,2)}, v4, {sr(SRD_B,4)}, 0 offen offset:{ct*32}")
        btok = vm.issue()
    younger = npre_ops + 4
    l_g3, l_gdone = a.newlab("Lg3"), a.newlab("Lgdone")
    a.e(f"s_cmp_ge_u32 s{S_W}, 2")
    a.e(f"s_cbranch_scc1 {l_g3}")
    for n in range(4):
        a.e(f"s_waitcnt vmcnt({min(63, younger + 7*(3-n))})")
        lds_signal(a, lg, V_BF, V_SIG, n + 1)
    a.e(f"s_branch {l_gdone}")
    a.lab(l_g3)
    for n in range(3):
        a.e(f"s_waitcnt vmcnt({min(63, younger + 7*(2-n))})")
        lds_signal(a, lg, V_BF, V_SIG, n + 1)
    a.lab(l_gdone)
    vm.wait(btok)
    for ct in range(4):
        d = ACC(ct, 0)
        a.e(f"v_lshlrev_b32 v{d}, 16, v{VB+2*ct}")
        a.e(f"v_and_b32 v{d+1}, 0xffff0000, v{VB+2*ct}")
        a.e(f"v_lshlrev_b32 v{d+2}, 16, v{VB+2*ct+1}")
        a.e(f"v_and_b32 v{d+3}, 0xffff0000, v{VB+2*ct+1}")
        for rt in range(1, 4):
            for i in range(4):
                a.e(f"v_mov_b32 v{ACC(ct,rt)+i}, v{d+i}")
    a.e(f"s_mul_i32 s{S_T0}, s{S_W}, 14")
    a.e(f"s_lshr_b32 s{S_T0}, s{S_T0}, 2")
    a.e(f"s_lshl_b32 s{S_T0}, s{S_T0}, 8")
    a.e(f"s_lshl_b32 s{S_T1}, s{S_RB}, 12")
    a.e(f"s_add_u32 s{S_T0}, s{S_T0}, s{S_T1}")
    a.e(f"s_add_u32 s{S_T0}, s{S_T0}, {WS_FA}")
    a.e(f"v_and_b32 v{V_PO0}, 7, v{V_LANE}")
    a.e(f"v_lshlrev_b32 v{V_PO0}, 7, v{V_PO0}")
    S_FBO, S_GO = 78, 79
    a.e(f"s_lshl_b32 s{S_T2}, s{S_W}, 10")
    a.e(f"s_add_u32 s{S_FBO}, s{S_T2}, s{S_T1}")
    a.e(f"s_add_u32 s{S_FBO}, s{S_FBO}, {WS_FB}")
    a.e(f"s_lshl_b32 s{S_T2}, s{S_W}, 7")
    a.e(f"s_add_u32 s{S_T2}, s{S_T2}, s{S_RB}")
    a.e(f"s_lshl_b32 s{S_T2}, s{S_T2}, 8")
    a.e(f"s_add_u32 s{S_GO}, s{S_T2}, {WS_G}")
    a.e(f"v_and_b32 v{V_PO1}, 15, v{V_LANE}")
    a.e(f"v_lshlrev_b32 v{V_PO1}, 4, v{V_PO1}")
    flag_poll(a, vm, [(V_P0, V_PO0, S_T0)], V_NONCE)

    NB = 18
    nextA, nextW = 0, NWPRE
    fb_tok = None
    fb_checked = False
    g_tok = None
    FBP = P["FBP"]

    def fb_check():
        nonlocal fb_checked, g_tok
        if fb_checked:
            return
        fb_checked = True
        vm.wait(fb_tok)
        ok, slow = a.newlab("Lfbok"), a.newlab("Lfbslow")
        a.e(f"v_cmp_ne_u32 vcc, v{V_P0}, v{V_NONCE}")
        a.e(f"s_cbranch_vccnz {slow}")
        a.lab(ok)
        t = a.tail
        t.append(f"{slow}:")
        t.append(f"  s_mov_b32 s{S_SPIN}, 0")
        t.append(f"{slow}_l:")
        t.append(f"  s_sleep 1")
        t.append(f"  buffer_load_dword v{V_P0}, v{V_PO0}, {sr(SRD_WS,4)}, s{S_FBO} offen sc1")
        t.append(f"  s_add_u32 s{S_SPIN}, s{S_SPIN}, 1")
        t.append(f"  s_cmp_gt_u32 s{S_SPIN}, {SPIN_MAX}")
        t.append(f"  s_waitcnt vmcnt(0)")
        t.append(f"  s_cbranch_scc1 {ok}")
        t.append(f"  v_cmp_ne_u32 vcc, v{V_P0}, v{V_NONCE}")
        t.append(f"  s_cbranch_vccnz {slow}_l")
        t.append(f"  s_branch {ok}")
        a.e(f"buffer_load_dwordx4 {vr(V_G,4)}, v{V_PO1}, {sr(SRD_WS,4)}, s{S_GO} offen sc1")
        g_tok = vm.issue()

    def refill():
        nonlocal nextA, nextW
        while free:
            if nextW < NB and nextW <= nextA:
                load_blk("W", nextW); nextW += 1
            elif nextA < NB:
                if nextA >= 14:
                    if fb_tok is None:
                        break
                    fb_check()
                load_blk("A", nextA); nextA += 1
            elif nextW < NB:
                load_blk("W", nextW); nextW += 1
            else:
                break

    refill()
    for i in range(NB):
        if i == 14:
            vm.wait(g_tok)
            a.e("s_nop 7")
            for ct in range(4):
                for rt in range(4):
                    for e in range(4):
                        a.e(f"v_mul_f32 v{ACC(ct,rt)+e}, v{ACC(ct,rt)+e}, v{V_G+rt}")
            a.e("s_nop 1")
        assert i in wtok and i in atok, (i, wtok.keys(), atok.keys())
        vm.wait(max(wtok[i], atok[i]))
        wb, ab = V_POOL + wslot[i] * 16, V_POOL + aslot[i] * 16
        for ct in range(4):
            for rt in range(4):
                mfma(a, ACC(ct, rt), wb + ct * 4, ab + rt * 4, ACC(ct, rt))
        free.append(wslot[i]); free.append(aslot[i])
        if i == FBP:
            a.e(f"buffer_load_dword v{V_P0}, v{V_PO0}, {sr(SRD_WS,4)}, s{S_FBO} offen sc1")
            fb_tok = vm.issue()
        refill()

    a.c("---- reduction ----")
    lds_wait_min4(a, lg, V_FL, V_F, 0, 18)
    a.e(f"v_and_b32 v1, 15, v{V_LANE}")
    a.e(f"v_lshrrev_b32 v2, 4, v{V_LANE}")
    a.e(f"s_lshl_b32 s{S_T0}, s{S_W}, 12")
    a.e(f"v_lshl_add_u32 v2, v2, 8, s{S_T0}")
    for ct in range(4):
        a.e(f"v_add_u32 v3, {4*ct}, v1")
        a.e(f"v_and_b32 v3, 15, v3")
        a.e(f"v_lshl_add_u32 v{4+ct}, v3, 4, v2")
    a.e("s_nop 4")
    for rt in range(4):
        for ct in range(4):
            a.e(f"ds_write_b128 v{4+ct}, {vr(ACC(ct,rt),4)} offset:{L_RED + rt*16384 + ct*1024}")
    a.e(f"v_lshrrev_b32 v1, 2, v{V_LANE}")
    a.e(f"v_and_b32 v2, 3, v{V_LANE}")
    a.e(f"v_lshl_add_u32 v3, v2, 2, v1")
    a.e(f"v_and_b32 v3, 15, v3")
    a.e(f"v_lshlrev_b32 v3, 4, v3")
    a.e(f"v_lshl_add_u32 v3, v2, 10, v3")
    a.e(f"s_lshl_b32 s{S_T0}, s{S_W}, 14")
    a.e(f"v_add_u32 v8, s{S_T0}, v3")
    mk_srd(a, SRD_O, S_OUT, 2048 * 896)
    a.e(f"s_lshl_b32 s{S_T0}, s{S_RB}, 6")
    a.e(f"s_lshl_b32 s{S_T1}, s{S_W}, 4")
    a.e(f"s_add_u32 s{S_T0}, s{S_T0}, s{S_T1}")
    a.e(f"v_add_u32 v1, s{S_T0}, v1")
    a.e(f"v_mul_u32_u24 v1, 896, v1")
    a.e(f"v_lshl_add_u32 v9, v2, 5, v1")
    a.e(f"s_lshl_b32 s{S_T1}, s{S_NT}, 7")
    a.e("s_waitcnt lgkmcnt(0)")
    a.e("s_barrier")
    RD = V_POOL
    for g in range(4):
        for src in range(4):
            a.e(f"ds_read_b128 {vr(RD+(g*4+src)*4,4)}, v8 offset:{L_RED + src*4096 + g*256}")
    OUTR = V_ACC
    for g in range(4):
        a.e(f"s_waitcnt lgkmcnt({12-4*g})")
        b = RD + g * 16
        for e in range(4):
            a.e(f"v_add_f32 v{b+e}, v{b+e}, v{b+4+e}")
            a.e(f"v_add_f32 v{b+8+e}, v{b+8+e}, v{b+12+e}")
        for e in range(4):
            a.e(f"v_add_f32 v{b+e}, v{b+e}, v{b+8+e}")
        a.e(f"v_cvt_pk_bf16_f32 v{OUTR+2*g}, v{b}, v{b+1}")
        a.e(f"v_cvt_pk_bf16_f32 v{OUTR+2*g+1}, v{b+2}, v{b+3}")
        if g % 2 == 1:
            a.e(f"buffer_store_dwordx4 {vr(OUTR+2*g-2,4)}, v9, {sr(SRD_O,4)}, s{S_T1} offen offset:{(g//2)*16}")
    a.e("s_endpgm")

    a.lab(l_noP2)
    l_g3b = a.newlab("Lg3b")
    a.e(f"s_cmp_ge_u32 s{S_W}, 2")
    a.e(f"s_cbranch_scc1 {l_g3b}")
    for n in range(4):
        a.e(f"s_waitcnt vmcnt({7*(3-n)})")
        lds_signal(a, lg, V_BF, V_SIG, n + 1)
    a.e("s_endpgm")
    a.lab(l_g3b)
    for n in range(3):
        a.e(f"s_waitcnt vmcnt({7*(2-n)})")
        lds_signal(a, lg, V_BF, V_SIG, n + 1)
    a.e("s_endpgm")


def generate(P):
    a = Asm()
    K = NAME + "_kernel"
    hdr = [
        "; fused gated-mix kernel: generated by gen/gen.py (hand-written generator)",
        f"; @launch grid=(256,1,1) block=(512,1,1) lds={L_END}",
        '.amdgcn_target "amdgcn-amd-amdhsa--gfx950"',
        ".text",
        f".globl {K}",
        ".p2align 8",
        f".type {K},@function",
        f"{K}:",
    ]
    a.e("s_cmp_ge_u32 s2, 256")
    a.e("s_cbranch_scc1 L_exit")
    a.e("s_load_dwordx16 s[8:23], s[0:1], 0")
    a.e("s_load_dwordx8 s[24:31], s[0:1], 64")
    a.e("v_lshrrev_b32 v1, 6, v0")
    a.e("v_and_b32 v0, 63, v0")
    a.e(f"v_readfirstlane_b32 s{S_WAVE}, v1")
    a.e(f"s_and_b32 s{S_XCD}, s2, 7")
    a.e(f"s_lshr_b32 s{S_IDX}, s2, 3")
    a.e(f"s_and_b32 s{S_M}, s{S_XCD}, 1")
    a.e(f"s_lshl_b32 s{S_M}, s{S_M}, 3")
    a.e(f"s_and_b32 s{S_T0}, s{S_IDX}, 7")
    a.e(f"s_add_u32 s{S_M}, s{S_M}, s{S_T0}")
    a.e(f"s_lshr_b32 s{S_J}, s{S_IDX}, 3")
    a.e(f"s_lshl_b32 s{S_J}, s{S_J}, 2")
    a.e(f"s_lshr_b32 s{S_T0}, s{S_XCD}, 1")
    a.e(f"s_add_u32 s{S_J}, s{S_J}, s{S_T0}")
    a.e(f"s_and_b32 s{S_W}, s{S_WAVE}, 3")
    a.e("s_waitcnt lgkmcnt(0)")
    a.e(f"s_cmp_ge_u32 s{S_WAVE}, 4")
    a.e("s_cbranch_scc1 L_p2")
    a.e(f"s_cmp_ge_u32 s{S_J}, 14")
    a.e("s_cbranch_scc1 L_p1_noa")
    gen_p1(a, P, True)
    a.lab("L_p1_b")
    gen_p1_stage_b(a, P)
    a.lab("L_p1_noa")
    gen_p1(a, P, False)
    a.e("s_branch L_p1_b")
    a.lab("L_p2")
    gen_p2(a, P)
    a.lines += a.tail
    a.lab("L_exit")
    a.e("s_endpgm")
    ftr = [
        '.section .rodata,"a"',
        ".p2align 6",
        f".amdhsa_kernel {K}",
        "  .amdhsa_next_free_vgpr 256",
        "  .amdhsa_next_free_sgpr 96",
        "  .amdhsa_accum_offset 256",
        "  .amdhsa_group_segment_fixed_size 0",
        "  .amdhsa_kernarg_size 96",
        "  .amdhsa_user_sgpr_count 2",
        "  .amdhsa_user_sgpr_kernarg_segment_ptr 1",
        "  .amdhsa_system_sgpr_workgroup_id_x 1",
        "  .amdhsa_float_denorm_mode_32 3",
        ".end_amdhsa_kernel",
    ]
    return "\n".join(hdr + a.lines + ftr) + "\n"


DEFAULT = dict(LA=4, SIG=12, CHK=2, LAB=6, BTHR=13, NWPRE=6, FBP=8)

if __name__ == "__main__":
    P = dict(DEFAULT)
    out = f"cdna_kernels/{NAME}.s"
    for arg in sys.argv[1:]:
        if "=" in arg:
            k, v = arg.split("=")
            if k == "out":
                out = v
            else:
                P[k] = int(v)
    for u in range(504):
        assert (u * 911) >> 16 == u // 72
    for u in range(256):
        assert (u * 4682) >> 16 == u // 14
    open(out, "w").write(generate(P))
    print("wrote", out)
```

```python
import sys

NAME = "gated_mix__sliding_local_dilated__dense_activation_squared_relu__prompt"

WS_A2 = 0
WS_W2R = 0x900000
WS_WQR = WS_W2R + 7 * 72 * 4096
WS_G = WS_WQR + 16 * 14 * 6144
WS_FA = WS_G + 16 * 32 * 256
WS_FB = WS_FA + 32 * 16 * 2 * 128
WS_FWQ = WS_FB + 32 * 16 * 2 * 128
WS_FW2 = WS_FWQ + 16 * 128
WS_END = WS_FW2 + 28 * 128

SLOT = 32768
L_XB = 131072
L_RP = 139264
L_FL = 153600
L_BIAS = L_FL + 256
L_END = L_BIAS + 512
L_RED = 0


def sb_addr(ks):
    return ((7 + ks // 4) % 4) * SLOT + (ks % 4) * 7168


SPIN_MAX = 1 << 15


class Asm:
    def __init__(self):
        self.lines = []
        self.nlab = 0
        self.tail = []

    def e(self, s):
        self.lines.append("  " + s)

    def c(self, s):
        self.lines.append("  ; " + s)

    def lab(self, l):
        self.lines.append(l + ":")

    def newlab(self, p="L"):
        self.nlab += 1
        return f"{p}_{self.nlab}"


class Cnt:
    def __init__(self, a, name, mx):
        self.a, self.name, self.mx = a, name, mx
        self.n = 0
        self.done = 0

    def issue(self):
        self.n += 1
        return self.n

    def wait(self, tok):
        if tok is None or tok <= self.done:
            return
        k = min(self.n - tok, self.mx)
        self.a.e(f"s_waitcnt {self.name}({k})")
        self.done = self.n - k

    def drain(self):
        self.a.e(f"s_waitcnt {self.name}(0)")
        self.done = self.n

    def mark_drained(self):
        self.done = self.n


def vr(b, n=1):
    return f"v{b}" if n == 1 else f"v[{b}:{b+n-1}]"


def sr(b, n=1):
    return f"s{b}" if n == 1 else f"s[{b}:{b+n-1}]"


S_X, S_WQKV, S_WO, S_BX, S_W1, S_B1, S_W2, S_B2 = 8, 10, 12, 14, 16, 18, 20, 22
S_GATE, S_OUT, S_DBG, S_WS = 24, 26, 28, 30
SRD_WS, SRD_X, SRD_A, SRD_B, SRD_O = 32, 36, 40, 44, 48
S_WAVE, S_XCD, S_IDX, S_M, S_J, S_RB, S_NT = 52, 53, 54, 55, 56, 57, 58
S_T0, S_T1, S_T2, S_T3, S_T4, S_T5 = 60, 61, 62, 63, 64, 65
S_SPIN = 66
S_NONCE = 67
S_W = 68
S_SO0, S_SO1 = 70, 71
S_BASEA, S_BASEW = 72, 73
S_RPF = 69
S_PG0, S_PG1, S_PG2 = 3, 4, 5


def mk_srd(a, d, p, nbytes):
    a.e(f"s_mov_b32 s{d}, s{p}")
    a.e(f"s_and_b32 s{d+1}, s{p+1}, 0xffff")
    a.e(f"s_mov_b32 s{d+2}, {nbytes}")
    a.e(f"s_mov_b32 s{d+3}, 0x00020000")


def lds_wait_min4(a, lg, vaddr, vtmp, off, need, pre_tok=None):
    if pre_tok is None:
        a.e(f"ds_read_b128 {vr(vtmp,4)}, {vr(vaddr)} offset:{off}")
        pre_tok = lg.issue()
    lg.wait(pre_tok)
    ok = a.newlab("Lok")
    spin = a.newlab("Lspin")
    a.e(f"v_min3_u32 {vr(vtmp)}, {vr(vtmp)}, {vr(vtmp+1)}, {vr(vtmp+2)}")
    a.e(f"v_min_u32 {vr(vtmp)}, {vr(vtmp)}, {vr(vtmp+3)}")
    a.e(f"v_cmp_gt_u32 vcc, {need}, {vr(vtmp)}")
    a.e(f"s_cbranch_vccnz {spin}")
    a.lab(ok)
    t = a.tail
    t.append(f"{spin}:")
    t.append(f"  s_mov_b32 s{S_SPIN}, 0")
    t.append(f"{spin}_l:")
    t.append(f"  ds_read_b128 {vr(vtmp,4)}, {vr(vaddr)} offset:{off}")
    t.append(f"  s_add_u32 s{S_SPIN}, s{S_SPIN}, 1")
    t.append(f"  s_cmp_gt_u32 s{S_SPIN}, {SPIN_MAX*8}")
    t.append(f"  s_waitcnt lgkmcnt(0)")
    t.append(f"  s_cbranch_scc1 {ok}")
    t.append(f"  v_min3_u32 {vr(vtmp)}, {vr(vtmp)}, {vr(vtmp+1)}, {vr(vtmp+2)}")
    t.append(f"  v_min_u32 {vr(vtmp)}, {vr(vtmp)}, {vr(vtmp+3)}")
    t.append(f"  v_cmp_gt_u32 vcc, {need}, {vr(vtmp)}")
    t.append(f"  s_cbranch_vccnz {spin}_l")
    t.append(f"  s_branch {ok}")


def lds_wait_word(a, lg, vaddr, vtmp, off, need, pre_tok=None):
    if pre_tok is None:
        a.e(f"ds_read_b32 {vr(vtmp)}, {vr(vaddr)} offset:{off}")
        pre_tok = lg.issue()
    lg.wait(pre_tok)
    ok = a.newlab("Lok")
    spin = a.newlab("Lspin")
    a.e(f"v_cmp_gt_u32 vcc, {need}, {vr(vtmp)}")
    a.e(f"s_cbranch_vccnz {spin}")
    a.lab(ok)
    t = a.tail
    t.append(f"{spin}:")
    t.append(f"  s_mov_b32 s{S_SPIN}, 0")
    t.append(f"{spin}_l:")
    t.append(f"  ds_read_b32 {vr(vtmp)}, {vr(vaddr)} offset:{off}")
    t.append(f"  s_add_u32 s{S_SPIN}, s{S_SPIN}, 1")
    t.append(f"  s_cmp_gt_u32 s{S_SPIN}, {SPIN_MAX*8}")
    t.append(f"  s_waitcnt lgkmcnt(0)")
    t.append(f"  s_cbranch_scc1 {ok}")
    t.append(f"  v_cmp_gt_u32 vcc, {need}, {vr(vtmp)}")
    t.append(f"  s_cbranch_vccnz {spin}_l")
    t.append(f"  s_branch {ok}")


def lds_signal(a, lg, vaddr, vtmp, val):
    a.e(f"v_mov_b32 {vr(vtmp)}, {val}")
    a.e("s_mov_b64 exec, 1")
    a.e(f"ds_write_b32 {vr(vaddr)}, {vr(vtmp)}")
    lg.issue()
    a.e("s_mov_b64 exec, -1")


class Prog:
    def __init__(self, a, vm, lg, vaddr, vtmp, base=0):
        self.a, self.vm, self.lg, self.vaddr, self.vtmp, self.base = a, vm, lg, vaddr, vtmp, base
        self.extra = []

    def note_extra(self, pos_before):
        cnt = self.vm.n - pos_before
        if cnt:
            self.extra.append((pos_before, cnt))

    def lines(self):
        o = []
        o.append(f"s_getreg_b32 s{S_PG0}, hwreg(HW_REG_IB_STS)")
        o.append(f"s_bfe_u32 s{S_PG1}, s{S_PG0}, 0x20016")
        o.append(f"s_and_b32 s{S_PG0}, s{S_PG0}, 15")
        o.append(f"s_lshl_b32 s{S_PG1}, s{S_PG1}, 4")
        o.append(f"s_or_b32 s{S_PG0}, s{S_PG0}, s{S_PG1}")
        o.append(f"s_sub_u32 s{S_PG0}, {self.vm.n}, s{S_PG0}")
        off = self.base
        live = []
        for (pos, cnt) in self.extra:
            if pos + cnt <= self.vm.done:
                off -= cnt
            else:
                live.append((pos, cnt))
        if live:
            o.append(f"s_mov_b32 s{S_PG2}, s{S_PG0}")
        for (pos, cnt) in live:
            o.append(f"s_sub_i32 s{S_PG1}, s{S_PG2}, {pos}")
            o.append(f"s_max_i32 s{S_PG1}, s{S_PG1}, 0")
            o.append(f"s_min_i32 s{S_PG1}, s{S_PG1}, {cnt}")
            o.append(f"s_sub_u32 s{S_PG0}, s{S_PG0}, s{S_PG1}")
        if off:
            o.append(f"s_add_i32 s{S_PG0}, s{S_PG0}, {off}")
        o.append(f"v_mov_b32 {vr(self.vtmp)}, s{S_PG0}")
        o.append("s_mov_b64 exec, 1")
        o.append(f"ds_write_b32 {vr(self.vaddr)}, {vr(self.vtmp)}")
        o.append("s_mov_b64 exec, -1")
        return o

    def publish(self):
        for l in self.lines():
            self.a.e(l)
        self.lg.issue()

    def wait_prog(self, vfl, vtmp4, need):
        a = self.a
        top, done = a.newlab("Lwp"), a.newlab("Lwpd")
        a.e(f"s_mov_b32 s{S_SPIN}, 0")
        first = a.newlab("Lwpf")
        a.e(f"s_branch {first}")
        a.lab(top)
        if SLEEP:
            a.e(f"s_sleep {SLEEP}")
        a.lab(first)
        a.e(f"ds_read_b128 {vr(vtmp4,4)}, {vr(vfl)}")
        for l in self.lines():
            a.e(l)
        a.e(f"s_add_u32 s{S_SPIN}, s{S_SPIN}, 1")
        a.e(f"s_cmp_gt_u32 s{S_SPIN}, {SPIN_MAX*8}")
        a.e("s_waitcnt lgkmcnt(1)")
        a.e(f"s_cbranch_scc1 {done}")
        a.e(f"v_min3_u32 {vr(vtmp4)}, {vr(vtmp4)}, {vr(vtmp4+1)}, {vr(vtmp4+2)}")
        a.e(f"v_min_u32 {vr(vtmp4)}, {vr(vtmp4)}, {vr(vtmp4+3)}")
        a.e(f"v_cmp_gt_u32 vcc, {need}, {vr(vtmp4)}")
        a.e(f"s_cbranch_vccnz {top}")
        a.lab(done)
        self.lg.issue(); self.lg.issue()

    def wait_tok(self, tok):
        if tok <= self.vm.done:
            return
        a = self.a
        top, done = a.newlab("Lwt"), a.newlab("Lwtd")
        a.e(f"s_branch {done}")
        a.lab(top)
        if SLEEP:
            a.e(f"s_sleep {SLEEP}")
        a.lab(done)
        for l in self.lines():
            a.e(l)
        a.e(f"s_getreg_b32 s{S_PG0}, hwreg(HW_REG_IB_STS)")
        a.e(f"s_bfe_u32 s{S_PG1}, s{S_PG0}, 0x20016")
        a.e(f"s_and_b32 s{S_PG0}, s{S_PG0}, 15")
        a.e(f"s_lshl_b32 s{S_PG1}, s{S_PG1}, 4")
        a.e(f"s_or_b32 s{S_PG0}, s{S_PG0}, s{S_PG1}")
        a.e(f"s_cmp_gt_u32 s{S_PG0}, {self.vm.n - tok}")
        a.e(f"s_cbranch_scc1 {top}")
        self.lg.issue()
        self.vm.wait(tok)


def get_nonce(a, lg, vzero_fl, vtmp, vdst):
    lds_wait_word(a, lg, vzero_fl, vdst, 32, 1)


def flag_store(a, vm, vnonce, vzero, soff):
    a.e("s_mov_b64 exec, 1")
    a.e(f"buffer_store_dword {vr(vnonce)}, {vr(vzero)}, {sr(SRD_WS,4)}, s{soff} offen sc1")
    vm.issue()
    a.e("s_mov_b64 exec, -1")


def flag_poll(a, vm, polls, vnonce, sleep=1):
    top = a.newlab("Lpoll")
    done = a.newlab("Lpdone")
    a.e(f"s_mov_b32 s{S_SPIN}, 0")
    a.lab(top)
    for (vd, vo, so) in polls:
        a.e(f"buffer_load_dword {vr(vd)}, {vr(vo)}, {sr(SRD_WS,4)}, s{so} offen sc1")
        vm.issue()
    a.e(f"s_add_u32 s{S_SPIN}, s{S_SPIN}, 1")
    a.e(f"s_waitcnt vmcnt(0)")
    vm.mark_drained()
    vd0 = polls[0][0]
    a.e(f"v_xor_b32 {vr(vd0)}, {vr(vd0)}, {vr(vnonce)}")
    for (vd, vo, so) in polls[1:]:
        a.e(f"v_xor_b32 {vr(vd)}, {vr(vd)}, {vr(vnonce)}")
        a.e(f"v_or_b32 {vr(vd0)}, {vr(vd0)}, {vr(vd)}")
    a.e(f"v_cmp_ne_u32 vcc, 0, {vr(vd0)}")
    a.e(f"s_cbranch_vccz {done}")
    a.e(f"s_cmp_gt_u32 s{S_SPIN}, {SPIN_MAX}")
    a.e(f"s_cbranch_scc1 {done}")
    if sleep:
        a.e(f"s_sleep {sleep}")
    a.e(f"s_branch {top}")
    a.lab(done)


STAMPS = False
SLEEP = 1
S_ST = 80


def stamp(a, i):
    if STAMPS:
        a.e(f"{'s_memtime' if STAMPS == 2 else 's_memrealtime'} {sr(S_ST+2*i,2)}")


def stamp_flush(a, n):
    if not STAMPS:
        return
    a.e("s_waitcnt lgkmcnt(0)")
    a.e(f"s_lshl_b32 s{S_T0}, s2, 3")
    a.e(f"s_add_u32 s{S_T0}, s{S_T0}, s{S_WAVE}")
    a.e(f"s_lshl_b32 s{S_T0}, s{S_T0}, 6")
    a.e(f"s_add_u32 s{S_T0}, s{S_T0}, {WS_END}")
    a.e("s_mov_b64 exec, 1")
    a.e("v_mov_b32 v1, 0")
    for i in range(n):
        a.e(f"v_mov_b32 v2, s{S_ST+2*i}")
        a.e(f"buffer_store_dword v2, v1, {sr(SRD_WS,4)}, s{S_T0} offen offset:{4*i}")
        a.e("s_nop 1")
    a.e("s_mov_b64 exec, -1")


def mfma(a, d, A, B, C):
    c = "0" if C is None else vr(C, 4)
    a.e(f"v_mfma_f32_16x16x32_bf16 {vr(d,4)}, {vr(A,4)}, {vr(B,4)}, {c}")


def gen_p1(a, P):
    vm = Cnt(a, "vmcnt", 63)
    lg = Cnt(a, "lgkmcnt", 15)
    V_LANE = 0
    V_T = 1
    V_XR = 8
    V_FL = 12
    V_PROG = 13
    V_L16 = 14
    V_ZERO = 15
    V_TA = 16
    V_SO = 20
    V_BA = 21
    V_F = 24
    V_NONCE = 28
    V_SIG = 29
    V_PA, V_QA = 30, 31
    V_X = 32
    V_ACC = 144
    V_WR = 208
    V_E = 240
    NR = 8

    def X(c, ks):
        return V_X + (c * 14 + ks) * 4

    def ACC(t):
        return V_ACC + t * 16

    a.c("==== P1 program ====")
    if P["PRIO"]:
        a.e(f"s_setprio {P['PRIO']}")
    a.e(f"v_mov_b32 v{V_ZERO}, 0")
    a.e(f"v_mov_b32 v{V_FL}, {L_FL}")
    l_n3 = a.newlab("Lnot3")
    l_bj = a.newlab("Lbj")
    a.e(f"s_cmp_lg_u32 s{S_W}, 3")
    a.e(f"s_cbranch_scc1 {l_n3}")
    mk_srd(a, SRD_B, S_B1, 1792 * 2)
    mk_srd(a, SRD_O, S_DBG, 256)
    a.e(f"v_lshlrev_b32 v4, 2, v{V_LANE}")
    a.e(f"s_lshl_b32 s{S_T3}, s{S_J}, 8")
    a.e(f"buffer_load_dword v5, v4, {sr(SRD_B,4)}, s{S_T3} offen")
    a.e(f"v_add_u32 v6, {L_FL}, v4")
    a.e(f"ds_write_b32 v6, v{V_ZERO}")
    l_rd, l_have = a.newlab("Lnrd"), a.newlab("Lnhave")
    a.e(f"s_memrealtime {sr(S_T0,2)}")
    a.e("s_waitcnt lgkmcnt(0)")
    a.e("s_barrier")
    a.e(f"s_cmp_lg_u32 s2, 0")
    a.e(f"s_cbranch_scc1 {l_rd}")
    a.e(f"s_lshl_b32 s{S_T0}, s{S_T0}, 1")
    a.e(f"s_or_b32 s{S_T0}, s{S_T0}, 1")
    a.e(f"v_mov_b32 v{V_NONCE}, s{S_T0}")
    a.e("s_mov_b64 exec, 1")
    a.e(f"buffer_store_dword v{V_NONCE}, v{V_ZERO}, {sr(SRD_O,4)}, 0 offen sc1")
    a.e("s_mov_b64 exec, -1")
    a.lab(l_rd)
    a.e(f"buffer_load_dword v7, v{V_ZERO}, {sr(SRD_O,4)}, 0 offen sc1")
    a.e(f"v_lshlrev_b32 v6, 3, v{V_LANE}")
    a.e(f"v_add_u32 v6, {L_BIAS}, v6")
    a.e("s_waitcnt vmcnt(0)")
    a.e(f"v_lshlrev_b32 v2, 16, v5")
    a.e(f"v_and_b32 v3, 0xffff0000, v5")
    a.e(f"ds_write_b64 v6, v[2:3]")
    a.e(f"v_mov_b32 v2, 1")
    a.e("s_waitcnt lgkmcnt(0)")
    a.e("s_mov_b64 exec, 1")
    a.e(f"ds_write_b32 v{V_FL}, v2 offset:36")
    a.e("s_mov_b64 exec, -1")
    a.e(f"s_cmp_eq_u32 s2, 0")
    a.e(f"s_cbranch_scc1 {l_have}")
    a.e(f"v_mov_b32 v{V_NONCE}, v7")
    a.e(f"s_mov_b32 s{S_SPIN}, 0")
    l_nl = a.newlab("Lnloop")
    a.lab(l_nl)
    a.e(f"v_cmp_ne_u32 vcc, 0, v{V_NONCE}")
    a.e(f"s_cbranch_vccnz {l_have}")
    a.e(f"buffer_load_dword v{V_NONCE}, v{V_ZERO}, {sr(SRD_O,4)}, 0 offen sc1")
    a.e(f"s_add_u32 s{S_SPIN}, s{S_SPIN}, 1")
    a.e(f"s_cmp_gt_u32 s{S_SPIN}, {SPIN_MAX}")
    a.e("s_waitcnt vmcnt(0)")
    a.e(f"s_cbranch_scc0 {l_nl}")
    a.e(f"v_mov_b32 v{V_NONCE}, 1")
    a.lab(l_have)
    a.e("s_mov_b64 exec, 1")
    a.e(f"ds_write_b32 v{V_FL}, v{V_NONCE} offset:32")
    a.e("s_mov_b64 exec, -1")
    a.e(f"s_branch {l_bj}")
    a.lab(l_n3)
    a.e("s_barrier")
    a.lab(l_bj)
    mk_srd(a, SRD_WS, S_WS, WS_END + 2048 * 64)
    a.e(f"v_lshlrev_b32 v{V_L16}, 4, v{V_LANE}")
    a.e(f"s_lshl_b32 s{S_T3}, s{S_W}, 2")
    a.e(f"s_add_u32 s{S_T3}, s{S_T3}, {L_FL}")
    a.e(f"v_mov_b32 v{V_PROG}, s{S_T3}")
    a.e(f"v_and_b32 v1, 31, v{V_LANE}")
    a.e(f"v_lshrrev_b32 v2, 5, v{V_LANE}")
    a.e(f"v_bfe_u32 v3, v{V_LANE}, 1, 3")
    a.e(f"v_xor_b32 v3, v3, v2")
    a.e(f"v_lshlrev_b32 v3, 4, v3")
    a.e(f"v_lshl_add_u32 v3, v1, 7, v3")
    a.e(f"s_lshl_b32 s{S_T3}, s{S_W}, 12")
    a.e(f"v_add_u32 v{V_XR}, s{S_T3}, v3")
    for c in range(1, 4):
        a.e(f"v_xor_b32 v{V_XR+c}, {32*c}, v{V_XR}")
    a.e(f"v_lshlrev_b32 v{V_BA}, 4, v2")
    a.e(f"v_add_u32 v{V_BA}, {L_BIAS}, v{V_BA}")
    a.e(f"v_and_b32 v3, 15, v{V_LANE}")
    a.e(f"v_bfe_u32 v4, v{V_LANE}, 4, 1")
    a.e(f"v_lshlrev_b32 v3, 4, v3")
    a.e(f"v_lshl_add_u32 v3, v4, 10, v3")
    a.e(f"v_lshl_add_u32 v{V_SO}, v2, 8, v3")
    a.e(f"v_bfe_u32 v3, v{V_LANE}, 2, 2")
    a.e(f"v_lshl_add_u32 v5, v2, 3, v3")
    a.e(f"v_lshlrev_b32 v5, 8, v5")
    a.e(f"v_lshl_add_u32 v5, v4, 5, v5")
    a.e(f"v_and_b32 v6, 3, v{V_LANE}")
    a.e(f"v_lshl_add_u32 v5, v6, 3, v5")
    for t in range(4):
        a.e(f"v_xor_b32 v6, {t}, v3")
        a.e(f"v_lshl_add_u32 v{V_TA+t}, v6, 6, v5")
    a.e(f"v_and_b32 v1, 15, v{V_LANE}")
    a.e(f"v_lshl_add_u32 v2, v4, 1, v2")
    a.e(f"v_lshrrev_b32 v3, 2, v1")
    a.e(f"v_lshlrev_b32 v4, 1, v3")
    a.e(f"v_mov_b32 v5, {P['FQ']}")
    a.e(f"v_lshrrev_b32 v4, v4, v5")
    a.e(f"v_and_b32 v4, 3, v4")
    a.e(f"v_xor_b32 v4, v4, v2")
    a.e(f"v_lshl_add_u32 v4, v1, 2, v4")
    a.e(f"v_lshlrev_b32 v4, 4, v4")
    a.e(f"v_add_u32 v4, 6144, v4")
    a.e(f"s_lshl_b32 s{S_T3}, s{S_W}, 10")
    a.e(f"s_add_u32 s{S_T3}, s{S_T3}, 2048")
    a.e(f"v_add_u32 v5, s{S_T3}, v{V_L16}")
    a.e(f"s_cmp_lt_u32 s{S_W}, 2")
    a.e(f"s_cselect_b64 vcc, -1, 0")
    a.e(f"v_cndmask_b32 v{V_PA}, v4, v5, vcc")
    a.e(f"v_cndmask_b32 v{V_QA}, v5, v4, vcc")
    a.e(f"s_lshr_b32 s{S_T3}, s{S_W}, 1")
    a.e(f"s_lshl_b32 s{S_RB}, s{S_M}, 1")
    a.e(f"s_add_u32 s{S_RB}, s{S_RB}, s{S_T3}")
    a.e(f"s_lshl_b32 s{S_T3}, s{S_RB}, 4")
    a.e(f"s_add_u32 s{S_T3}, s{S_T3}, s{S_J}")
    a.e(f"s_lshl_b32 s{S_T3}, s{S_T3}, 1")
    a.e(f"s_and_b32 s{S_T4}, s{S_W}, 1")
    a.e(f"s_add_u32 s{S_T3}, s{S_T3}, s{S_T4}")
    a.e(f"s_lshl_b32 s{S_T5}, s{S_T3}, 7")
    a.e(f"s_cmp_ge_u32 s{S_J}, 14")
    a.e(f"s_cbranch_scc1 L_p1_noa")

    xr_tok = {}
    xhi = [False]

    def x_read(p):
        sl = p % 4
        if (sl >= 2) != xhi[0]:
            xhi[0] = sl >= 2
            for c in range(4):
                a.e(f"v_xor_b32 v{V_XR+c}, 0x10000, v{V_XR+c}")
        for cp in range(4):
            ks, c = 2 * p + (cp >> 1), cp & 1
            if P["X2"] & 8:
                xr_tok[(c, ks)] = None
                continue
            a.e(f"ds_read_b128 {vr(X(c,ks),4)}, v{V_XR+cp} offset:{(sl&1)*SLOT}")
            xr_tok[(c, ks)] = lg.issue()

    def x_swap(ks, i):
        a.e(f"v_permlane16_swap_b32 v{X(0,ks)+i}, v{X(1,ks)+i}")

    a.e(f"s_mul_i32 s{S_T3}, s{S_RB}, 72")
    a.e(f"s_lshl_b32 s{S_T4}, s{S_J}, 2")
    a.e(f"s_add_u32 s{S_T3}, s{S_T3}, s{S_T4}")
    a.e(f"s_lshl_b32 s{S_T3}, s{S_T3}, 12")
    a.e(f"s_and_b32 s{S_T4}, s{S_W}, 1")
    a.e(f"s_lshl_b32 s{S_T4}, s{S_T4}, 11")
    a.e(f"s_add_u32 s{S_BASEA}, s{S_T3}, s{S_T4}")
    lds_wait_word(a, lg, V_FL, V_F, 36, 1)
    for t in range(4):
        for q in range(4):
            a.e(f"ds_read_b128 {vr(ACC(t)+4*q,4)}, v{V_BA} offset:{t*128+q*32}")
            btk = lg.issue()
    lg.wait(btk)

    LA = P["LA"]
    CHK = P["CHK"]
    NF = 112
    rtok = {}
    chk_done = set()
    chk_pre = {}
    hi = [False]

    def chk_issue(s):
        if s in chk_pre or s >= 14 or (P["X2"] & 2):
            return
        a.e(f"ds_read_b128 {vr(V_F,4)}, v{V_FL} offset:16")
        chk_pre[s] = lg.issue()

    def rd(n):
        ks, c, t = n // 8, (n % 8) // 4, n % 4
        if ks not in chk_done:
            chk_done.add(ks)
            if not (P["X2"] & 2):
              lds_wait_min4(a, lg, V_FL, V_F, 16, 0 if (P["EXP"] & 512) else 8 * (ks // 2) + (8 if ks % 2 else 6), chk_pre.get(ks))
            if ks % 2 == 0:
                x_read(ks // 2)
        sl = (ks // 2) % 4
        if n % 8 == 0 and (sl >= 2) != hi[0]:
            hi[0] = sl >= 2
            for tt in range(4):
                a.e(f"v_xor_b32 v{V_TA+tt}, 0x10000, v{V_TA+tt}")
        d = V_WR + (n % NR) * 4
        off = (sl & 1) * SLOT + 16384 + (ks & 1) * 8192 + c * 4096
        a.e(f"ds_read_b64_tr_b16 {vr(d,2)}, v{V_TA+t} offset:{off}")
        lg.issue()
        a.e(f"ds_read_b64_tr_b16 {vr(d+2,2)}, v{V_TA+t} offset:{off+1024}")
        rtok[n] = lg.issue()

    def epi(t):
        a.e(f"s_add_u32 s{S_T3}, s{S_BASEA}, {t*4096}")
        for u in range(2):
            e = V_E + ((2 * t + u) % 4) * 4
            for h in range(2):
                s = ACC(t) + 8 * u + 4 * h
                for i in range(4):
                    a.e(f"v_max_f32 v{V_T+i}, 0, v{s+i}")
                for i in range(4):
                    a.e(f"v_mul_f32 v{V_T+i}, v{V_T+i}, v{V_T+i}")
                a.e(f"v_cvt_pk_bf16_f32 v{e+2*h}, v{V_T}, v{V_T+1}")
                a.e(f"v_cvt_pk_bf16_f32 v{e+2*h+1}, v{V_T+2}, v{V_T+3}")
            a.e(f"buffer_store_dwordx4 {vr(e,4)}, v{V_SO}, {sr(SRD_WS,4)}, s{S_T3} offen offset:{u*512} sc1")
            vm.issue()

    for n in range(min(LA, NF)):
        rd(n)
    stamp(a, 1)
    for n in range(NF):
        ks, c, t = n // 8, (n % 8) // 4, n % 4
        for s in range(14):
            if s * 8 - LA - CHK == n:
                chk_issue(s)
        if n + LA < NF:
            rd(n + LA)
        if (P["EXP"] & 256) and n % 16 == 0 and ks > 0:
            stamp(a, 1 + ks // 2)
        lg.wait(rtok[n])
        lg.wait(xr_tok[(c, ks)])
        w = V_WR + (n % NR) * 4
        a.e(f"v_mfma_f32_32x32x16_bf16 {vr(ACC(t),16)}, {vr(w,4)}, {vr(X(c,ks),4)}, {vr(ACC(t),16)}")
        if ks > 0 and 2 <= n % 8 < 6 and not (P["X2"] & 1):
            x_swap(ks - 1, n % 8 - 2)
        if n % 16 == 15 and not (P["X2"] & 4):
            lds_signal(a, lg, V_PROG, V_SIG, ks // 2 + 1)
        if n == NF - 8:
            get_nonce(a, lg, V_FL, None, V_NONCE)
    if P["EXP"] & 256:
        stamp_flush(a, 8)
        a.e("s_endpgm")
    stamp(a, 2)
    a.e("s_nop 3")
    for t in range(4):
        epi(t)
    for i in range(4):
        x_swap(13, i)
    a.e(f"s_add_u32 s{S_T3}, s{S_T5}, {WS_FA}")
    vm.drain()
    flag_store(a, vm, V_NONCE, V_ZERO, S_T3)
    stamp(a, 3)
    a.e("s_branch L_p1_b")
    a.lab("L_p1_noa")
    if P["EXP"] & 1024:
        a.e("s_endpgm")
    lg = Cnt(a, "lgkmcnt", 15)
    xhi[0] = False
    for p in range(7):
        lds_wait_min4(a, lg, V_FL, V_F, 16, 8 * p + 4)
        x_read(p)
        lg.drain()
        lds_signal(a, lg, V_PROG, V_SIG, p + 1)
        for ks in (2 * p, 2 * p + 1):
            for i in range(4):
                x_swap(ks, i)
    get_nonce(a, lg, V_FL, None, V_NONCE)
    if P["EXP"] & 256:
        a.e("s_endpgm")
    stamp(a, 1); stamp(a, 2); stamp(a, 3)
    a.lab("L_p1_b")


def gen_p1_stage_b(a, P):
    vm = Cnt(a, "vmcnt", 63)
    lg = Cnt(a, "lgkmcnt", 15)
    V_LANE = 0
    V_T = 1
    V_FL = 12
    V_PROG = 13
    V_L16 = 14
    V_ZERO = 15
    V_SBA = 16
    V_F = 24
    V_NONCE = 28
    V_SIG = 29
    V_PA, V_QA = 30, 31
    V_X = 32
    V_ACC = 144
    V_HALO = 192
    V_WR = 196
    V_M = 236
    NR = 10

    def X(T, ks):
        return V_X + (T * 14 + ks) * 4

    def ACC(T, c):
        return V_ACC + (T * 6 + c) * 4

    a.c("==== P1 stage B ====")
    if P["EXP"] & 1:
        for i in range(4, 8):
            stamp(a, i)
        stamp_flush(a, 8)
        a.e("s_endpgm")
    a.e("s_waitcnt lgkmcnt(0)")
    bases = {0: 0, 1: 65536}

    def reg_off(ks):
        ad = sb_addr(ks)
        return ad >> 16, ad & 0xffff
    for k, bv in bases.items():
        a.e(f"v_add_u32 v{V_SBA+k}, {bv}, v{V_L16}")
        a.e(f"v_add_u32 v{V_SBA+3+k}, {bv}, v{V_PA}")
        a.e(f"v_add_u32 v{V_M+17+k}, {bv}, v{V_QA}")
    VQ = V_M + 17
    V_MC = V_M
    V_MP = V_M + 4
    V_MP0 = V_M + 8
    a.e(f"v_and_b32 v1, 15, v{V_LANE}")
    a.e(f"v_lshrrev_b32 v2, 4, v{V_LANE}")
    a.e(f"v_lshlrev_b32 v2, 2, v2")
    a.e(f"v_sub_u32 v3, v1, v2")
    a.e(f"v_mov_b32 v4, 0xf149f2ca")
    a.e(f"s_or_b32 s{S_T3}, s{S_M}, s{S_W}")
    for e in range(4):
        a.e(f"v_subrev_u32 v5, {e}, v3")
        a.e(f"v_and_b32 v6, 0x80000001, v5")
        a.e(f"v_cmp_eq_u32 vcc, 0, v6")
        a.e("s_nop 1")
        a.e(f"v_cndmask_b32 v{V_MC+e}, v4, 0, vcc")
        a.e(f"v_sub_u32 v6, -2, v5")
        a.e(f"v_and_b32 v6, 0x80000001, v6")
        a.e(f"v_cmp_eq_u32 vcc, 0, v6")
        a.e("s_nop 1")
        a.e(f"v_cndmask_b32 v{V_MP+e}, v4, 0, vcc")
    a.e(f"s_cmp_eq_u32 s{S_T3}, 0")
    a.e(f"s_cselect_b64 vcc, -1, 0")
    for e in range(4):
        a.e(f"v_cndmask_b32 v{V_MP0+e}, v{V_MP+e}, v4, vcc")

    LA = P["LAB"]
    NFK = 8
    NF = 14 * NFK
    rtok = {}
    chk = set()
    pre = {}

    def rd(n):
        ks, c = divmod(n, NFK)
        if ks not in chk:
            chk.add(ks)
            lds_wait_min4(a, lg, V_FL, V_F, 16, 56 + 2 * (ks + 1), pre.get(ks))
        if c == 4 and ks + 1 < 14:
            a.e(f"ds_read_b128 {vr(V_F,4)}, {vr(V_FL)} offset:16")
            pre[ks + 1] = lg.issue()
        k, off = reg_off(ks)
        d = V_WR + (n % NR) * 4
        if c < 6:
            a.e(f"ds_read_b128 {vr(d,4)}, v{V_SBA+k} offset:{off + c*1024}")
        elif c == 6:
            a.e(f"ds_read_b128 {vr(d,4)}, v{V_SBA+3+k} offset:{off}")
        else:
            a.e(f"ds_read_b128 {vr(d,4)}, v{VQ+k} offset:{off}")
        rtok[n] = lg.issue()

    for n in range(LA):
        rd(n)
    stamp(a, 4)
    for n in range(NF):
        ks, c = divmod(n, NFK)
        if n + LA < NF:
            rd(n + LA)
        w = V_WR + (n % NR) * 4
        if c < 6:
            lg.wait(rtok[n])
            for T in range(2):
                C = None if ks == 0 else ACC(T, c)
                if c < 4:
                    mfma(a, ACC(T, c), w, X(T, ks), C)
                else:
                    mfma(a, ACC(T, c), X(T, ks), w, C)
        elif c == 7:
            lg.wait(rtok[n])
            wp = V_WR + ((n - 1) % NR) * 4
            mfma(a, V_HALO, wp, w, None if ks == 0 else V_HALO)

    a.c("---- attention ----")
    stamp(a, 5)
    R = V_X
    QF = [R, R + 4]
    KF = [R + 8, R + 12]
    KP = R + 16
    VV = [R + 20, R + 26]
    VPX = R + 32
    HX = R + 36
    VT1 = R + 40
    SC = [R + 44, R + 48]
    SP = [R + 52, R + 56]
    PF = [R + 60, R + 64]
    OO = [[R + 68, R + 72], [R + 76, R + 80]]
    OP = [R + 84, R + 88]
    TM = R + 92
    ZG = [R + 104, R + 105]
    GO = R + 106
    V_EXW, V_EXH, V_EXR = R + 108, R + 109, R + 110
    a.e(f"s_lshl_b32 s{S_T3}, s{S_W}, 11")
    a.e(f"s_add_u32 s{S_T3}, s{S_T3}, {L_XB}")
    a.e(f"v_add_u32 v{V_EXR}, s{S_T3}, v{V_L16}")
    a.e(f"v_add_u32 v{V_EXW}, 2048, v{V_EXR}")
    a.e(f"s_lshr_b32 s{S_T3}, s{S_W}, 1")
    a.e(f"s_lshl_b32 s{S_T3}, s{S_T3}, 10")
    a.e(f"s_and_b32 s{S_T4}, s{S_W}, 1")
    a.e(f"s_lshl_b32 s{S_T4}, s{S_T4}, 3")
    a.e(f"s_add_u32 s{S_T3}, s{S_T3}, s{S_T4}")
    a.e(f"s_add_u32 s{S_T3}, s{S_T3}, {L_XB}")
    a.e(f"v_add_u32 v{V_EXH}, s{S_T3}, v{V_L16}")
    a.e("s_nop 7")

    def pk(d, s):
        a.e(f"v_cvt_pk_bf16_f32 v{d}, v{s}, v{s+1}")
        a.e(f"v_cvt_pk_bf16_f32 v{d+1}, v{s+2}, v{s+3}")

    pk(KF[1], ACC(1, 2)); pk(KF[1] + 2, ACC(1, 3))
    pk(VT1, ACC(1, 4)); pk(VT1 + 2, ACC(1, 5))
    pk(HX, V_HALO)
    skip = a.newlab("Lnoex")
    a.e(f"s_cmp_eq_u32 s{S_W}, 3")
    a.e(f"s_cbranch_scc1 {skip}")
    a.e(f"ds_write_b128 v{V_EXW}, {vr(KF[1],4)}")
    a.e(f"ds_write_b128 v{V_EXW}, {vr(VT1,4)} offset:1024")
    a.lab(skip)
    a.e(f"ds_write_b64 v{V_EXH}, {vr(HX,2)}")
    a.e("s_waitcnt lgkmcnt(0)")
    lg.mark_drained()
    lds_signal(a, lg, V_PROG, V_SIG, 8)
    pk(QF[0], ACC(0, 0)); pk(QF[0] + 2, ACC(0, 1))
    pk(QF[1], ACC(1, 0)); pk(QF[1] + 2, ACC(1, 1))
    pk(KF[0], ACC(0, 2)); pk(KF[0] + 2, ACC(0, 3))
    for dt in range(2):
        pk(VV[dt] + 2, ACC(0, 4 + dt))
        a.e(f"v_mov_b32 v{VV[dt]+4}, v{VT1+2*dt}")
        a.e(f"v_mov_b32 v{VV[dt]+5}, v{VT1+2*dt+1}")
    a.e("s_nop 1")
    mfma(a, SC[1], KF[1], QF[1], None)
    mfma(a, SP[1], KF[0], QF[1], None)
    mfma(a, SC[0], KF[0], QF[0], None)
    for T in range(2):
        z = ACC(T, 1)
        a.e(f"v_mov_b32 v{TM}, v{z}")
        a.e(f"v_mov_b32 v{TM+1}, v{z}")
        a.e("s_nop 1")
        a.e(f"v_permlane32_swap_b32 v{TM}, v{TM+1}")
        a.e("s_nop 1")
        a.e(f"v_mov_b32 v{TM}, v{TM+1}")
        a.e("s_nop 1")
        a.e(f"v_permlane16_swap_b32 v{TM}, v{TM+1}")
        a.e("s_nop 1")
        a.e(f"v_mul_f32 v{TM+1}, 0xbfb8aa3b, v{TM+1}")
        a.e(f"v_exp_f32 v{TM+1}, v{TM+1}")
        a.e("s_nop 0")
        a.e(f"v_add_f32 v{TM+1}, 1.0, v{TM+1}")
        a.e(f"v_rcp_f32 v{ZG[T]}, v{TM+1}")
        a.e("s_nop 0")
        a.e(f"v_sub_f32 v{GO+T}, 1.0, v{ZG[T]}")
    CL = (28 ** -0.5) * 1.4426950408889634
    import struct
    clbits = struct.unpack("<I", struct.pack("<f", CL))[0]
    a.e(f"s_mov_b32 s{S_T3}, 0x{clbits:08x}")

    def xreduce(op, x):
        a.e(f"v_mov_b32 v{TM+8}, v{x}")
        a.e("s_nop 1")
        a.e(f"v_permlane32_swap_b32 v{x}, v{TM+8}")
        a.e("s_nop 1")
        a.e(f"{op} v{x}, v{x}, v{TM+8}")
        a.e(f"v_mov_b32 v{TM+8}, v{x}")
        a.e("s_nop 1")
        a.e(f"v_permlane16_swap_b32 v{x}, v{TM+8}")
        a.e("s_nop 1")
        a.e(f"{op} v{x}, v{x}, v{TM+8}")

    def softmax_pv(T):
        mp = V_MP if T == 1 else V_MP0
        for e in range(4):
            a.e(f"v_fma_f32 v{SP[T]+e}, v{SP[T]+e}, s{S_T3}, v{mp+e}")
            a.e(f"v_fma_f32 v{SC[T]+e}, v{SC[T]+e}, s{S_T3}, v{V_MC+e}")
        m = TM + 9
        a.e(f"v_max3_f32 v{m}, v{SP[T]}, v{SP[T]+1}, v{SP[T]+2}")
        a.e(f"v_max3_f32 v{m}, v{m}, v{SP[T]+3}, v{SC[T]}")
        a.e(f"v_max3_f32 v{m}, v{m}, v{SC[T]+1}, v{SC[T]+2}")
        a.e(f"v_max_f32 v{m}, v{m}, v{SC[T]+3}")
        xreduce("v_max_f32", m)
        for e in range(4):
            a.e(f"v_sub_f32 v{SP[T]+e}, v{SP[T]+e}, v{m}")
            a.e(f"v_sub_f32 v{SC[T]+e}, v{SC[T]+e}, v{m}")
        for e in range(4):
            a.e(f"v_exp_f32 v{SP[T]+e}, v{SP[T]+e}")
            a.e(f"v_exp_f32 v{SC[T]+e}, v{SC[T]+e}")
        a.e("s_nop 0")
        pk(PF[T], SP[T]); pk(PF[T] + 2, SC[T])
        s = TM + 10
        a.e(f"v_add_f32 v{s}, v{SP[T]}, v{SP[T]+1}")
        a.e(f"v_add_f32 v{s}, v{s}, v{SP[T]+2}")
        for dt in range(2):
            mfma(a, OO[T][dt], VV[dt] + 2 * T, PF[T], None)
        a.e(f"v_add_f32 v{s}, v{s}, v{SP[T]+3}")
        for e in range(4):
            a.e(f"v_add_f32 v{s}, v{s}, v{SC[T]+e}")
        xreduce("v_add_f32", s)
        a.e(f"v_rcp_f32 v{s}, v{s}")
        a.e("s_nop 0")
        a.e(f"v_mul_f32 v{s}, v{s}, v{ZG[T]}")
        for dt in range(2):
            for e in range(4):
                a.e(f"v_mul_f32 v{OO[T][dt]+e}, v{OO[T][dt]+e}, v{s}")
        pk(OP[T], OO[T][0]); pk(OP[T] + 2, OO[T][1])
        a.e(f"buffer_store_dwordx4 {vr(OP[T],4)}, v{V_L16}, {sr(SRD_WS,4)}, s{S_T4} offen offset:{T*1024} sc1")
        vm.issue()

    a.e(f"s_mul_i32 s{S_T4}, s{S_RB}, 72")
    a.e(f"s_add_u32 s{S_T4}, s{S_T4}, s{S_J}")
    a.e(f"s_add_u32 s{S_T4}, s{S_T4}, 56")
    a.e(f"s_lshl_b32 s{S_T4}, s{S_T4}, 12")
    a.e(f"s_and_b32 s{S_T0}, s{S_W}, 1")
    a.e(f"s_lshl_b32 s{S_T1}, s{S_T0}, 11")
    a.e(f"s_add_u32 s{S_T4}, s{S_T4}, s{S_T1}")
    softmax_pv(1)
    a.e(f"s_lshl_b32 s{S_T1}, s{S_J}, 5")
    a.e(f"s_add_u32 s{S_T1}, s{S_T1}, s{S_RB}")
    a.e(f"s_lshl_b32 s{S_T1}, s{S_T1}, 8")
    a.e(f"s_lshl_b32 s{S_T0}, s{S_T0}, 3")
    a.e(f"s_add_u32 s{S_T1}, s{S_T1}, s{S_T0}")
    a.e(f"s_add_u32 s{S_T1}, s{S_T1}, {WS_G}")
    a.e("s_mov_b64 exec, 0xffff")
    a.e(f"buffer_store_dwordx2 {vr(GO,2)}, v{V_L16}, {sr(SRD_WS,4)}, s{S_T1} offen sc1")
    vm.issue()
    a.e("s_mov_b64 exec, -1")
    lds_wait_min4(a, lg, V_FL, V_F, 0, 8)
    a.e(f"ds_read_b128 {vr(KP,4)}, v{V_EXR}")
    a.e(f"ds_read_b128 {vr(VPX,4)}, v{V_EXR} offset:1024")
    a.e("s_waitcnt lgkmcnt(0)")
    lg.issue(); lg.issue(); lg.mark_drained()
    lds_signal(a, lg, V_PROG, V_SIG, 9)
    mfma(a, SP[0], KP, QF[0], None)
    for dt in range(2):
        a.e(f"v_mov_b32 v{VV[dt]}, v{VPX+2*dt}")
        a.e(f"v_mov_b32 v{VV[dt]+1}, v{VPX+2*dt+1}")
    a.e("s_nop 4")
    softmax_pv(0)
    a.e(f"s_add_u32 s{S_T3}, s{S_T5}, {WS_FB}")
    stamp(a, 6)
    vm.drain()
    flag_store(a, vm, V_NONCE, V_ZERO, S_T3)
    stamp(a, 7)
    stamp_flush(a, 8)
    a.e("s_endpgm")


def gen_p2(a, P):
    vm = Cnt(a, "vmcnt", 63)
    lg = Cnt(a, "lgkmcnt", 15)
    V_LANE = 0
    V_T = 1
    V_L16 = 10
    V_ZERO = 11
    V_FL = 12
    V_NONCE = 13
    V_SIG = 14
    V_BF = 15
    V_F = 16
    V_P0, V_P1 = 20, 21
    V_PO0, V_PO1 = 22, 23
    V_G = 24
    V_HO = 28
    V_ACC = 32
    V_POOL = 96
    NSLOT = 10
    R = V_POOL

    def ACC(ct, rt):
        return V_ACC + (ct * 4 + rt) * 4

    a.c("==== P2 program ====")
    V_XO, V_WO, V_BO = 29, 30, 31
    SRD_L = SRD_O
    S_EXM = 74
    S_XS, S_W0, S_W1s = 76, 77, 78
    S_BA, S_BB, S_BSTEP = 76, 77, 78
    mk_srd(a, SRD_X, S_X, 2048 * 896)
    a.e(f"s_lshl_b32 s{S_T0}, s{S_M}, 7")
    a.e(f"s_lshl_b32 s{S_T1}, s{S_W}, 5")
    a.e(f"s_add_u32 s{S_T0}, s{S_T0}, s{S_T1}")
    a.e(f"v_lshrrev_b32 v1, 3, v{V_LANE}")
    a.e(f"v_add_u32 v1, s{S_T0}, v1")
    a.e(f"v_mul_u32_u24 v1, 896, v1")
    a.e(f"v_and_b32 v2, 7, v{V_LANE}")
    a.e(f"v_lshrrev_b32 v3, 4, v{V_LANE}")
    a.e(f"v_xor_b32 v2, v2, v3")
    a.e(f"v_lshl_add_u32 v{V_XO}, v2, 4, v1")
    a.e(f"v_xor_b32 v{V_BO}, 64, v{V_XO}")
    mk_srd(a, SRD_A, S_W1, 448 * 3584)
    a.e(f"s_cmp_ge_u32 s{S_J}, 14")
    a.e(f"s_cselect_b32 s{SRD_A+2}, 0, s{SRD_A+2}")
    a.e(f"v_bfe_u32 v6, v{V_LANE}, 2, 2")
    a.e(f"v_xor_b32 v6, v6, v3")
    a.e(f"v_and_b32 v7, 3, v{V_LANE}")
    a.e(f"v_lshl_add_u32 v6, v6, 2, v7")
    a.e(f"s_lshl_b32 s{S_T3}, s{S_W}, 3")
    a.e(f"v_add_u32 v4, s{S_T3}, v3")
    a.e(f"v_mul_u32_u24 v4, 3584, v4")
    a.e(f"v_lshl_add_u32 v4, v6, 4, v4")
    a.e(f"s_lshl_b32 s{S_T3}, s{S_J}, 8")
    a.e(f"v_add_u32 v{V_WO}, s{S_T3}, v4")
    S_LX, S_LW = 78, 79
    a.e(f"s_lshl_b32 s{S_LX}, s{S_W}, 12")
    a.e(f"s_lshl_b32 s{S_LW}, s{S_W}, 11")
    mk_srd(a, SRD_WS, S_WS, WS_END + 2048 * 64)
    a.e(f"v_lshlrev_b32 v{V_L16}, 4, v{V_LANE}")
    a.e(f"v_mov_b32 v{V_ZERO}, 0")
    a.e(f"v_mov_b32 v{V_FL}, {L_FL}")
    a.e(f"s_lshl_b32 s{S_T0}, s{S_W}, 2")
    a.e(f"s_add_u32 s{S_T0}, s{S_T0}, {L_FL+16}")
    a.e(f"v_mov_b32 v{V_BF}, s{S_T0}")
    a.e(f"v_lshrrev_b32 v1, 4, v{V_LANE}")
    a.e(f"v_bfe_u32 v2, v{V_LANE}, 2, 2")
    a.e(f"v_and_b32 v3, 3, v{V_LANE}")
    SRD_R = SRD_B
    SRD_RS = SRD_O
    S_RST, S_RST2 = 74, 75
    l_wq, l_n, l_adone = a.newlab("Lldwq"), a.newlab("Lldn"), a.newlab("Lldadone")
    if P["EXP"] & 1024:
        a.e("s_barrier")
        a.e("s_endpgm")
    a.e(f"s_cmp_eq_u32 s{S_W}, 0")
    a.e(f"s_cbranch_scc1 {l_wq}")
    a.e(f"s_cmp_eq_u32 s{S_W}, 3")
    a.e(f"s_cbranch_scc1 {l_n}")

    def rp_srd_store(valid_scc):
        a.e(f"s_mov_b32 s{SRD_RS}, s{SRD_WS}")
        a.e(f"s_mov_b32 s{SRD_RS+1}, s{SRD_WS+1}")
        a.e(f"s_cselect_b32 s{SRD_RS+2}, s{SRD_WS+2}, 0")
        a.e(f"s_mov_b32 s{SRD_RS+3}, 0x00020000")

    def w2_loads(vm):
        a.e(f"s_lshl_b32 s{S_T0}, s2, 1")
        a.e(f"s_add_u32 s{S_T0}, s{S_T0}, s{S_W}")
        a.e(f"s_sub_u32 s{S_T0}, s{S_T0}, 1")
        a.e(f"s_cmp_lt_u32 s{S_T0}, 504")
        rp_srd_store(True)
        a.e(f"s_min_u32 s{S_T0}, s{S_T0}, 503")
        a.e(f"s_mul_i32 s{S_T1}, s{S_T0}, 911")
        a.e(f"s_lshr_b32 s{S_T1}, s{S_T1}, 16")
        a.e(f"s_mul_i32 s{S_T2}, s{S_T1}, 72")
        a.e(f"s_sub_u32 s{S_T2}, s{S_T0}, s{S_T2}")
        a.e(f"s_cmp_lt_u32 s{S_T2}, 56")
        a.e(f"s_cselect_b32 s{SRD_R}, s{S_W2}, s{S_WO}")
        a.e(f"s_cselect_b32 s{SRD_R+1}, s{S_W2+1}, s{S_WO+1}")
        a.e(f"s_mov_b32 s{S_T3}, {1792*896}")
        a.e(f"s_mov_b32 s{S_T4}, {448*896}")
        a.e(f"s_cselect_b32 s{SRD_R+2}, s{S_T3}, s{S_T4}")
        a.e(f"s_mov_b32 s{SRD_R+3}, 0x00020000")
        a.e(f"s_cselect_b64 vcc, 0, -1")
        a.e(f"s_lshl_b32 s{S_T3}, s{S_T2}, 5")
        a.e(f"s_sub_u32 s{S_T4}, s{S_T2}, 56")
        a.e(f"s_mul_i32 s{S_T4}, s{S_T4}, 28")
        a.e(f"s_cmp_lt_u32 s{S_T2}, 56")
        a.e(f"s_cselect_b32 s{S_T3}, s{S_T3}, s{S_T4}")
        a.e(f"s_and_b32 s{SRD_R+1}, s{SRD_R+1}, 0xffff")
        a.e(f"s_mul_i32 s{S_T3}, s{S_T3}, 896")
        a.e(f"s_lshl_b32 s{S_T4}, s{S_T1}, 7")
        a.e(f"s_add_u32 s{S_T3}, s{S_T3}, s{S_T4}")
        a.e(f"v_and_b32 v4, 1, v1")
        a.e(f"v_lshrrev_b32 v5, 1, v1")
        a.e(f"v_lshlrev_b32 v4, 2, v4")
        a.e(f"v_lshl_add_u32 v4, v5, 4, v4")
        a.e(f"v_lshlrev_b32 v5, 2, v1")
        a.e(f"v_cndmask_b32 v8, v4, v5, vcc")
        a.e(f"v_mov_b32 v4, 1024")
        a.e(f"v_mov_b32 v5, 2048")
        a.e(f"v_cndmask_b32 v9, v4, v5, vcc")
        a.e(f"v_lshrrev_b32 v4, 3, v{V_LANE}")
        a.e(f"v_mul_u32_u24 v4, 896, v4")
        a.e(f"v_and_b32 v5, 7, v{V_LANE}")
        a.e(f"v_lshl_add_u32 v4, v5, 4, v4")
        a.e(f"s_mov_b32 vcc_lo, 0")
        a.e(f"v_mov_b32 v5, 0x40000000")
        a.e("s_nop 1")
        a.e(f"v_cndmask_b32 v5, v4, v5, vcc")
        a.e(f"s_lshl_b32 s{S_T4}, s{S_W}, 12")
        a.e(f"s_add_u32 m0, s{S_T4}, {L_RP + 6144 - 4096}")
        a.e("s_nop 0")
        for i in range(4):
            vo = 5 if i == 3 else 4
            a.e(f"buffer_load_dwordx4 v{vo}, {sr(SRD_R,4)}, s{S_T3} offen offset:{i*1024} lds")
            vm.issue()
            if i < 3:
                a.e(f"s_add_u32 s{S_T3}, s{S_T3}, {8*896-1024}")
        a.e(f"v_add_u32 v8, v8, v2")
        a.e(f"v_lshlrev_b32 v8, 7, v8")
        a.e(f"v_lshl_add_u32 v8, v3, 3, v8")
        a.e(f"v_add_u32 v8, m0, v8")
        a.e(f"v_add_u32 v9, v8, v9")
        a.e(f"s_mul_i32 s{S_T3}, s{S_T2}, 4682")
        a.e(f"s_lshr_b32 s{S_T3}, s{S_T3}, 16")
        a.e(f"s_mul_i32 s{S_T4}, s{S_T3}, 14")
        a.e(f"s_sub_u32 s{S_T4}, s{S_T2}, s{S_T4}")
        a.e(f"s_sub_u32 s{S_T5}, s{S_T2}, 56")
        a.e(f"s_lshr_b32 s{S_SO0}, s{S_T5}, 2")
        a.e(f"s_and_b32 s{S_T5}, s{S_T5}, 3")
        a.e(f"s_add_u32 s{S_T5}, s{S_T5}, 14")
        a.e(f"s_cmp_lt_u32 s{S_T2}, 56")
        a.e(f"s_cselect_b32 s{S_T3}, s{S_T3}, s{S_SO0}")
        a.e(f"s_cselect_b32 s{S_T4}, s{S_T4}, s{S_T5}")
        a.e(f"s_lshl_b32 s{S_T1}, s{S_T1}, 2")
        a.e(f"s_add_u32 s{S_T1}, s{S_T1}, s{S_T3}")
        a.e(f"s_lshl_b32 s{S_T1}, s{S_T1}, 7")
        a.e(f"s_lshl_b32 s{S_T4}, s{S_T4}, 2")
        a.e(f"s_add_u32 s{S_T1}, s{S_T1}, s{S_T4}")
        a.e(f"s_add_u32 s{S_RPF}, s{S_T1}, {WS_FW2}")
        a.e(f"s_lshl_b32 s{S_RST}, s{S_T0}, 12")
        a.e(f"s_add_u32 s{S_RST}, s{S_RST}, {WS_W2R}")

    def w2_proc(vm, lg):
        toks = []
        for ct in range(4):
            a.e(f"ds_read_b64_tr_b16 {vr(R+ct*4,2)}, v8 offset:{ct*32}")
            lg.issue()
            a.e(f"ds_read_b64_tr_b16 {vr(R+ct*4+2,2)}, v9 offset:{ct*32}")
            toks.append(lg.issue())
        for ct in range(4):
            lg.wait(toks[ct])
            a.e(f"buffer_store_dwordx4 {vr(R+ct*4,4)}, v{V_L16}, {sr(SRD_RS,4)}, s{S_RST} offen offset:{ct*1024} sc1")
            t = vm.issue()
        return t

    def wq_loads(vm):
        a.e(f"s_cmp_lt_u32 s2, 224")
        rp_srd_store(True)
        mk_srd(a, SRD_R, S_WQKV, 448 * 2688)
        a.e(f"s_min_u32 s{S_T5}, s2, 223")
        a.e(f"s_mul_i32 s{S_T0}, s{S_T5}, 4682")
        a.e(f"s_lshr_b32 s{S_T0}, s{S_T0}, 16")
        a.e(f"s_mul_i32 s{S_T1}, s{S_T0}, 14")
        a.e(f"s_sub_u32 s{S_T1}, s{S_T5}, s{S_T1}")
        a.e(f"v_lshrrev_b32 v4, 2, v{V_LANE}")
        a.e(f"v_mul_u32_u24 v5, 2688, v4")
        a.e(f"v_lshl_add_u32 v5, v3, 4, v5")
        a.e(f"s_mul_i32 s{S_T2}, s{S_T1}, {32*2688}")
        a.e(f"s_mul_i32 s{S_T3}, s{S_T0}, 56")
        a.e(f"s_add_u32 s{S_T2}, s{S_T2}, s{S_T3}")
        a.e(f"s_add_u32 s{S_T3}, s{S_T2}, {16*2688}")
        for i in range(6):
            seg, hf = i >> 1, i & 1
            so = S_T3 if hf else S_T2
            a.e(f"buffer_load_dwordx4 {vr(R+i*4,4)}, v5, {sr(SRD_R,4)}, s{so} offen offset:{seg*896}")
            vm.issue()
        a.e(f"s_lshl_b32 s{S_T4}, s{S_T1}, 6")
        a.e(f"v_lshl_add_u32 v6, v4, 1, s{S_T4}")
        a.e(f"global_load_ushort v{R+48}, v6, {sr(S_GATE,2)}")
        vm.issue()
        a.e(f"global_load_ushort v{R+49}, v6, {sr(S_GATE,2)} offset:32")
        vm.issue()
        a.e(f"v_mul_u32_u24 v8, 192, v4")
        a.e(f"v_lshl_add_u32 v8, v3, 4, v8")
        a.e(f"v_add_u32 v8, {L_RP}, v8")
        a.e(f"v_and_b32 v4, 1, v1")
        a.e(f"v_lshrrev_b32 v5, 1, v1")
        a.e(f"v_lshl_add_u32 v4, v4, 1, v5")
        a.e(f"v_lshl_add_u32 v9, v4, 3, v2")
        a.e(f"v_mul_u32_u24 v9, 192, v9")
        a.e(f"v_lshl_add_u32 v9, v3, 3, v9")
        a.e(f"v_add_u32 v9, {L_RP}, v9")
        a.e(f"s_lshl_b32 s{S_T0}, s{S_T0}, 7")
        a.e(f"s_lshl_b32 s{S_T1}, s{S_T1}, 2")
        a.e(f"s_add_u32 s{S_T0}, s{S_T0}, s{S_T1}")
        a.e(f"s_add_u32 s{S_RPF}, s{S_T0}, {WS_FWQ}")
        a.e(f"s_mul_i32 s{S_RST}, s{S_T5}, 6144")
        a.e(f"s_add_u32 s{S_RST}, s{S_RST}, {WS_WQR}")
        a.e(f"s_add_u32 s{S_RST2}, s{S_RST}, 4096")

    def wq_proc(vm, lg):
        a.e(f"v_cmp_eq_u32 vcc, 3, v3")
        a.e("s_nop 1")
        for i in range(6):
            seg, hf = i >> 1, i & 1
            if seg == 0:
                a.e(f"v_cndmask_b32 v{R+i*4+2}, v{R+i*4+2}, v{R+48+hf}, vcc")
            else:
                a.e(f"v_cndmask_b32 v{R+i*4+2}, v{R+i*4+2}, v{V_ZERO}, vcc")
            a.e(f"v_cndmask_b32 v{R+i*4+3}, v{R+i*4+3}, v{V_ZERO}, vcc")
            a.e(f"ds_write_b128 v8, {vr(R+i*4,4)} offset:{hf*3072+seg*64}")
            lg.issue()
        Q = R + 24
        toks = []
        for c6 in range(6):
            for hh in range(2):
                a.e(f"ds_read_b64_tr_b16 {vr(Q+c6*4+hh*2,2)}, v9 offset:{hh*768+c6*32}")
                tk = lg.issue()
            toks.append(tk)
        for c6 in range(6):
            so = S_RST if c6 < 4 else S_RST2
            lg.wait(toks[c6])
            a.e(f"buffer_store_dwordx4 {vr(Q+c6*4,4)}, v{V_L16}, {sr(SRD_RS,4)}, s{so} offen offset:{(c6%4)*1024} sc1")
            t = vm.issue()
        return t

    def loader_a(rtype):
        vm = Cnt(a, "vmcnt", 63)
        lg = Cnt(a, "lgkmcnt", 15)
        tok = {}
        sig = [0]

        def issue_pair(p, pg):
            sl = p % 4
            a.e(f"s_add_u32 m0, s{S_LX}, {sl*SLOT}")
            for i in range(4):
                a.e(f"s_mov_b32 s{S_SO0}, {(0 if P['EXP'] & 4 else p*128) + i*(8*896-1024)}")
                vo = V_BO if i & 1 else V_XO
                a.e(f"buffer_load_dwordx4 v{vo}, {sr(SRD_X,4)}, s{S_SO0} offen offset:{i*1024} lds")
                vm.issue()
                if pg and i % 2 == 1:
                    pg.publish()
            for h in range(2):
                ks = 2 * p + h
                a.e(f"s_add_u32 m0, s{S_LW}, {sl*SLOT + 16384 + h*8192}")
                for i in range(2):
                    a.e(f"s_mov_b32 s{S_SO0}, {((0 if P['EXP'] & 8 else 32*ks) + 4*i)*3584 - i*1024}")
                    a.e(f"buffer_load_dwordx4 v{V_WO}, {sr(SRD_A,4)}, s{S_SO0} offen offset:{i*1024} lds")
                    tok[ks] = vm.issue()
                if pg:
                    pg.publish()

        pg = Prog(a, vm, lg, V_BF, V_SIG)
        RPA = P["RPA"]
        rl_tok = 0
        for p in range(4):
            if p == RPA:
                pos = vm.n
                if rtype == "wq":
                    wq_loads(vm)
                elif rtype == "w2":
                    w2_loads(vm)
                pg.note_extra(pos)
                rl_tok = vm.n
            issue_pair(p, pg if p > 0 else None)
            if p == 0:
                a.e("s_barrier")
        st_tok = None
        if rtype != "n":
            pg.wait_tok(rl_tok)
            pos = vm.n
            st_tok = wq_proc(vm, lg) if rtype == "wq" else w2_proc(vm, lg)
            pg.note_extra(pos)
        for p in range(4, 7):
            pg.wait_prog(V_FL, V_F, p - 3)
            issue_pair(p, pg)
            if p == P["RPF"] and st_tok is not None:
                get_nonce(a, lg, V_FL, None, V_NONCE)
                pg.wait_tok(st_tok)
                pos = vm.n
                a.e("s_mov_b64 exec, 1")
                a.e(f"buffer_store_dword {vr(V_NONCE)}, {vr(V_ZERO)}, {sr(SRD_RS,4)}, s{S_RPF} offen sc1")
                vm.issue()
                a.e("s_mov_b64 exec, -1")
                pg.note_extra(pos)
        pg.wait_tok(tok[13])
        pg.publish()

    loader_a("w2")
    a.e(f"s_branch {l_adone}")
    a.lab(l_wq)
    loader_a("wq")
    a.e(f"s_branch {l_adone}")
    a.lab(l_n)
    loader_a("n")

    def stage_b_setup():
        a.e(f"s_and_b32 s{S_RB}, s{S_IDX}, 3")
        a.e(f"s_lshl_b32 s{S_T0}, s{S_XCD}, 2")
        a.e(f"s_add_u32 s{S_RB}, s{S_RB}, s{S_T0}")
        a.e(f"s_lshr_b32 s{S_NT}, s{S_IDX}, 2")
        a.e(f"v_and_b32 v3, 3, v{V_LANE}")
        a.e(f"v_lshrrev_b32 v4, 2, v{V_LANE}")
        a.e(f"v_lshrrev_b32 v5, 4, v{V_LANE}")
        a.e(f"v_lshlrev_b32 v5, 1, v5")
        a.e(f"v_mov_b32 v6, {P['FQ']}")
        a.e(f"v_lshrrev_b32 v5, v5, v6")
        a.e(f"v_and_b32 v5, 3, v5")
        a.e(f"v_xor_b32 v5, v5, v3")
        a.e(f"s_lshl_b32 s{S_T0}, s{S_M}, 7")
        a.e(f"s_sub_u32 s{S_T0}, s{S_T0}, 16")
        a.e(f"s_max_i32 s{S_T0}, s{S_T0}, 0")
        a.e(f"v_add_u32 v4, s{S_T0}, v4")
        a.e(f"v_mul_u32_u24 v4, 896, v4")
        a.e(f"v_lshl_add_u32 v4, v5, 4, v4")
        a.e(f"v_mov_b32 v5, 0x40000000")
        a.e(f"s_cmp_eq_u32 s{S_M}, 0")
        a.e(f"s_cselect_b64 vcc, -1, 0")
        a.e(f"v_cndmask_b32 v{V_HO}, v4, v5, vcc")
        a.e(f"s_cmp_lt_u32 s{S_W}, 2")
        a.e(f"s_cselect_b64 vcc, -1, 0")
        a.e(f"v_cndmask_b32 v{V_HO}, v{V_HO}, v{V_L16}, vcc")
        a.e(f"s_cselect_b32 s{SRD_L}, s{SRD_WS}, s{SRD_X}")
        a.e(f"s_cselect_b32 s{SRD_L+1}, s{SRD_WS+1}, s{SRD_X+1}")
        a.e(f"s_cselect_b32 s{SRD_L+2}, s{SRD_WS+2}, s{SRD_X+2}")
        a.e(f"s_mov_b32 s{SRD_L+3}, 0x00020000")
        a.e(f"s_cselect_b32 s{S_BSTEP}, 6144, 64") if False else None
        a.e(f"s_mov_b32 s{S_T0}, 6144")
        a.e(f"s_cselect_b32 s{S_BSTEP}, s{S_T0}, 64")
        a.e(f"s_mul_i32 s{S_BA}, s{S_J}, {14*6144}")
        a.e(f"s_lshl_b32 s{S_T0}, s{S_W}, 10")
        a.e(f"s_add_u32 s{S_BA}, s{S_BA}, s{S_T0}")
        a.e(f"s_add_u32 s{S_BA}, s{S_BA}, {WS_WQR}")
        a.e(f"s_add_u32 s{S_T1}, s{S_BA}, 4096")
        a.e(f"s_cmp_lt_u32 s{S_W}, 2")
        a.e(f"s_cselect_b32 s{S_BB}, s{S_T1}, 0")
        a.e(f"s_add_u32 s{S_T1}, s{S_T0}, 4096")
        a.e(f"s_min_u32 s{S_T5}, s{S_T1}, 6144")
        a.e(f"s_mov_b32 s{S_T4}, s{S_T0}")
        a.e(f"s_cmp_eq_u32 s{S_W}, 3")
        a.e(f"s_cselect_b32 s{S_EXM}, 0, -1")
        a.e(f"s_cmp_eq_u32 s{S_W}, 2")
        a.e(f"s_cselect_b32 s{S_EXM+1}, 0, -1")
        a.e(f"v_min_u32 v{V_PO0}, 13, v{V_LANE}")
        a.e(f"v_lshlrev_b32 v{V_PO0}, 2, v{V_PO0}")
        a.e(f"v_min_u32 v{V_PO1}, 17, v{V_LANE}")
        a.e(f"v_lshlrev_b32 v{V_PO1}, 2, v{V_PO1}")
        a.e(f"s_lshl_b32 s{S_T0}, s{S_J}, 7")
        a.e(f"s_add_u32 s{S_T0}, s{S_T0}, {WS_FWQ}")
        a.e(f"s_min_u32 s{S_T1}, s{S_NT}, 6")
        a.e(f"s_lshl_b32 s{S_T1}, s{S_T1}, 2")
        a.e(f"s_add_u32 s{S_T1}, s{S_T1}, s{S_W}")
        a.e(f"s_lshl_b32 s{S_T1}, s{S_T1}, 7")
        a.e(f"s_add_u32 s{S_T1}, s{S_T1}, {WS_FW2}")

    a.lab(l_adone)
    stamp(a, 1)
    if P["EXP"] & 1:
        for i in range(2, 8):
            stamp(a, i)
        stamp_flush(a, 8)
        a.e("s_endpgm")
    vm = Cnt(a, "vmcnt", 63)
    lg = Cnt(a, "lgkmcnt", 15)
    stage_b_setup()
    get_nonce(a, lg, V_FL, None, V_NONCE)
    flag_poll(a, vm, [(V_P0, V_PO0, S_T0), (V_P1, V_PO1, S_T1)], V_NONCE)
    stamp(a, 2)
    btok_ = {}
    vm = Cnt(a, "vmcnt", 63)
    pgb = Prog(a, vm, lg, V_BF, V_SIG, base=56)

    for ks in range(14):
        if ks % 4 == 0:
            pgb.wait_prog(V_FL, V_F, 4 + ks // 4)
        a.e(f"s_add_u32 m0, s{S_T4}, {sb_addr(ks)}")
        a.e("s_nop 0")
        a.e(f"buffer_load_dwordx4 v{V_L16}, {sr(SRD_WS,4)}, s{S_BA} offen sc1 lds")
        vm.issue()
        a.e(f"s_add_u32 m0, s{S_T5}, {sb_addr(ks)}")
        a.e(f"s_mov_b64 exec, {sr(S_EXM,2)}")
        a.e(f"buffer_load_dwordx4 v{V_HO}, {sr(SRD_L,4)}, s{S_BB} offen sc1 lds")
        btok_[ks] = vm.issue()
        a.e("s_mov_b64 exec, -1")
        if ks < 13:
            a.e(f"s_add_u32 s{S_BA}, s{S_BA}, 6144")
            a.e(f"s_add_u32 s{S_BB}, s{S_BB}, s{S_BSTEP}")
        if ks > 0:
            pgb.publish()
    stamp(a, 3)
    l_noP2 = a.newlab("LnoP2")
    a.e(f"s_cmp_ge_u32 s{S_NT}, 7")
    a.e(f"s_cbranch_scc1 {l_noP2}")
    import copy
    vm_snap = (vm.n, vm.done)
    pgb.extra.append((vm.n, 1000))

    a.e(f"s_mul_i32 s{S_BASEA}, s{S_RB}, {72*4096}")
    a.e(f"s_mul_i32 s{S_BASEW}, s{S_NT}, {72*4096}")
    a.e(f"s_add_u32 s{S_BASEW}, s{S_BASEW}, {WS_W2R}")
    a.e(f"s_mul_i32 s{S_T0}, s{S_W}, {14*4096}")
    a.e(f"s_lshl_b32 s{S_T1}, s{S_W}, 14")
    a.e(f"s_add_u32 s{S_T1}, s{S_T1}, {56*4096}")
    S_AH, S_AO, S_WH, S_WO_ = 74, 75, 76, 77
    a.e(f"s_add_u32 s{S_AH}, s{S_BASEA}, s{S_T0}")
    a.e(f"s_add_u32 s{S_AO}, s{S_BASEA}, s{S_T1}")
    a.e(f"s_add_u32 s{S_WH}, s{S_BASEW}, s{S_T0}")
    a.e(f"s_add_u32 s{S_WO_}, s{S_BASEW}, s{S_T1}")

    free = list(range(NSLOT))
    wslot, aslot, wtok, atok = {}, {}, {}, {}

    def load_blk(kind, i):
        s = free.pop(0)
        base = V_POOL + s * 16
        if kind == "W":
            sb = S_WH if i < 14 else S_WO_
        else:
            sb = S_AH if i < 14 else S_AO
        off = (i if i < 14 else i - 14) * 4096
        so = S_SO0 if kind == "W" else S_SO1
        a.e(f"s_add_u32 s{so}, s{sb}, {off}")
        for q in range(4):
            a.e(f"buffer_load_dwordx4 {vr(base+q*4,4)}, v{V_L16}, {sr(SRD_WS,4)}, s{so} offen offset:{q*1024} sc1")
            tok = vm.issue()
        if kind == "W":
            wslot[i], wtok[i] = s, tok
        else:
            aslot[i], atok[i] = s, tok

    NWPRE = P["NWPRE"]
    npre_ops = NWPRE * 4
    for i in range(NWPRE):
        load_blk("W", i)
        pgb.publish()
    mk_srd(a, SRD_B, S_B2, 448 * 2)
    a.e(f"v_lshrrev_b32 v4, 4, v{V_LANE}")
    a.e(f"s_lshl_b32 s{S_T0}, s{S_NT}, 7")
    a.e(f"v_lshl_add_u32 v4, v4, 3, s{S_T0}")
    a.e(f"v_mov_b32 v5, 0x40000000")
    a.e(f"s_cmp_eq_u32 s{S_W}, 0")
    a.e(f"s_cselect_b64 vcc, -1, 0")
    a.e(f"v_cndmask_b32 v4, v5, v4, vcc")
    VB = V_POOL + (NSLOT - 1) * 16
    for ct in range(4):
        a.e(f"buffer_load_dwordx2 {vr(VB+2*ct,2)}, v4, {sr(SRD_B,4)}, 0 offen offset:{ct*32}")
        btok = vm.issue()
    pgb.wait_tok(btok_[13])
    pgb.publish()
    stamp(a, 4)
    vm.wait(btok)
    for ct in range(4):
        d = ACC(ct, 0)
        a.e(f"v_lshlrev_b32 v{d}, 16, v{VB+2*ct}")
        a.e(f"v_and_b32 v{d+1}, 0xffff0000, v{VB+2*ct}")
        a.e(f"v_lshlrev_b32 v{d+2}, 16, v{VB+2*ct+1}")
        a.e(f"v_and_b32 v{d+3}, 0xffff0000, v{VB+2*ct+1}")
        for rt in range(1, 4):
            for i in range(4):
                a.e(f"v_mov_b32 v{ACC(ct,rt)+i}, v{d+i}")
    a.e(f"s_mul_i32 s{S_T0}, s{S_W}, 14")
    a.e(f"s_lshr_b32 s{S_T0}, s{S_T0}, 2")
    a.e(f"s_lshl_b32 s{S_T0}, s{S_T0}, 8")
    a.e(f"s_lshl_b32 s{S_T1}, s{S_RB}, 12")
    a.e(f"s_add_u32 s{S_T0}, s{S_T0}, s{S_T1}")
    a.e(f"s_add_u32 s{S_T0}, s{S_T0}, {WS_FA}")
    a.e(f"v_and_b32 v{V_PO0}, 7, v{V_LANE}")
    a.e(f"v_lshlrev_b32 v{V_PO0}, 7, v{V_PO0}")
    S_FBO, S_GO = 78, 79
    a.e(f"s_lshl_b32 s{S_T2}, s{S_W}, 10")
    a.e(f"s_add_u32 s{S_FBO}, s{S_T2}, s{S_T1}")
    a.e(f"s_add_u32 s{S_FBO}, s{S_FBO}, {WS_FB}")
    a.e(f"s_lshl_b32 s{S_T2}, s{S_W}, 7")
    a.e(f"s_add_u32 s{S_T2}, s{S_T2}, s{S_RB}")
    a.e(f"s_lshl_b32 s{S_T2}, s{S_T2}, 8")
    a.e(f"s_add_u32 s{S_GO}, s{S_T2}, {WS_G}")
    a.e(f"v_and_b32 v{V_PO1}, 15, v{V_LANE}")
    a.e(f"v_lshlrev_b32 v{V_PO1}, 4, v{V_PO1}")
    flag_poll(a, vm, [(V_P0, V_PO0, S_T0)], V_NONCE)
    stamp(a, 5)

    NB = 18
    nextA, nextW = 0, NWPRE
    fb_tok = None
    fb_checked = False
    g_tok = None
    FBP = P["FBP"]

    def fb_check():
        nonlocal fb_checked, g_tok
        if fb_checked:
            return
        fb_checked = True
        vm.wait(fb_tok)
        ok, slow = a.newlab("Lfbok"), a.newlab("Lfbslow")
        a.e(f"v_cmp_ne_u32 vcc, v{V_P0}, v{V_NONCE}")
        a.e(f"s_cbranch_vccnz {slow}")
        a.lab(ok)
        t = a.tail
        t.append(f"{slow}:")
        t.append(f"  s_mov_b32 s{S_SPIN}, 0")
        t.append(f"{slow}_l:")
        t.append(f"  s_sleep 1")
        t.append(f"  buffer_load_dword v{V_P0}, v{V_PO0}, {sr(SRD_WS,4)}, s{S_FBO} offen sc1")
        t.append(f"  s_add_u32 s{S_SPIN}, s{S_SPIN}, 1")
        t.append(f"  s_cmp_gt_u32 s{S_SPIN}, {SPIN_MAX}")
        t.append(f"  s_waitcnt vmcnt(0)")
        t.append(f"  s_cbranch_scc1 {ok}")
        t.append(f"  v_cmp_ne_u32 vcc, v{V_P0}, v{V_NONCE}")
        t.append(f"  s_cbranch_vccnz {slow}_l")
        t.append(f"  s_branch {ok}")
        a.e(f"buffer_load_dwordx4 {vr(V_G,4)}, v{V_PO1}, {sr(SRD_WS,4)}, s{S_GO} offen sc1")
        g_tok = vm.issue()

    def refill():
        nonlocal nextA, nextW
        while free:
            if nextW < NB and nextW <= nextA:
                load_blk("W", nextW); nextW += 1
            elif nextA < NB:
                if nextA >= 14:
                    if fb_tok is None:
                        break
                    fb_check()
                load_blk("A", nextA); nextA += 1
            elif nextW < NB:
                load_blk("W", nextW); nextW += 1
            else:
                break

    refill()
    for i in range(NB):
        if i == 14:
            vm.wait(g_tok)
            a.e("s_nop 7")
            for ct in range(4):
                for rt in range(4):
                    for e in range(4):
                        a.e(f"v_mul_f32 v{ACC(ct,rt)+e}, v{ACC(ct,rt)+e}, v{V_G+rt}")
            a.e("s_nop 1")
        assert i in wtok and i in atok, (i, wtok.keys(), atok.keys())
        vm.wait(max(wtok[i], atok[i]))
        wb, ab = V_POOL + wslot[i] * 16, V_POOL + aslot[i] * 16
        for ct in range(4):
            for rt in range(4):
                mfma(a, ACC(ct, rt), wb + ct * 4, ab + rt * 4, ACC(ct, rt))
        free.append(wslot[i]); free.append(aslot[i])
        if i == FBP:
            a.e(f"buffer_load_dword v{V_P0}, v{V_PO0}, {sr(SRD_WS,4)}, s{S_FBO} offen sc1")
            fb_tok = vm.issue()
        refill()

    a.c("---- reduction ----")
    stamp(a, 6)
    lds_wait_min4(a, lg, V_FL, V_F, 0, 9)
    a.e(f"v_and_b32 v1, 15, v{V_LANE}")
    a.e(f"v_lshrrev_b32 v2, 4, v{V_LANE}")
    a.e(f"s_lshl_b32 s{S_T0}, s{S_W}, 12")
    a.e(f"v_lshl_add_u32 v2, v2, 8, s{S_T0}")
    for ct in range(4):
        a.e(f"v_add_u32 v3, {4*ct}, v1")
        a.e(f"v_and_b32 v3, 15, v3")
        a.e(f"v_lshl_add_u32 v{4+ct}, v3, 4, v2")
    a.e("s_nop 4")
    for rt in range(4):
        for ct in range(4):
            a.e(f"ds_write_b128 v{4+ct}, {vr(ACC(ct,rt),4)} offset:{L_RED + rt*16384 + ct*1024}")
    a.e(f"v_lshrrev_b32 v1, 2, v{V_LANE}")
    a.e(f"v_and_b32 v2, 3, v{V_LANE}")
    a.e(f"v_lshl_add_u32 v3, v2, 2, v1")
    a.e(f"v_and_b32 v3, 15, v3")
    a.e(f"v_lshlrev_b32 v3, 4, v3")
    a.e(f"v_lshl_add_u32 v3, v2, 10, v3")
    a.e(f"s_lshl_b32 s{S_T0}, s{S_W}, 14")
    a.e(f"v_add_u32 v8, s{S_T0}, v3")
    mk_srd(a, SRD_O, S_OUT, 2048 * 896)
    a.e(f"s_lshl_b32 s{S_T0}, s{S_RB}, 6")
    a.e(f"s_lshl_b32 s{S_T1}, s{S_W}, 4")
    a.e(f"s_add_u32 s{S_T0}, s{S_T0}, s{S_T1}")
    a.e(f"v_add_u32 v1, s{S_T0}, v1")
    a.e(f"v_mul_u32_u24 v1, 896, v1")
    a.e(f"v_lshl_add_u32 v9, v2, 5, v1")
    a.e(f"s_lshl_b32 s{S_T1}, s{S_NT}, 7")
    a.e("s_waitcnt lgkmcnt(0)")
    a.e("s_barrier")
    RD = V_POOL
    for g in range(4):
        for src in range(4):
            a.e(f"ds_read_b128 {vr(RD+(g*4+src)*4,4)}, v8 offset:{L_RED + src*4096 + g*256}")
    OUTR = V_ACC
    for g in range(4):
        a.e(f"s_waitcnt lgkmcnt({12-4*g})")
        b = RD + g * 16
        for e in range(4):
            a.e(f"v_add_f32 v{b+e}, v{b+e}, v{b+4+e}")
            a.e(f"v_add_f32 v{b+8+e}, v{b+8+e}, v{b+12+e}")
        for e in range(4):
            a.e(f"v_add_f32 v{b+e}, v{b+e}, v{b+8+e}")
        a.e(f"v_cvt_pk_bf16_f32 v{OUTR+2*g}, v{b}, v{b+1}")
        a.e(f"v_cvt_pk_bf16_f32 v{OUTR+2*g+1}, v{b+2}, v{b+3}")
        if g % 2 == 1:
            a.e(f"buffer_store_dwordx4 {vr(OUTR+2*g-2,4)}, v9, {sr(SRD_O,4)}, s{S_T1} offen offset:{(g//2)*16}")
    if STAMPS:
        a.e("s_waitcnt vmcnt(0)")
    stamp(a, 7)
    stamp_flush(a, 8)
    a.e("s_endpgm")

    a.lab(l_noP2)
    vm.n, vm.done = vm_snap
    pgb.wait_tok(btok_[13])
    pgb.publish()
    a.e("s_endpgm")


def generate(P):
    a = Asm()
    K = NAME + "_kernel"
    hdr = [
        "; fused gated-mix kernel: generated by gen/gen.py (hand-written generator)",
        f"; @launch grid=(256,1,1) block=(512,1,1) lds={L_END}",
        '.amdgcn_target "amdgcn-amd-amdhsa--gfx950"',
        ".text",
        f".globl {K}",
        ".p2align 8",
        f".type {K},@function",
        f"{K}:",
    ]
    a.e("s_cmp_ge_u32 s2, 256")
    a.e("s_cbranch_scc1 L_exit")
    a.e("s_load_dwordx16 s[8:23], s[0:1], 0")
    a.e("s_load_dwordx8 s[24:31], s[0:1], 64")
    stamp(a, 0)
    a.e("v_lshrrev_b32 v1, 6, v0")
    a.e("v_and_b32 v0, 63, v0")
    a.e(f"v_readfirstlane_b32 s{S_WAVE}, v1")
    a.e(f"s_and_b32 s{S_XCD}, s2, 7")
    a.e(f"s_lshr_b32 s{S_IDX}, s2, 3")
    a.e(f"s_and_b32 s{S_M}, s{S_XCD}, 1")
    a.e(f"s_lshl_b32 s{S_M}, s{S_M}, 3")
    a.e(f"s_and_b32 s{S_T0}, s{S_IDX}, 7")
    a.e(f"s_add_u32 s{S_M}, s{S_M}, s{S_T0}")
    a.e(f"s_lshr_b32 s{S_J}, s{S_IDX}, 3")
    a.e(f"s_lshl_b32 s{S_J}, s{S_J}, 2")
    a.e(f"s_lshr_b32 s{S_T0}, s{S_XCD}, 1")
    a.e(f"s_add_u32 s{S_J}, s{S_J}, s{S_T0}")
    a.e(f"s_and_b32 s{S_W}, s{S_WAVE}, 3")
    a.e("s_waitcnt lgkmcnt(0)")
    a.e(f"s_cmp_ge_u32 s{S_WAVE}, 4")
    a.e("s_cbranch_scc1 L_p2")
    gen_p1(a, P)
    gen_p1_stage_b(a, P)
    a.lab("L_p2")
    gen_p2(a, P)
    a.lines += a.tail
    a.lab("L_exit")
    a.e("s_endpgm")
    ftr = [
        '.section .rodata,"a"',
        ".p2align 6",
        f".amdhsa_kernel {K}",
        "  .amdhsa_next_free_vgpr 256",
        "  .amdhsa_next_free_sgpr 96",
        "  .amdhsa_accum_offset 256",
        "  .amdhsa_group_segment_fixed_size 0",
        "  .amdhsa_kernarg_size 96",
        "  .amdhsa_user_sgpr_count 2",
        "  .amdhsa_user_sgpr_kernarg_segment_ptr 1",
        "  .amdhsa_system_sgpr_workgroup_id_x 1",
        "  .amdhsa_float_denorm_mode_32 3",
        ".end_amdhsa_kernel",
    ]
    return "\n".join(hdr + a.lines + ftr) + "\n"


DEFAULT = dict(X2=0, FQ=0xB4, RPA=1, RPS=2, RPF=4, BLAG=5, PRIO=0, RPK=2, P0=4, LD=3, LDB=0, EXP=0, PD=5, PDT=1, LA=4, SIG=12, CHK=2, LAB=6, BTHR=13, NWPRE=6, FBP=8)

if __name__ == "__main__":
    P = dict(DEFAULT)
    out = f"cdna_kernels/{NAME}.s"
    for arg in sys.argv[1:]:
        if "=" in arg:
            k, v = arg.split("=")
            if k == "out":
                out = v
            elif k == "SLEEP":
                SLEEP = int(v)
            elif k == "STAMPS":
                STAMPS = int(v)
            else:
                P[k] = int(v)
    for u in range(504):
        assert (u * 911) >> 16 == u // 72
    for u in range(256):
        assert (u * 4682) >> 16 == u // 14
    open(out, "w").write(generate(P))
    print("wrote", out)
```

```python
import sys

NAME = "gated_mix__sliding_local_dilated__dense_activation_squared_relu__prompt"

WS_A2 = 0
WS_W2R = 0x900000
WS_WQR = WS_W2R + 7 * 72 * 4096
WS_G = WS_WQR + 16 * 14 * 6144
WS_FA = WS_G + 16 * 32 * 256
FSTRIDE = 32 * 16 * 2 * 128
WS_FWQ = WS_FA + 3 * FSTRIDE
WS_FW2 = WS_FWQ + 16 * 128
WS_EPOCH = WS_FW2 + 28 * 128
WS_END = WS_EPOCH + 128

L_X = 0
L_WA = 65536
L_WB = 122880
L_RP = 147456
L_XB = L_RP
L_FL = 161792
L_BIAS = L_FL + 512
L_END = L_BIAS + 512
L_RED = 0


def wb_addr(ks):
    if ks < 6:
        return L_WB + ks * 4096
    if ks < 10:
        return 3 * 16384 + (ks - 6) * 4096
    return (ks - 10) * 4096


def sb_addr(ks):
    if ks < 8:
        return L_WA + ks * 7168
    if ks < 12:
        return 16384 + (ks - 8) * 7168
    return L_WB + (ks - 12) * 7168


def sb_free_step(ks):
    if ks < 8:
        kmax = (7168 * (ks + 1) + 4095) // 4096 - 1
        return kmax // 2 + 2
    if ks < 12:
        return 6 if 7168 * (ks - 7) <= 16384 else 7
    kmax = (7168 * (ks - 11) + 4095) // 4096 - 1
    return 8 + kmax // 2 + 1


def loader_items():
    it = []
    for p in range(7):
        it.append(("x", p, 4, 0 if p < 4 else p - 3))
        it.append(("a", 2 * p, 1, 0))
        it.append(("a", 2 * p + 1, 1, 0))
    for ks in range(14):
        it.append(("b", ks, 1, 0 if ks < 6 else (4 if ks < 10 else 5)))
    cnt = {}
    n = 0
    for (k, i, ops, st) in it:
        n += ops
        cnt[(k, i)] = n
    return it, cnt, n


ITEMS, ITEM_CNT, A_OPS = loader_items()

SPIN_MAX = 1 << 15


class Asm:
    def __init__(self):
        self.lines = []
        self.nlab = 0
        self.tail = []

    def e(self, s):
        self.lines.append("  " + s)

    def c(self, s):
        self.lines.append("  ; " + s)

    def lab(self, l):
        self.lines.append(l + ":")

    def newlab(self, p="L"):
        self.nlab += 1
        return f"{p}_{self.nlab}"


class Cnt:
    def __init__(self, a, name, mx):
        self.a, self.name, self.mx = a, name, mx
        self.n = 0
        self.done = 0

    def issue(self):
        self.n += 1
        return self.n

    def wait(self, tok):
        if tok is None or tok <= self.done:
            return
        k = min(self.n - tok, self.mx)
        self.a.e(f"s_waitcnt {self.name}({k})")
        self.done = self.n - k

    def drain(self):
        self.a.e(f"s_waitcnt {self.name}(0)")
        self.done = self.n

    def mark_drained(self):
        self.done = self.n


def vr(b, n=1):
    return f"v{b}" if n == 1 else f"v[{b}:{b+n-1}]"


def sr(b, n=1):
    return f"s{b}" if n == 1 else f"s[{b}:{b+n-1}]"


S_X, S_WQKV, S_WO, S_BX, S_W1, S_B1, S_W2, S_B2 = 8, 10, 12, 14, 16, 18, 20, 22
S_GATE, S_OUT, S_DBG, S_WS = 24, 26, 28, 30
SRD_WS, SRD_X, SRD_A, SRD_B, SRD_O = 32, 36, 40, 44, 48
S_WAVE, S_XCD, S_IDX, S_M, S_J, S_RB, S_NT = 52, 53, 54, 55, 56, 57, 58
S_T0, S_T1, S_T2, S_T3, S_T4, S_T5 = 60, 61, 62, 63, 64, 65
S_SPIN = 66
S_NONCE = 67
S_W = 68
S_SO0, S_SO1 = 70, 71
S_BASEA, S_BASEW = 72, 73
S_RPF = 69
S_RO2 = 8
S_ROT, S_PP, S_PB = 59, 62, 63
S_FLA, S_FDONE = 6, 7
S_PG0, S_PG1, S_PG2 = 3, 4, 5


def mk_srd(a, d, p, nbytes):
    a.e(f"s_mov_b32 s{d}, s{p}")
    a.e(f"s_and_b32 s{d+1}, s{p+1}, 0xffff")
    a.e(f"s_mov_b32 s{d+2}, {nbytes}")
    a.e(f"s_mov_b32 s{d+3}, 0x00020000")


def lds_wait_min4(a, lg, vaddr, vtmp, off, need, pre_tok=None):
    if pre_tok is None:
        a.e(f"ds_read_b128 {vr(vtmp,4)}, {vr(vaddr)} offset:{off}")
        pre_tok = lg.issue()
    lg.wait(pre_tok)
    ok = a.newlab("Lok")
    spin = a.newlab("Lspin")
    a.e(f"v_min3_u32 {vr(vtmp)}, {vr(vtmp)}, {vr(vtmp+1)}, {vr(vtmp+2)}")
    a.e(f"v_min_u32 {vr(vtmp)}, {vr(vtmp)}, {vr(vtmp+3)}")
    a.e(f"v_cmp_gt_u32 vcc, {need}, {vr(vtmp)}")
    a.e(f"s_cbranch_vccnz {spin}")
    a.lab(ok)
    t = a.tail
    t.append(f"{spin}:")
    t.append(f"  s_mov_b32 s{S_SPIN}, 0")
    t.append(f"{spin}_l:")
    t.append(f"  ds_read_b128 {vr(vtmp,4)}, {vr(vaddr)} offset:{off}")
    t.append(f"  s_add_u32 s{S_SPIN}, s{S_SPIN}, 1")
    t.append(f"  s_cmp_gt_u32 s{S_SPIN}, {SPIN_MAX*8}")
    t.append(f"  s_waitcnt lgkmcnt(0)")
    t.append(f"  s_cbranch_scc1 {ok}")
    t.append(f"  v_min3_u32 {vr(vtmp)}, {vr(vtmp)}, {vr(vtmp+1)}, {vr(vtmp+2)}")
    t.append(f"  v_min_u32 {vr(vtmp)}, {vr(vtmp)}, {vr(vtmp+3)}")
    t.append(f"  v_cmp_gt_u32 vcc, {need}, {vr(vtmp)}")
    t.append(f"  s_cbranch_vccnz {spin}_l")
    t.append(f"  s_branch {ok}")


def lds_wait_word(a, lg, vaddr, vtmp, off, need, pre_tok=None):
    if pre_tok is None:
        a.e(f"ds_read_b32 {vr(vtmp)}, {vr(vaddr)} offset:{off}")
        pre_tok = lg.issue()
    lg.wait(pre_tok)
    ok = a.newlab("Lok")
    spin = a.newlab("Lspin")
    a.e(f"v_cmp_gt_u32 vcc, {need}, {vr(vtmp)}")
    a.e(f"s_cbranch_vccnz {spin}")
    a.lab(ok)
    t = a.tail
    t.append(f"{spin}:")
    t.append(f"  s_mov_b32 s{S_SPIN}, 0")
    t.append(f"{spin}_l:")
    t.append(f"  ds_read_b32 {vr(vtmp)}, {vr(vaddr)} offset:{off}")
    t.append(f"  s_add_u32 s{S_SPIN}, s{S_SPIN}, 1")
    t.append(f"  s_cmp_gt_u32 s{S_SPIN}, {SPIN_MAX*8}")
    t.append(f"  s_waitcnt lgkmcnt(0)")
    t.append(f"  s_cbranch_scc1 {ok}")
    t.append(f"  v_cmp_gt_u32 vcc, {need}, {vr(vtmp)}")
    t.append(f"  s_cbranch_vccnz {spin}_l")
    t.append(f"  s_branch {ok}")


def lds_signal(a, lg, vaddr, vtmp, val):
    a.e(f"v_mov_b32 {vr(vtmp)}, {val}")
    a.e(f"ds_write_b32 {vr(vaddr)}, {vr(vtmp)}")
    lg.issue()


def mk_sig_addr(a, vdst, vlane, sword):
    a.e(f"v_lshlrev_b32 v{vdst}, 2, v{vlane}")
    a.e(f"v_add_u32 v{vdst}, {L_FL+256}, v{vdst}")
    a.e(f"v_writelane_b32 v{vdst}, s{sword}, 0")


class Prog:
    def __init__(self, a, vm, lg, vaddr, vtmp, base=0):
        self.a, self.vm, self.lg, self.vaddr, self.vtmp, self.base = a, vm, lg, vaddr, vtmp, base
        self.extra = []

    def note_extra(self, pos_before):
        cnt = self.vm.n - pos_before
        if cnt:
            self.extra.append((pos_before, cnt))

    def lines(self):
        o = []
        o.append(f"s_getreg_b32 s{S_PG0}, hwreg(HW_REG_IB_STS)")
        o.append(f"s_bfe_u32 s{S_PG1}, s{S_PG0}, 0x20016")
        o.append(f"s_and_b32 s{S_PG0}, s{S_PG0}, 15")
        o.append(f"s_lshl_b32 s{S_PG1}, s{S_PG1}, 4")
        o.append(f"s_or_b32 s{S_PG0}, s{S_PG0}, s{S_PG1}")
        o.append(f"s_sub_u32 s{S_PG0}, {self.vm.n}, s{S_PG0}")
        off = self.base
        live = []
        for (pos, cnt) in self.extra:
            if pos + cnt <= self.vm.done:
                off -= cnt
            else:
                live.append((pos, cnt))
        if live:
            o.append(f"s_mov_b32 s{S_PG2}, s{S_PG0}")
        for (pos, cnt) in live:
            o.append(f"s_sub_i32 s{S_PG1}, s{S_PG2}, {pos}")
            o.append(f"s_max_i32 s{S_PG1}, s{S_PG1}, 0")
            o.append(f"s_min_i32 s{S_PG1}, s{S_PG1}, {cnt}")
            o.append(f"s_sub_u32 s{S_PG0}, s{S_PG0}, s{S_PG1}")
        if off:
            o.append(f"s_add_i32 s{S_PG0}, s{S_PG0}, {off}")
        o.append(f"v_mov_b32 {vr(self.vtmp)}, s{S_PG0}")
        o.append(f"ds_write_b32 {vr(self.vaddr)}, {vr(self.vtmp)}")
        return o

    def publish(self):
        if NOPUB:
            return
        for l in self.lines():
            self.a.e(l)
        self.lg.issue()

    def wait_prog(self, vfl, vtmp4, need):
        a = self.a
        top, done = a.newlab("Lwp"), a.newlab("Lwpd")
        a.e(f"s_mov_b32 s{S_SPIN}, 0")
        first = a.newlab("Lwpf")
        a.e(f"s_branch {first}")
        a.lab(top)
        if SLEEP:
            a.e(f"s_sleep {SLEEP}")
        a.lab(first)
        a.e(f"ds_read_b128 {vr(vtmp4,4)}, {vr(vfl)}")
        for l in self.lines():
            a.e(l)
        a.e(f"s_add_u32 s{S_SPIN}, s{S_SPIN}, 1")
        a.e(f"s_cmp_gt_u32 s{S_SPIN}, {SPIN_MAX*8}")
        a.e("s_waitcnt lgkmcnt(1)")
        a.e(f"s_cbranch_scc1 {done}")
        a.e(f"v_min3_u32 {vr(vtmp4)}, {vr(vtmp4)}, {vr(vtmp4+1)}, {vr(vtmp4+2)}")
        a.e(f"v_min_u32 {vr(vtmp4)}, {vr(vtmp4)}, {vr(vtmp4+3)}")
        a.e(f"v_cmp_gt_u32 vcc, {need}, {vr(vtmp4)}")
        a.e(f"s_cbranch_vccnz {top}")
        a.lab(done)
        self.lg.issue(); self.lg.issue()

    def wait_tok(self, tok):
        if tok <= self.vm.done:
            return
        a = self.a
        top, done = a.newlab("Lwt"), a.newlab("Lwtd")
        a.e(f"s_branch {done}")
        a.lab(top)
        if SLEEP:
            a.e(f"s_sleep {SLEEP}")
        a.lab(done)
        for l in self.lines():
            a.e(l)
        a.e(f"s_getreg_b32 s{S_PG0}, hwreg(HW_REG_IB_STS)")
        a.e(f"s_bfe_u32 s{S_PG1}, s{S_PG0}, 0x20016")
        a.e(f"s_and_b32 s{S_PG0}, s{S_PG0}, 15")
        a.e(f"s_lshl_b32 s{S_PG1}, s{S_PG1}, 4")
        a.e(f"s_or_b32 s{S_PG0}, s{S_PG0}, s{S_PG1}")
        a.e(f"s_cmp_gt_u32 s{S_PG0}, {self.vm.n - tok}")
        a.e(f"s_cbranch_scc1 {top}")
        self.lg.issue()
        self.vm.wait(tok)


def get_nonce(a, lg, vzero_fl, vtmp, vdst):
    a.e(f"v_mov_b32 v{vdst}, s{S_NONCE}")


def init_barrier(a):
    a.e("s_waitcnt lgkmcnt(0)")
    a.e(f"s_add_u32 s{S_NONCE}, s{S_NONCE}, 1")
    a.e("s_barrier")


def flag_store(a, vm, vnonce, vzero, soff):
    a.e("s_mov_b64 exec, 1")
    a.e(f"buffer_store_dword {vr(vnonce)}, {vr(vzero)}, {sr(SRD_WS,4)}, s{soff} offen sc1")
    vm.issue()
    a.e("s_mov_b64 exec, -1")


def flag_poll(a, vm, polls, vnonce, sleep=1):
    top = a.newlab("Lpoll")
    done = a.newlab("Lpdone")
    a.e(f"s_mov_b32 s{S_SPIN}, 0")
    a.lab(top)
    for (vd, vo, so) in polls:
        a.e(f"buffer_load_dword {vr(vd)}, {vr(vo)}, {sr(SRD_WS,4)}, s{so} offen sc1")
        vm.issue()
    a.e(f"s_add_u32 s{S_SPIN}, s{S_SPIN}, 1")
    a.e(f"s_waitcnt vmcnt(0)")
    vm.mark_drained()
    vd0 = polls[0][0]
    a.e(f"v_xor_b32 {vr(vd0)}, {vr(vd0)}, {vr(vnonce)}")
    for (vd, vo, so) in polls[1:]:
        a.e(f"v_xor_b32 {vr(vd)}, {vr(vd)}, {vr(vnonce)}")
        a.e(f"v_or_b32 {vr(vd0)}, {vr(vd0)}, {vr(vd)}")
    a.e(f"v_cmp_ne_u32 vcc, 0, {vr(vd0)}")
    a.e(f"s_cbranch_vccz {done}")
    a.e(f"s_cmp_gt_u32 s{S_SPIN}, {SPIN_MAX}")
    a.e(f"s_cbranch_scc1 {done}")
    if sleep:
        a.e(f"s_sleep {sleep}")
    a.e(f"s_branch {top}")
    a.lab(done)


STAMPS = False
SLEEP = 1
NOPUB = 0
S_ST = 80


STMODE = 0


def stamp2(a, i):
    if STAMPS and STMODE == 1:
        a.e(f"s_memrealtime {sr(S_ST+2*i,2)}")


def stamp(a, i):
    if STMODE == 1 and 0 < i < 7:
        return
    if STAMPS:
        a.e(f"{'s_memtime' if STAMPS == 2 else 's_memrealtime'} {sr(S_ST+2*i,2)}")


def stamp_flush(a, n):
    if not STAMPS:
        return
    a.e("s_waitcnt lgkmcnt(0)")
    a.e(f"s_lshl_b32 s{S_T0}, s2, 3")
    a.e(f"s_add_u32 s{S_T0}, s{S_T0}, s{S_WAVE}")
    a.e(f"s_lshl_b32 s{S_T0}, s{S_T0}, 6")
    a.e(f"s_add_u32 s{S_T0}, s{S_T0}, {WS_END}")
    a.e("s_mov_b64 exec, 1")
    a.e("v_mov_b32 v1, 0")
    for i in range(n):
        a.e(f"v_mov_b32 v2, s{S_ST+2*i}")
        a.e(f"buffer_store_dword v2, v1, {sr(SRD_WS,4)}, s{S_T0} offen offset:{4*i}")
        a.e("s_nop 1")
    a.e("s_mov_b64 exec, -1")


def mfma(a, d, A, B, C):
    c = "0" if C is None else vr(C, 4)
    a.e(f"v_mfma_f32_16x16x32_bf16 {vr(d,4)}, {vr(A,4)}, {vr(B,4)}, {c}")


SRD_R = SRD_A
SRD_RS = SRD_O
S_RST, S_RST2 = 74, 75
R = 88
RV8, RV9 = 140, 141
V_LANE, V_L16, V_ZERO = 0, 14, 15


def rp_srd_store(a):
    a.e(f"s_mov_b32 s{SRD_RS}, s{SRD_WS}")
    a.e(f"s_mov_b32 s{SRD_RS+1}, s{SRD_WS+1}")
    a.e(f"s_cselect_b32 s{SRD_RS+2}, s{SRD_WS+2}, 0")
    a.e(f"s_mov_b32 s{SRD_RS+3}, 0x00020000")

def w2_loads(a, vm):
    a.e(f"s_lshl_b32 s{S_T0}, s2, 1")
    a.e(f"s_add_u32 s{S_T0}, s{S_T0}, s{S_W}")
    a.e(f"s_sub_u32 s{S_T0}, s{S_T0}, 1")
    a.e(f"s_cmp_lt_u32 s{S_T0}, 504")
    rp_srd_store(a)
    a.e(f"s_min_u32 s{S_T0}, s{S_T0}, 503")
    a.e(f"s_mul_i32 s{S_T1}, s{S_T0}, 911")
    a.e(f"s_lshr_b32 s{S_T1}, s{S_T1}, 16")
    a.e(f"s_mul_i32 s{S_T2}, s{S_T1}, 72")
    a.e(f"s_sub_u32 s{S_T2}, s{S_T0}, s{S_T2}")
    a.e(f"s_cmp_lt_u32 s{S_T2}, 56")
    a.e(f"s_cselect_b32 s{SRD_R}, s{S_W2}, s{S_WO}")
    a.e(f"s_cselect_b32 s{SRD_R+1}, s{S_W2+1}, s{S_WO+1}")
    a.e(f"s_mov_b32 s{S_T3}, {1792*896}")
    a.e(f"s_mov_b32 s{S_T4}, {448*896}")
    a.e(f"s_cselect_b32 s{SRD_R+2}, s{S_T3}, s{S_T4}")
    a.e(f"s_mov_b32 s{SRD_R+3}, 0x00020000")
    a.e(f"s_cselect_b64 vcc, 0, -1")
    a.e(f"s_cmp_ge_u32 s{S_T2}, 28")
    a.e(f"s_cselect_b32 s{S_T4}, 28, 0")
    a.e(f"s_cselect_b32 s{S_T5}, 64, 0")
    a.e(f"s_sub_u32 s{S_T4}, s{S_T2}, s{S_T4}")
    a.e(f"s_lshr_b32 s{S_T3}, s{S_T4}, 1")
    a.e(f"s_lshl_b32 s{S_T3}, s{S_T3}, 7")
    a.e(f"s_add_u32 s{S_T3}, s{S_T3}, s{S_T5}")
    a.e(f"s_and_b32 s{S_T4}, s{S_T4}, 1")
    a.e(f"s_lshl_b32 s{S_T4}, s{S_T4}, 5")
    a.e(f"s_add_u32 s{S_T3}, s{S_T3}, s{S_T4}")
    a.e(f"s_sub_u32 s{S_T4}, s{S_T2}, 56")
    a.e(f"s_mul_i32 s{S_T4}, s{S_T4}, 28")
    a.e(f"s_cmp_lt_u32 s{S_T2}, 56")
    a.e(f"s_cselect_b32 s{S_T3}, s{S_T3}, s{S_T4}")
    a.e(f"s_and_b32 s{SRD_R+1}, s{SRD_R+1}, 0xffff")
    a.e(f"s_mul_i32 s{S_T3}, s{S_T3}, 896")
    a.e(f"s_lshl_b32 s{S_T4}, s{S_T1}, 7")
    a.e(f"s_add_u32 s{S_T3}, s{S_T3}, s{S_T4}")
    a.e(f"v_and_b32 v4, 1, v1")
    a.e(f"v_lshrrev_b32 v5, 1, v1")
    a.e(f"v_lshlrev_b32 v4, 2, v4")
    a.e(f"v_lshl_add_u32 v4, v5, 4, v4")
    a.e(f"v_lshlrev_b32 v5, 2, v1")
    a.e(f"v_cndmask_b32 v{RV8}, v4, v5, vcc")
    a.e(f"v_mov_b32 v4, 1024")
    a.e(f"v_mov_b32 v5, 2048")
    a.e(f"v_cndmask_b32 v{RV9}, v4, v5, vcc")
    a.e(f"v_lshrrev_b32 v4, 3, v{V_LANE}")
    a.e(f"v_mul_u32_u24 v4, 896, v4")
    a.e(f"v_and_b32 v5, 7, v{V_LANE}")
    a.e(f"v_lshl_add_u32 v4, v5, 4, v4")
    a.e(f"s_mov_b32 vcc_lo, 0")
    a.e(f"v_mov_b32 v5, 0x40000000")
    a.e("s_nop 1")
    a.e(f"v_cndmask_b32 v5, v4, v5, vcc")
    a.e(f"s_lshl_b32 s{S_T4}, s{S_W}, 12")
    a.e(f"s_add_u32 m0, s{S_T4}, {L_RP + 6144 - 4096}")
    a.e("s_nop 0")
    for i in range(4):
        vo = 5 if i == 3 else 4
        a.e(f"buffer_load_dwordx4 v{vo}, {sr(SRD_R,4)}, s{S_T3} offen offset:{i*1024} lds")
        vm.issue()
        if i < 3:
            a.e(f"s_add_u32 s{S_T3}, s{S_T3}, {8*896-1024}")
    a.e(f"v_add_u32 v{RV8}, v{RV8}, v2")
    a.e(f"v_lshlrev_b32 v{RV8}, 7, v{RV8}")
    a.e(f"v_lshl_add_u32 v{RV8}, v3, 3, v{RV8}")
    a.e(f"v_add_u32 v{RV8}, m0, v{RV8}")
    a.e(f"v_add_u32 v{RV9}, v{RV8}, v{RV9}")
    a.e(f"s_mul_i32 s{S_T3}, s{S_T2}, 9363")
    a.e(f"s_lshr_b32 s{S_T3}, s{S_T3}, 16")
    a.e(f"s_mul_i32 s{S_T4}, s{S_T3}, 7")
    a.e(f"s_sub_u32 s{S_T4}, s{S_T2}, s{S_T4}")
    a.e(f"s_lshr_b32 s{S_T5}, s{S_T3}, 2")
    a.e(f"s_mul_i32 s{S_T5}, s{S_T5}, 7")
    a.e(f"s_add_u32 s{S_T4}, s{S_T4}, s{S_T5}")
    a.e(f"s_and_b32 s{S_T3}, s{S_T3}, 3")
    a.e(f"s_sub_u32 s{S_T5}, s{S_T2}, 56")
    a.e(f"s_lshr_b32 s{S_SO0}, s{S_T5}, 2")
    a.e(f"s_and_b32 s{S_T5}, s{S_T5}, 3")
    a.e(f"s_add_u32 s{S_T5}, s{S_T5}, 14")
    a.e(f"s_cmp_lt_u32 s{S_T2}, 56")
    a.e(f"s_cselect_b32 s{S_T3}, s{S_T3}, s{S_SO0}")
    a.e(f"s_cselect_b32 s{S_T4}, s{S_T4}, s{S_T5}")
    a.e(f"s_lshl_b32 s{S_T1}, s{S_T1}, 2")
    a.e(f"s_add_u32 s{S_T1}, s{S_T1}, s{S_T3}")
    a.e(f"s_lshl_b32 s{S_T1}, s{S_T1}, 7")
    a.e(f"s_lshl_b32 s{S_T4}, s{S_T4}, 2")
    a.e(f"s_add_u32 s{S_T1}, s{S_T1}, s{S_T4}")
    a.e(f"s_add_u32 s{S_RPF}, s{S_T1}, {WS_FW2}")
    a.e(f"s_lshl_b32 s{S_RST}, s{S_T0}, 12")
    a.e(f"s_add_u32 s{S_RST}, s{S_RST}, {WS_W2R}")

def w2_proc(a, vm, lg):
    toks = []
    for ct in range(4):
        a.e(f"ds_read_b64_tr_b16 {vr(R+ct*4,2)}, v{RV8} offset:{ct*32}")
        lg.issue()
        a.e(f"ds_read_b64_tr_b16 {vr(R+ct*4+2,2)}, v{RV9} offset:{ct*32}")
        toks.append(lg.issue())
    for ct in range(4):
        lg.wait(toks[ct])
        a.e(f"buffer_store_dwordx4 {vr(R+ct*4,4)}, v{V_L16}, {sr(SRD_RS,4)}, s{S_RST} offen offset:{ct*1024} sc1")
        t = vm.issue()
    return t

def wq_loads(a, vm):
    a.e(f"s_cmp_lt_u32 s2, 224")
    rp_srd_store(a)
    mk_srd(a, SRD_R, S_WQKV, 448 * 2688)
    a.e(f"s_min_u32 s{S_T5}, s2, 223")
    a.e(f"s_mul_i32 s{S_T0}, s{S_T5}, 4682")
    a.e(f"s_lshr_b32 s{S_T0}, s{S_T0}, 16")
    a.e(f"s_mul_i32 s{S_T1}, s{S_T0}, 14")
    a.e(f"s_sub_u32 s{S_T1}, s{S_T5}, s{S_T1}")
    a.e(f"v_lshrrev_b32 v4, 2, v{V_LANE}")
    a.e(f"v_mul_u32_u24 v5, 2688, v4")
    a.e(f"v_lshl_add_u32 v5, v3, 4, v5")
    a.e(f"s_mul_i32 s{S_T2}, s{S_T1}, {32*2688}")
    a.e(f"s_mul_i32 s{S_T3}, s{S_T0}, 56")
    a.e(f"s_add_u32 s{S_T2}, s{S_T2}, s{S_T3}")
    a.e(f"s_add_u32 s{S_T3}, s{S_T2}, {16*2688}")
    for i in range(6):
        seg, hf = i >> 1, i & 1
        so = S_T3 if hf else S_T2
        a.e(f"buffer_load_dwordx4 {vr(R+i*4,4)}, v5, {sr(SRD_R,4)}, s{so} offen offset:{seg*896}")
        vm.issue()
    a.e(f"s_lshl_b32 s{S_T4}, s{S_T1}, 6")
    a.e(f"v_lshl_add_u32 v6, v4, 1, s{S_T4}")
    a.e(f"global_load_ushort v{R+48}, v6, {sr(S_GATE,2)}")
    vm.issue()
    a.e(f"global_load_ushort v{R+49}, v6, {sr(S_GATE,2)} offset:32")
    vm.issue()
    a.e(f"v_mul_u32_u24 v{RV8}, 192, v4")
    a.e(f"v_lshl_add_u32 v{RV8}, v3, 4, v{RV8}")
    a.e(f"v_add_u32 v{RV8}, {L_RP}, v{RV8}")
    a.e(f"v_and_b32 v4, 1, v1")
    a.e(f"v_lshrrev_b32 v5, 1, v1")
    a.e(f"v_lshl_add_u32 v4, v4, 1, v5")
    a.e(f"v_lshl_add_u32 v{RV9}, v4, 3, v2")
    a.e(f"v_mul_u32_u24 v{RV9}, 192, v{RV9}")
    a.e(f"v_lshl_add_u32 v{RV9}, v3, 3, v{RV9}")
    a.e(f"v_add_u32 v{RV9}, {L_RP}, v{RV9}")
    a.e(f"s_lshl_b32 s{S_T0}, s{S_T0}, 7")
    a.e(f"s_lshl_b32 s{S_T1}, s{S_T1}, 2")
    a.e(f"s_add_u32 s{S_T0}, s{S_T0}, s{S_T1}")
    a.e(f"s_add_u32 s{S_RPF}, s{S_T0}, {WS_FWQ}")
    a.e(f"s_mul_i32 s{S_RST}, s{S_T5}, 6144")
    a.e(f"s_add_u32 s{S_RST}, s{S_RST}, {WS_WQR}")
    a.e(f"s_add_u32 s{S_RST2}, s{S_RST}, 4096")

def wq_proc(a, vm, lg):
    a.e(f"v_cmp_eq_u32 vcc, 3, v3")
    a.e("s_nop 1")
    for i in range(6):
        seg, hf = i >> 1, i & 1
        if seg == 0:
            a.e(f"v_cndmask_b32 v{R+i*4+2}, v{R+i*4+2}, v{R+48+hf}, vcc")
        else:
            a.e(f"v_cndmask_b32 v{R+i*4+2}, v{R+i*4+2}, v{V_ZERO}, vcc")
        a.e(f"v_cndmask_b32 v{R+i*4+3}, v{R+i*4+3}, v{V_ZERO}, vcc")
        a.e(f"ds_write_b128 v{RV8}, {vr(R+i*4,4)} offset:{hf*3072+seg*64}")
        lg.issue()
    Q = R + 24
    toks = []
    for c6 in range(6):
        for hh in range(2):
            a.e(f"ds_read_b64_tr_b16 {vr(Q+c6*4+hh*2,2)}, v{RV9} offset:{hh*768+c6*32}")
            tk = lg.issue()
        toks.append(tk)
    for c6 in range(6):
        so = S_RST if c6 < 4 else S_RST2
        lg.wait(toks[c6])
        a.e(f"buffer_store_dwordx4 {vr(Q+c6*4,4)}, v{V_L16}, {sr(SRD_RS,4)}, s{so} offen offset:{(c6%4)*1024} sc1")
        t = vm.issue()
    return t


def gen_p1(a, P):
    vm = Cnt(a, "vmcnt", 63)
    lg = Cnt(a, "lgkmcnt", 15)
    V_LANE = 0
    V_T = 1
    V_XR = 8
    V_FL = 12
    V_PROG = 13
    V_L16 = 14
    V_ZERO = 15
    V_TA = 16
    V_SO = 22
    V_BA = 23
    V_F = 24
    V_NONCE = 28
    V_SIG = 29
    V_PA, V_QA = 30, 31
    V_X = 32
    V_ACC = 144
    V_WR = 208
    V_E = 240
    NR = 8

    def X(c, ks):
        return V_X + (c * 14 + ks) * 4

    def ACC(t):
        return V_ACC + t * 16

    a.c("==== P1 program ====")
    stamp2(a, 1)
    if P["EXP"] & 2048:
        a.e("s_barrier")
        a.e("s_endpgm")
    if P["PRIO"]:
        a.e(f"s_setprio {P['PRIO']}")
    a.e(f"v_mov_b32 v{V_ZERO}, 0")
    a.e(f"v_mov_b32 v{V_FL}, {L_FL}")
    mk_srd(a, SRD_WS, S_WS, WS_END + 2048 * 64)
    a.e(f"v_lshlrev_b32 v{V_L16}, 4, v{V_LANE}")
    l_n3 = a.newlab("Lnot3")
    l_bj = a.newlab("Lbj")
    a.e(f"s_cmp_lg_u32 s{S_W}, 3")
    a.e(f"s_cbranch_scc1 {l_n3}")
    mk_srd(a, SRD_B, S_B1, 1792 * 2)
    mk_srd(a, SRD_O, S_WS, 0)
    a.e(f"v_lshlrev_b32 v4, 2, v{V_LANE}")
    a.e(f"s_lshl_b32 s{S_T3}, s{S_J}, 8")
    a.e(f"buffer_load_dword v5, v4, {sr(SRD_B,4)}, s{S_T3} offen")
    a.e(f"v_add_u32 v6, {L_FL}, v4")
    a.e(f"ds_write_b32 v6, v{V_ZERO}")
    init_barrier(a)
    a.e(f"v_lshlrev_b32 v6, 3, v{V_LANE}")
    a.e(f"v_add_u32 v6, {L_BIAS}, v6")
    a.e("s_waitcnt vmcnt(0)")
    a.e(f"v_lshlrev_b32 v2, 16, v5")
    a.e(f"v_and_b32 v3, 0xffff0000, v5")
    a.e(f"ds_write_b64 v6, v[2:3]")
    a.e(f"v_mov_b32 v2, 1")
    a.e("s_waitcnt lgkmcnt(0)")
    a.e("s_mov_b64 exec, 1")
    a.e(f"ds_write_b32 v{V_FL}, v2 offset:36")
    a.e("s_mov_b64 exec, -1")
    a.e(f"s_mov_b32 s{SRD_RS+2}, 0")
    a.e(f"s_mov_b32 s{S_RPF}, 0")
    a.e(f"s_branch {l_bj}")
    a.lab(l_n3)
    a.e(f"v_lshrrev_b32 v1, 4, v{V_LANE}")
    a.e(f"v_bfe_u32 v2, v{V_LANE}, 2, 2")
    a.e(f"v_and_b32 v3, 3, v{V_LANE}")
    l_wq = a.newlab("Lwq")
    a.e(f"s_cmp_eq_u32 s{S_W}, 0")
    a.e(f"s_cbranch_scc1 {l_wq}")
    w2_loads(a, vm)
    init_barrier(a)
    a.e(f"s_branch {l_bj}")
    a.lab(l_wq)
    wq_loads(a, vm)
    init_barrier(a)
    a.lab(l_bj)
    stamp2(a, 2)
    a.e(f"s_lshl_b32 s{S_T3}, s{S_W}, 2")
    a.e(f"s_add_u32 s{S_T3}, s{S_T3}, {L_FL}")
    mk_sig_addr(a, V_PROG, V_LANE, S_T3)
    a.e(f"v_and_b32 v1, 31, v{V_LANE}")
    a.e(f"v_lshrrev_b32 v2, 5, v{V_LANE}")
    a.e(f"v_bfe_u32 v3, v{V_LANE}, 1, 3")
    a.e(f"v_xor_b32 v3, v3, v2")
    a.e(f"v_lshlrev_b32 v3, 4, v3")
    a.e(f"v_lshl_add_u32 v3, v1, 7, v3")
    a.e(f"s_lshl_b32 s{S_T3}, s{S_W}, 12")
    a.e(f"v_add_u32 v{V_XR}, s{S_T3}, v3")
    for c in range(1, 4):
        a.e(f"v_xor_b32 v{V_XR+c}, {32*c}, v{V_XR}")
    a.e(f"v_lshlrev_b32 v{V_BA}, 4, v2")
    a.e(f"v_add_u32 v{V_BA}, {L_BIAS}, v{V_BA}")
    a.e(f"v_and_b32 v3, 15, v{V_LANE}")
    a.e(f"v_bfe_u32 v4, v{V_LANE}, 4, 1")
    a.e(f"v_lshlrev_b32 v3, 4, v3")
    a.e(f"v_lshl_add_u32 v3, v4, 10, v3")
    a.e(f"v_lshl_add_u32 v{V_SO}, v2, 8, v3")
    a.e(f"v_bfe_u32 v3, v{V_LANE}, 2, 2")
    a.e(f"v_lshl_add_u32 v5, v2, 3, v3")
    a.e(f"v_lshlrev_b32 v5, 7, v5")
    a.e(f"v_lshl_add_u32 v5, v4, 5, v5")
    a.e(f"v_and_b32 v6, 3, v{V_LANE}")
    a.e(f"v_lshl_add_u32 v5, v6, 3, v5")
    a.e(f"v_lshrrev_b32 v6, 1, v3")
    a.e(f"v_lshl_add_u32 v{V_TA}, v6, 6, v5")
    a.e(f"v_xor_b32 v{V_TA+1}, 64, v{V_TA}")
    for wi, wbase in ((1, L_WA), (2, L_WB)):
        for t in range(2):
            a.e(f"v_add_u32 v{V_TA+2*wi+t}, {wbase}, v{V_TA+t}")
    a.e(f"v_and_b32 v1, 15, v{V_LANE}")
    a.e(f"v_lshl_add_u32 v2, v4, 1, v2")
    a.e(f"v_lshrrev_b32 v3, 2, v1")
    a.e(f"v_lshlrev_b32 v4, 1, v3")
    a.e(f"v_mov_b32 v5, {P['FQ']}")
    a.e(f"v_lshrrev_b32 v4, v4, v5")
    a.e(f"v_and_b32 v4, 3, v4")
    a.e(f"v_xor_b32 v4, v4, v2")
    a.e(f"v_lshl_add_u32 v4, v1, 2, v4")
    a.e(f"v_lshlrev_b32 v4, 4, v4")
    a.e(f"v_add_u32 v4, 6144, v4")
    a.e(f"s_lshl_b32 s{S_T3}, s{S_W}, 10")
    a.e(f"s_add_u32 s{S_T3}, s{S_T3}, 2048")
    a.e(f"v_add_u32 v5, s{S_T3}, v{V_L16}")
    a.e(f"s_cmp_lt_u32 s{S_W}, 2")
    a.e(f"s_cselect_b64 vcc, -1, 0")
    a.e(f"v_cndmask_b32 v{V_PA}, v4, v5, vcc")
    a.e(f"v_cndmask_b32 v{V_QA}, v5, v4, vcc")
    a.e(f"s_lshr_b32 s{S_T3}, s{S_W}, 1")
    a.e(f"s_lshl_b32 s{S_RB}, s{S_M}, 1")
    a.e(f"s_add_u32 s{S_RB}, s{S_RB}, s{S_T3}")
    a.e(f"s_lshl_b32 s{S_T3}, s{S_RB}, 4")
    a.e(f"s_add_u32 s{S_T3}, s{S_T3}, s{S_J}")
    a.e(f"s_lshl_b32 s{S_T3}, s{S_T3}, 1")
    a.e(f"s_and_b32 s{S_T4}, s{S_W}, 1")
    a.e(f"s_add_u32 s{S_T3}, s{S_T3}, s{S_T4}")
    a.e(f"s_lshl_b32 s{S_T5}, s{S_T3}, 7")
    l_pq, l_pd = a.newlab("Lpq"), a.newlab("Lpd")
    a.e(f"s_cmp_eq_u32 s{S_W}, 3")
    a.e(f"s_cbranch_scc1 {l_pd}")
    a.e("s_waitcnt vmcnt(0)")
    stamp2(a, 3)
    a.e(f"s_cmp_eq_u32 s{S_W}, 0")
    a.e(f"s_cbranch_scc1 {l_pq}")
    w2_proc(a, vm, Cnt(a, "lgkmcnt", 15))
    a.e(f"s_branch {l_pd}")
    a.lab(l_pq)
    a.e(f"v_and_b32 v3, 3, v{V_LANE}")
    wq_proc(a, vm, Cnt(a, "lgkmcnt", 15))
    a.lab(l_pd)
    stamp2(a, 4)
    a.e(f"s_cmp_ge_u32 s{S_J}, 14")
    a.e(f"s_cbranch_scc1 L_p1_noa")

    xr_tok = {}

    def x_read1(p, cp):
        ks, c = 2 * p + (cp >> 1), cp & 1
        a.e(f"ds_read_b128 {vr(X(c,ks),4)}, v{V_XR+cp} offset:{(p%4)*16384}")
        xr_tok[(c, ks)] = lg.issue()

    def x_swap(ks, i):
        a.e(f"v_permlane16_swap_b32 v{X(0,ks)+i}, v{X(1,ks)+i}")

    a.e(f"s_mul_i32 s{S_T3}, s{S_RB}, 72")
    a.e(f"s_lshl_b32 s{S_T4}, s{S_J}, 1")
    a.e(f"s_add_u32 s{S_T3}, s{S_T3}, s{S_T4}")
    a.e(f"s_lshl_b32 s{S_T3}, s{S_T3}, 12")
    a.e(f"s_and_b32 s{S_T4}, s{S_W}, 1")
    a.e(f"s_lshl_b32 s{S_T4}, s{S_T4}, 11")
    a.e(f"s_add_u32 s{S_BASEA}, s{S_T3}, s{S_T4}")
    a.e(f"s_add_u32 s{S_FLA}, s{S_T5}, {WS_FA}")
    lds_wait_word(a, lg, V_FL, V_F, 36, 1)
    for t in range(4):
        for q in range(4):
            a.e(f"ds_read_b128 {vr(ACC(t)+4*q,4)}, v{V_BA} offset:{t*128+q*32}")
            btk = lg.issue()
    lg.wait(btk)
    stamp2(a, 5)

    LA = P["LA"]
    NF = 112
    rtok = {}
    fixed = {}
    bg = []

    def at(n, f):
        fixed.setdefault(max(n, -1), []).append(f)

    def need_of(ps, p):
        if ps == 0:
            return ITEM_CNT[("a", 2 * p + 1)]
        return ITEM_CNT[("b", 2 * p + 1)]

    def sched_check(n0, need):
        st = {}
        ok, spin = a.newlab("Lok"), a.newlab("Lspin")

        def f0():
            a.e(f"ds_read_b128 {vr(V_F,4)}, v{V_FL} offset:16")
            st["tok"] = lg.issue()

        def f1():
            lg.wait(st["tok"])
            a.e(f"v_min3_u32 v{V_F}, v{V_F}, v{V_F+1}, v{V_F+2}")

        def f2():
            a.e(f"v_min_u32 v{V_F}, v{V_F}, v{V_F+3}")

        def f3():
            a.e(f"v_cmp_gt_u32 vcc, {need}, v{V_F}")

        def f4():
            a.e(f"s_cbranch_vccnz {spin}")
            a.lab(ok)
            t = a.tail
            t.append(f"{spin}:")
            t.append(f"  s_mov_b32 s{S_SPIN}, 0")
            t.append(f"{spin}_l:")
            t.append(f"  ds_read_b128 {vr(V_F,4)}, v{V_FL} offset:16")
            t.append(f"  s_add_u32 s{S_SPIN}, s{S_SPIN}, 1")
            t.append(f"  s_cmp_gt_u32 s{S_SPIN}, {SPIN_MAX*8}")
            t.append(f"  s_waitcnt lgkmcnt(0)")
            t.append(f"  s_cbranch_scc1 {ok}")
            t.append(f"  v_min3_u32 v{V_F}, v{V_F}, v{V_F+1}, v{V_F+2}")
            t.append(f"  v_min_u32 v{V_F}, v{V_F}, v{V_F+3}")
            t.append(f"  v_cmp_gt_u32 vcc, {need}, v{V_F}")
            t.append(f"  s_cbranch_vccnz {spin}_l")
            t.append(f"  s_branch {ok}")
        at(n0 - 3 - P["CHK"], f0)
        at(n0 - 3, f1); at(n0 - 2, f2); at(n0 - 1, f3); at(n0, f4)

    def rd(n):
        ps, ks, c, t = n // 56, (n % 56) // 4, (n % 4) // 2, n % 2
        ad = (L_WA + ks * 4096) if ps == 0 else wb_addr(ks)
        wi, base = (1, L_WA) if ps == 0 else ((2, L_WB) if ks < 6 else (0, 0))
        off = ad - base + c * 2048
        d = V_WR + (n % NR) * 4
        a.e(f"ds_read_b64_tr_b16 {vr(d,2)}, v{V_TA+2*wi+t} offset:{off}")
        lg.issue()
        a.e(f"ds_read_b64_tr_b16 {vr(d+2,2)}, v{V_TA+2*wi+t} offset:{off+512}")
        rtok[n] = lg.issue()

    def epi_items(t):
        items = []
        blk = (t & 1) + 28 * (t >> 1)
        for u in range(2):
            e = V_E + ((2 * t + u) % 2) * 4
            for h in range(2):
                sreg = ACC(t) + 8 * u + 4 * h
                tm = V_E + 8 + 4 * h
                for i in range(4):
                    items.append(lambda i=i, sreg=sreg, tm=tm: a.e(f"v_max_f32 v{tm+i}, 0, v{sreg+i}"))
                for i in range(4):
                    items.append(lambda i=i, tm=tm: a.e(f"v_mul_f32 v{tm+i}, v{tm+i}, v{tm+i}"))
                items.append(lambda e=e, h=h, tm=tm: a.e(f"v_cvt_pk_bf16_f32 v{e+2*h}, v{tm}, v{tm+1}"))
                items.append(lambda e=e, h=h, tm=tm: a.e(f"v_cvt_pk_bf16_f32 v{e+2*h+1}, v{tm+2}, v{tm+3}"))

            def st(e=e, u=u):
                a.e(f"s_add_u32 s{S_T3}, s{S_BASEA}, {blk*4096}")
                a.e(f"buffer_store_dwordx4 {vr(e,4)}, v{V_SO}, {sr(SRD_WS,4)}, s{S_T3} offen offset:{u*512} sc1")
                vm.issue()
            items.append(st)
        return items

    def try_flag(srd=SRD_WS, so=S_FLA):
        sk = a.newlab("Ltf")
        a.e(f"s_getreg_b32 s{S_PG0}, hwreg(HW_REG_IB_STS)")
        a.e(f"s_and_b32 s{S_PG0}, s{S_PG0}, 0x00c0000f")
        a.e(f"s_or_b32 s{S_PG0}, s{S_PG0}, s{S_FDONE}")
        a.e(f"s_cbranch_scc1 {sk}")
        a.e("s_mov_b64 exec, 1")
        a.e(f"buffer_store_dword v{V_NONCE}, v{V_ZERO}, {sr(srd,4)}, s{so} offen sc1")
        a.e("s_mov_b64 exec, -1")
        a.e(f"s_mov_b32 s{S_FDONE}, 1")
        a.lab(sk)

    def force_flag(srd, so):
        sk = a.newlab("Lff")
        a.e(f"s_cmp_lg_u32 s{S_FDONE}, 0")
        a.e(f"s_cbranch_scc1 {sk}")
        a.e("s_waitcnt vmcnt(0)")
        a.e("s_mov_b64 exec, 1")
        a.e(f"buffer_store_dword v{V_NONCE}, v{V_ZERO}, {sr(srd,4)}, s{so} offen sc1")
        a.e("s_mov_b64 exec, -1")
        a.lab(sk)
        a.e(f"s_mov_b32 s{S_FDONE}, 0")

    a.e(f"s_mov_b32 s{S_FDONE}, 0")
    for ps in range(2):
        for p in range(7):
            n0 = ps * 56 + p * 8 - LA
            if ps == 0:
                sched_check(n0 - 2, need_of(ps, p))
                for cp in range(4):
                    at(n0 - 2 + cp // 2, lambda p=p, cp=cp: x_read1(p, cp))
            else:
                sched_check(n0, need_of(ps, p))

            def sig(ps=ps, p=p):
                if ps == 0:
                    lg.wait(xr_tok[(1, 2 * p + 1)])
                lds_signal(a, lg, V_PROG, V_SIG, ps * 7 + p + 1)
            at(ps * 56 + p * 8 + 1, sig)
    at(8 - LA, lambda: get_nonce(a, lg, V_FL, None, V_NONCE))
    for n in range(9 - LA, 50, P["TFN"]):
        at(n, lambda: try_flag(SRD_RS, S_RPF))
    at(52, lambda: force_flag(SRD_RS, S_RPF))
    at(58, lambda: bg.extend(epi_items(0) + epi_items(1)))
    for f in fixed.pop(-1, []):
        f()
    for n in range(LA):
        rd(n)
    stamp(a, 1)
    stamp2(a, 6)
    nswap = [0]
    for n in range(NF):
        ps, ks, c, t = n // 56, (n % 56) // 4, (n % 4) // 2, n % 2
        nfix = 0
        for f in fixed.pop(n, []):
            f()
            nfix += 1
        if n + LA < NF:
            rd(n + LA)
        if (P["EXP"] & 256) and n % 16 == 0 and n > 0:
            stamp(a, 1 + n // 16)
        lg.wait(rtok[n])
        lg.wait(xr_tok[(c, ks)])
        w = V_WR + (n % NR) * 4
        acc = ACC(2 * ps + t)
        a.e(f"v_mfma_f32_32x32x16_bf16 {vr(acc,16)}, {vr(w,4)}, {vr(X(c,ks),4)}, {vr(acc,16)}")
        budget = P["BGN"] - nfix
        had_bg = bool(bg)
        while bg and budget > 0:
            bg.pop(0)()
            budget -= 1
        if ps == 1 and not bg and not had_bg and n > 60:
            if n % P["TFN"] == 0:
                try_flag()
            elif budget > 0 and nswap[0] < 4 * ks and P["SWIN"]:
                x_swap(nswap[0] // 4, nswap[0] % 4)
                nswap[0] += 1
    assert not fixed and not bg, (fixed.keys(), len(bg))
    lds_signal(a, lg, V_PROG, V_SIG, 15)
    if P["EXP"] & 256:
        stamp_flush(a, 8)
        a.e("s_endpgm")
    stamp(a, 2)
    force_flag(SRD_WS, S_FLA)
    a.e("s_nop 7")
    for f in epi_items(2) + epi_items(3):
        f()
    while nswap[0] < 56:
        x_swap(nswap[0] // 4, nswap[0] % 4)
        nswap[0] += 1
    a.e(f"s_add_u32 s{S_T3}, s{S_FLA}, {FSTRIDE}")
    vm.drain()
    flag_store(a, vm, V_NONCE, V_ZERO, S_T3)
    stamp(a, 3)
    a.e("s_branch L_p1_b")
    a.lab("L_p1_noa")
    if P["EXP"] & 1024:
        a.e("s_endpgm")
    lg = Cnt(a, "lgkmcnt", 15)
    get_nonce(a, lg, V_FL, None, V_NONCE)
    a.e(f"s_mov_b32 s{S_FDONE}, 0")
    for p in range(7):
        if p == 2:
            force_flag(SRD_RS, S_RPF)
        lds_wait_min4(a, lg, V_FL, V_F, 16, need_of(0, p))
        for cp in range(4):
            x_read1(p, cp)
        lg.drain()
        lds_signal(a, lg, V_PROG, V_SIG, p + 1)
        for ks in (2 * p, 2 * p + 1):
            for i in range(4):
                x_swap(ks, i)
    lds_wait_min4(a, lg, V_FL, V_F, 16, A_OPS)
    lds_signal(a, lg, V_PROG, V_SIG, 15)
    get_nonce(a, lg, V_FL, None, V_NONCE)
    if P["EXP"] & 256:
        a.e("s_endpgm")
    stamp(a, 1); stamp(a, 2); stamp(a, 3)
    a.lab("L_p1_b")


def gen_p1_stage_b(a, P):
    vm = Cnt(a, "vmcnt", 63)
    lg = Cnt(a, "lgkmcnt", 15)
    V_LANE = 0
    V_T = 1
    V_FL = 12
    V_PROG = 13
    V_L16 = 14
    V_ZERO = 15
    V_SBA = 16
    V_F = 24
    V_NONCE = 28
    V_SIG = 29
    V_PA, V_QA = 30, 31
    V_X = 32
    V_ACC = 144
    V_HALO = 192
    V_WR = 196
    V_M = 236
    NR = 10

    def X(T, ks):
        return V_X + (T * 14 + ks) * 4

    def ACC(T, c):
        return V_ACC + (T * 6 + c) * 4

    a.c("==== P1 stage B ====")
    if P["EXP"] & 1:
        for i in range(4, 8):
            stamp(a, i)
        stamp_flush(a, 8)
        a.e("s_endpgm")
    a.e("s_waitcnt lgkmcnt(0)")
    bases = {0: 0, 1: L_WA, 2: L_WB}

    def reg_off(ks):
        ad = sb_addr(ks)
        k = 1 if ks < 8 else (0 if ks < 12 else 2)
        return k, ad - bases[k]
    for k, bv in bases.items():
        a.e(f"v_add_u32 v{V_SBA+k}, {bv}, v{V_L16}")
        a.e(f"v_add_u32 v{V_SBA+3+k}, {bv}, v{V_PA}")
        a.e(f"v_add_u32 v{V_M+17+k}, {bv}, v{V_QA}")
    VQ = V_M + 17
    V_MC = V_M
    V_MP = V_M + 4
    V_MP0 = V_M + 8
    a.e(f"v_and_b32 v1, 15, v{V_LANE}")
    a.e(f"v_lshrrev_b32 v2, 4, v{V_LANE}")
    a.e(f"v_lshlrev_b32 v2, 2, v2")
    a.e(f"v_sub_u32 v3, v1, v2")
    a.e(f"v_mov_b32 v4, 0xf149f2ca")
    a.e(f"s_or_b32 s{S_T3}, s{S_M}, s{S_W}")
    for e in range(4):
        a.e(f"v_subrev_u32 v5, {e}, v3")
        a.e(f"v_and_b32 v6, 0x80000001, v5")
        a.e(f"v_cmp_eq_u32 vcc, 0, v6")
        a.e("s_nop 1")
        a.e(f"v_cndmask_b32 v{V_MC+e}, v4, 0, vcc")
        a.e(f"v_sub_u32 v6, -2, v5")
        a.e(f"v_and_b32 v6, 0x80000001, v6")
        a.e(f"v_cmp_eq_u32 vcc, 0, v6")
        a.e("s_nop 1")
        a.e(f"v_cndmask_b32 v{V_MP+e}, v4, 0, vcc")
    a.e(f"s_cmp_eq_u32 s{S_T3}, 0")
    a.e(f"s_cselect_b64 vcc, -1, 0")
    for e in range(4):
        a.e(f"v_cndmask_b32 v{V_MP0+e}, v{V_MP+e}, v4, vcc")

    LA = P["LAB"]
    NFK = 8
    NF = 14 * NFK
    rtok = {}
    chk = set()
    pre = {}

    def rd(n):
        ks, c = divmod(n, NFK)
        if ks not in chk:
            chk.add(ks)
            lds_wait_min4(a, lg, V_FL, V_F, 16, A_OPS + 2 * (ks + 1), pre.get(ks))
        if c == 4 and ks + 1 < 14:
            a.e(f"ds_read_b128 {vr(V_F,4)}, {vr(V_FL)} offset:16")
            pre[ks + 1] = lg.issue()
        k, off = reg_off(ks)
        d = V_WR + (n % NR) * 4
        if c < 6:
            a.e(f"ds_read_b128 {vr(d,4)}, v{V_SBA+k} offset:{off + c*1024}")
        elif c == 6:
            a.e(f"ds_read_b128 {vr(d,4)}, v{V_SBA+3+k} offset:{off}")
        else:
            a.e(f"ds_read_b128 {vr(d,4)}, v{VQ+k} offset:{off}")
        rtok[n] = lg.issue()

    for n in range(LA):
        rd(n)
    stamp(a, 4)
    for n in range(NF):
        ks, c = divmod(n, NFK)
        if n + LA < NF:
            rd(n + LA)
        w = V_WR + (n % NR) * 4
        if c < 6:
            lg.wait(rtok[n])
            for T in range(2):
                C = None if ks == 0 else ACC(T, c)
                if c < 4:
                    mfma(a, ACC(T, c), w, X(T, ks), C)
                else:
                    mfma(a, ACC(T, c), X(T, ks), w, C)
        elif c == 7:
            lg.wait(rtok[n])
            wp = V_WR + ((n - 1) % NR) * 4
            mfma(a, V_HALO, wp, w, None if ks == 0 else V_HALO)

    a.c("---- attention ----")
    stamp(a, 5)
    R = V_X
    QF = [R, R + 4]
    KF = [R + 8, R + 12]
    KP = R + 16
    VV = [R + 20, R + 26]
    VPX = R + 32
    HX = R + 36
    VT1 = R + 40
    SC = [R + 44, R + 48]
    SP = [R + 52, R + 56]
    PF = [R + 60, R + 64]
    OO = [[R + 68, R + 72], [R + 76, R + 80]]
    OP = [R + 84, R + 88]
    TM = R + 92
    ZG = [R + 104, R + 105]
    GO = R + 106
    V_EXW, V_EXH, V_EXR = R + 108, R + 109, R + 110
    a.e(f"s_lshl_b32 s{S_T3}, s{S_W}, 11")
    a.e(f"s_add_u32 s{S_T3}, s{S_T3}, {L_XB}")
    a.e(f"v_add_u32 v{V_EXR}, s{S_T3}, v{V_L16}")
    a.e(f"v_add_u32 v{V_EXW}, 2048, v{V_EXR}")
    a.e(f"s_lshr_b32 s{S_T3}, s{S_W}, 1")
    a.e(f"s_lshl_b32 s{S_T3}, s{S_T3}, 10")
    a.e(f"s_and_b32 s{S_T4}, s{S_W}, 1")
    a.e(f"s_lshl_b32 s{S_T4}, s{S_T4}, 3")
    a.e(f"s_add_u32 s{S_T3}, s{S_T3}, s{S_T4}")
    a.e(f"s_add_u32 s{S_T3}, s{S_T3}, {L_XB}")
    a.e(f"v_add_u32 v{V_EXH}, s{S_T3}, v{V_L16}")
    a.e("s_nop 7")

    def pk(d, s):
        a.e(f"v_cvt_pk_bf16_f32 v{d}, v{s}, v{s+1}")
        a.e(f"v_cvt_pk_bf16_f32 v{d+1}, v{s+2}, v{s+3}")

    pk(KF[1], ACC(1, 2)); pk(KF[1] + 2, ACC(1, 3))
    pk(VT1, ACC(1, 4)); pk(VT1 + 2, ACC(1, 5))
    pk(HX, V_HALO)
    skip = a.newlab("Lnoex")
    a.e(f"s_cmp_eq_u32 s{S_W}, 3")
    a.e(f"s_cbranch_scc1 {skip}")
    a.e(f"ds_write_b128 v{V_EXW}, {vr(KF[1],4)}")
    a.e(f"ds_write_b128 v{V_EXW}, {vr(VT1,4)} offset:1024")
    a.lab(skip)
    a.e(f"ds_write_b64 v{V_EXH}, {vr(HX,2)}")
    a.e("s_waitcnt lgkmcnt(0)")
    lg.mark_drained()
    lds_signal(a, lg, V_PROG, V_SIG, 16)
    pk(QF[0], ACC(0, 0)); pk(QF[0] + 2, ACC(0, 1))
    pk(QF[1], ACC(1, 0)); pk(QF[1] + 2, ACC(1, 1))
    pk(KF[0], ACC(0, 2)); pk(KF[0] + 2, ACC(0, 3))
    for dt in range(2):
        pk(VV[dt] + 2, ACC(0, 4 + dt))
        a.e(f"v_mov_b32 v{VV[dt]+4}, v{VT1+2*dt}")
        a.e(f"v_mov_b32 v{VV[dt]+5}, v{VT1+2*dt+1}")
    a.e("s_nop 1")
    mfma(a, SC[1], KF[1], QF[1], None)
    mfma(a, SP[1], KF[0], QF[1], None)
    mfma(a, SC[0], KF[0], QF[0], None)
    for T in range(2):
        z = ACC(T, 1)
        a.e(f"v_mov_b32 v{TM}, v{z}")
        a.e(f"v_mov_b32 v{TM+1}, v{z}")
        a.e("s_nop 1")
        a.e(f"v_permlane32_swap_b32 v{TM}, v{TM+1}")
        a.e("s_nop 1")
        a.e(f"v_mov_b32 v{TM}, v{TM+1}")
        a.e("s_nop 1")
        a.e(f"v_permlane16_swap_b32 v{TM}, v{TM+1}")
        a.e("s_nop 1")
        a.e(f"v_mul_f32 v{TM+1}, 0xbfb8aa3b, v{TM+1}")
        a.e(f"v_exp_f32 v{TM+1}, v{TM+1}")
        a.e("s_nop 0")
        a.e(f"v_add_f32 v{TM+1}, 1.0, v{TM+1}")
        a.e(f"v_rcp_f32 v{ZG[T]}, v{TM+1}")
        a.e("s_nop 0")
        a.e(f"v_sub_f32 v{GO+T}, 1.0, v{ZG[T]}")
    CL = (28 ** -0.5) * 1.4426950408889634
    import struct
    clbits = struct.unpack("<I", struct.pack("<f", CL))[0]
    a.e(f"s_mov_b32 s{S_T3}, 0x{clbits:08x}")

    def xreduce(op, x):
        a.e(f"v_mov_b32 v{TM+8}, v{x}")
        a.e("s_nop 1")
        a.e(f"v_permlane32_swap_b32 v{x}, v{TM+8}")
        a.e("s_nop 1")
        a.e(f"{op} v{x}, v{x}, v{TM+8}")
        a.e(f"v_mov_b32 v{TM+8}, v{x}")
        a.e("s_nop 1")
        a.e(f"v_permlane16_swap_b32 v{x}, v{TM+8}")
        a.e("s_nop 1")
        a.e(f"{op} v{x}, v{x}, v{TM+8}")

    def softmax_pv(T):
        mp = V_MP if T == 1 else V_MP0
        for e in range(4):
            a.e(f"v_fma_f32 v{SP[T]+e}, v{SP[T]+e}, s{S_T3}, v{mp+e}")
            a.e(f"v_fma_f32 v{SC[T]+e}, v{SC[T]+e}, s{S_T3}, v{V_MC+e}")
        m = TM + 9
        a.e(f"v_max3_f32 v{m}, v{SP[T]}, v{SP[T]+1}, v{SP[T]+2}")
        a.e(f"v_max3_f32 v{m}, v{m}, v{SP[T]+3}, v{SC[T]}")
        a.e(f"v_max3_f32 v{m}, v{m}, v{SC[T]+1}, v{SC[T]+2}")
        a.e(f"v_max_f32 v{m}, v{m}, v{SC[T]+3}")
        xreduce("v_max_f32", m)
        for e in range(4):
            a.e(f"v_sub_f32 v{SP[T]+e}, v{SP[T]+e}, v{m}")
            a.e(f"v_sub_f32 v{SC[T]+e}, v{SC[T]+e}, v{m}")
        for e in range(4):
            a.e(f"v_exp_f32 v{SP[T]+e}, v{SP[T]+e}")
            a.e(f"v_exp_f32 v{SC[T]+e}, v{SC[T]+e}")
        a.e("s_nop 0")
        pk(PF[T], SP[T]); pk(PF[T] + 2, SC[T])
        s = TM + 10
        a.e(f"v_add_f32 v{s}, v{SP[T]}, v{SP[T]+1}")
        a.e(f"v_add_f32 v{s}, v{s}, v{SP[T]+2}")
        for dt in range(2):
            mfma(a, OO[T][dt], VV[dt] + 2 * T, PF[T], None)
        a.e(f"v_add_f32 v{s}, v{s}, v{SP[T]+3}")
        for e in range(4):
            a.e(f"v_add_f32 v{s}, v{s}, v{SC[T]+e}")
        xreduce("v_add_f32", s)
        a.e(f"v_rcp_f32 v{s}, v{s}")
        a.e("s_nop 0")
        a.e(f"v_mul_f32 v{s}, v{s}, v{ZG[T]}")
        for dt in range(2):
            for e in range(4):
                a.e(f"v_mul_f32 v{OO[T][dt]+e}, v{OO[T][dt]+e}, v{s}")
        pk(OP[T], OO[T][0]); pk(OP[T] + 2, OO[T][1])
        a.e(f"buffer_store_dwordx4 {vr(OP[T],4)}, v{V_L16}, {sr(SRD_WS,4)}, s{S_T4} offen offset:{T*1024} sc1")
        vm.issue()

    a.e(f"s_mul_i32 s{S_T4}, s{S_RB}, 72")
    a.e(f"s_add_u32 s{S_T4}, s{S_T4}, s{S_J}")
    a.e(f"s_add_u32 s{S_T4}, s{S_T4}, 56")
    a.e(f"s_lshl_b32 s{S_T4}, s{S_T4}, 12")
    a.e(f"s_and_b32 s{S_T0}, s{S_W}, 1")
    a.e(f"s_lshl_b32 s{S_T1}, s{S_T0}, 11")
    a.e(f"s_add_u32 s{S_T4}, s{S_T4}, s{S_T1}")
    softmax_pv(1)
    a.e(f"s_lshl_b32 s{S_T1}, s{S_J}, 5")
    a.e(f"s_add_u32 s{S_T1}, s{S_T1}, s{S_RB}")
    a.e(f"s_lshl_b32 s{S_T1}, s{S_T1}, 8")
    a.e(f"s_lshl_b32 s{S_T0}, s{S_T0}, 3")
    a.e(f"s_add_u32 s{S_T1}, s{S_T1}, s{S_T0}")
    a.e(f"s_add_u32 s{S_T1}, s{S_T1}, {WS_G}")
    a.e("s_mov_b64 exec, 0xffff")
    a.e(f"buffer_store_dwordx2 {vr(GO,2)}, v{V_L16}, {sr(SRD_WS,4)}, s{S_T1} offen sc1")
    vm.issue()
    a.e("s_mov_b64 exec, -1")
    lds_wait_min4(a, lg, V_FL, V_F, 0, 16)
    a.e(f"ds_read_b128 {vr(KP,4)}, v{V_EXR}")
    a.e(f"ds_read_b128 {vr(VPX,4)}, v{V_EXR} offset:1024")
    a.e("s_waitcnt lgkmcnt(0)")
    lg.issue(); lg.issue(); lg.mark_drained()
    lds_signal(a, lg, V_PROG, V_SIG, 17)
    mfma(a, SP[0], KP, QF[0], None)
    for dt in range(2):
        a.e(f"v_mov_b32 v{VV[dt]}, v{VPX+2*dt}")
        a.e(f"v_mov_b32 v{VV[dt]+1}, v{VPX+2*dt+1}")
    a.e("s_nop 4")
    softmax_pv(0)
    a.e(f"s_add_u32 s{S_T3}, s{S_T5}, {WS_FA + 2*FSTRIDE}")
    stamp(a, 6)
    vm.drain()
    flag_store(a, vm, V_NONCE, V_ZERO, S_T3)
    stamp(a, 7)
    stamp_flush(a, 8)
    a.e("s_endpgm")


def gen_p2(a, P):
    vm = Cnt(a, "vmcnt", 63)
    lg = Cnt(a, "lgkmcnt", 15)
    V_LANE = 0
    V_T = 1
    V_L16 = 10
    V_ZERO = 11
    V_FL = 12
    V_NONCE = 13
    V_SIG = 14
    V_BF = 15
    V_F = 16
    V_P0, V_P1 = 20, 21
    V_PO0, V_PO1 = 22, 23
    V_G = 24
    V_HO = 28
    V_ACC = 32
    V_POOL = 96
    NSLOT = 10

    def ACC(ct, rt):
        return V_ACC + (ct * 4 + rt) * 4

    a.c("==== P2 program ====")
    V_XO, V_WO, V_BO = 29, 30, 31
    SRD_L = SRD_O
    S_EXM = 74
    S_XS, S_W0, S_W1s = 76, 77, 78
    S_BA, S_BB, S_BSTEP = 76, 77, 78
    mk_srd(a, SRD_X, S_X, 2048 * 896)
    a.e(f"s_lshl_b32 s{S_T0}, s{S_M}, 7")
    a.e(f"s_lshl_b32 s{S_T1}, s{S_W}, 5")
    a.e(f"s_add_u32 s{S_T0}, s{S_T0}, s{S_T1}")
    a.e(f"v_lshrrev_b32 v1, 3, v{V_LANE}")
    a.e(f"v_add_u32 v1, s{S_T0}, v1")
    a.e(f"v_mul_u32_u24 v1, 896, v1")
    a.e(f"v_and_b32 v2, 7, v{V_LANE}")
    a.e(f"v_lshrrev_b32 v3, 4, v{V_LANE}")
    a.e(f"v_xor_b32 v2, v2, v3")
    a.e(f"v_lshl_add_u32 v{V_XO}, v2, 4, v1")
    a.e(f"v_xor_b32 v{V_BO}, 64, v{V_XO}")
    mk_srd(a, SRD_A, S_W1, 448 * 3584)
    a.e(f"s_cmp_ge_u32 s{S_J}, 14")
    a.e(f"s_cselect_b32 s{SRD_A+2}, 0, s{SRD_A+2}")
    a.e(f"v_and_b32 v6, 1, v3")
    a.e(f"v_lshlrev_b32 v6, 2, v6")
    a.e(f"v_and_b32 v7, 7, v{V_LANE}")
    a.e(f"v_xor_b32 v6, v6, v7")
    a.e(f"s_lshl_b32 s{S_T3}, s{S_W}, 3")
    a.e(f"v_lshrrev_b32 v4, 3, v{V_LANE}")
    a.e(f"v_add_u32 v4, s{S_T3}, v4")
    a.e(f"v_mul_u32_u24 v4, 3584, v4")
    a.e(f"v_lshl_add_u32 v4, v6, 4, v4")
    a.e(f"s_lshl_b32 s{S_T3}, s{S_J}, 8")
    a.e(f"v_add_u32 v{V_WO}, s{S_T3}, v4")
    a.e(f"s_and_b32 s{S_ROT}, s{S_IDX}, 7")
    a.e(f"s_lshr_b32 s{S_T3}, s{S_IDX}, 3")
    a.e(f"s_lshl_b32 s{S_T3}, s{S_T3}, 1")
    a.e(f"s_add_u32 s{S_ROT}, s{S_ROT}, s{S_T3}")
    a.e(f"s_sub_u32 s{S_T3}, s{S_ROT}, 7")
    a.e(f"s_cmp_ge_u32 s{S_ROT}, 7")
    a.e(f"s_cselect_b32 s{S_ROT}, s{S_T3}, s{S_ROT}")
    if not P["ROT"]:
        a.e(f"s_mov_b32 s{S_ROT}, 0")
    S_LX, S_LW = 78, 79
    a.e(f"s_lshl_b32 s{S_LX}, s{S_W}, 12")
    a.e(f"s_lshl_b32 s{S_LW}, s{S_W}, 10")
    mk_srd(a, SRD_WS, S_WS, WS_END + 2048 * 64)
    a.e(f"v_lshlrev_b32 v{V_L16}, 4, v{V_LANE}")
    a.e(f"v_mov_b32 v{V_ZERO}, 0")
    a.e(f"v_mov_b32 v{V_FL}, {L_FL}")
    a.e(f"s_lshl_b32 s{S_T0}, s{S_W}, 2")
    a.e(f"s_add_u32 s{S_T0}, s{S_T0}, {L_FL+16}")
    mk_sig_addr(a, V_BF, V_LANE, S_T0)
    if P["EXP"] & 1024:
        a.e("s_barrier")
        a.e("s_endpgm")

    def loader_a(rtype):
        vm = Cnt(a, "vmcnt", 63)
        lg = Cnt(a, "lgkmcnt", 15)
        tok = {}
        sig = [0]

        pg = Prog(a, vm, lg, V_BF, V_SIG)
        rl_tok = 0
        st_tok = None
        waited = 0
        barrier_done = False
        for idx, (kind, i, ops, step) in enumerate(ITEMS):
            if idx == 0:
                stamp2(a, 1)
            if idx == 3:
                init_barrier(a)
                barrier_done = True
                stamp2(a, 2)
            if idx == 12:
                stamp2(a, 3)
            if idx == 13:
                stamp2(a, 4)
            if idx == 21:
                stamp2(a, 5)
            if step > waited and not (P["EXP"] & 2048):
                pg.wait_prog(V_FL, V_F, step)
                waited = step
            if kind == "x" or (kind == "b" and i % 2 == 0):
                if i == 0:
                    a.e(f"s_mov_b32 s{S_PP}, s{S_ROT}")
                else:
                    a.e(f"s_add_u32 s{S_PP}, s{S_PP}, 1")
                    a.e(f"s_cmp_eq_u32 s{S_PP}, 7")
                    a.e(f"s_cselect_b32 s{S_PP}, 0, s{S_PP}")
                a.e(f"s_mul_i32 s{S_PB}, s{S_PP}, {64*3584}")
            if kind == "x":
                a.e(f"s_add_u32 m0, s{S_LX}, {(i%4)*16384}")
                a.e(f"s_lshl_b32 s{S_SO1}, s{S_PP}, 7")
                for q in range(4):
                    a.e(f"s_add_u32 s{S_SO0}, s{S_SO1}, {q*(8*896-1024)}")
                    vo = V_BO if q & 1 else V_XO
                    a.e(f"buffer_load_dwordx4 v{vo}, {sr(SRD_X,4)}, s{S_SO0} offen offset:{q*1024} lds")
                    last = vm.issue()
                    if barrier_done and q % 2 == 1:
                        pg.publish()
            else:
                ad = L_WA + i * 4096 if kind == "a" else wb_addr(i)
                a.e(f"s_add_u32 m0, s{S_LW}, {ad}")
                a.e(f"s_add_u32 s{S_SO0}, s{S_PB}, {32*(i%2)*3584 + (128 if kind == 'b' else 0)}")
                a.e(f"buffer_load_dwordx4 v{V_WO}, {sr(SRD_A,4)}, s{S_SO0} offen lds")
                last = vm.issue()
                if barrier_done and i % 2 == 1:
                    pg.publish()
        stamp2(a, 6)
        pg.wait_tok(last)
        pg.publish()

    loader_a("n")

    def stage_b_setup():
        a.e(f"s_and_b32 s{S_RB}, s{S_IDX}, 3")
        a.e(f"s_lshl_b32 s{S_T0}, s{S_XCD}, 2")
        a.e(f"s_add_u32 s{S_RB}, s{S_RB}, s{S_T0}")
        a.e(f"s_lshr_b32 s{S_NT}, s{S_IDX}, 2")
        a.e(f"v_and_b32 v3, 3, v{V_LANE}")
        a.e(f"v_lshrrev_b32 v4, 2, v{V_LANE}")
        a.e(f"v_lshrrev_b32 v5, 4, v{V_LANE}")
        a.e(f"v_lshlrev_b32 v5, 1, v5")
        a.e(f"v_mov_b32 v6, {P['FQ']}")
        a.e(f"v_lshrrev_b32 v5, v5, v6")
        a.e(f"v_and_b32 v5, 3, v5")
        a.e(f"v_xor_b32 v5, v5, v3")
        a.e(f"s_lshl_b32 s{S_T0}, s{S_M}, 7")
        a.e(f"s_sub_u32 s{S_T0}, s{S_T0}, 16")
        a.e(f"s_max_i32 s{S_T0}, s{S_T0}, 0")
        a.e(f"v_add_u32 v4, s{S_T0}, v4")
        a.e(f"v_mul_u32_u24 v4, 896, v4")
        a.e(f"v_lshl_add_u32 v4, v5, 4, v4")
        a.e(f"v_mov_b32 v5, 0x40000000")
        a.e(f"s_cmp_eq_u32 s{S_M}, 0")
        a.e(f"s_cselect_b64 vcc, -1, 0")
        a.e(f"v_cndmask_b32 v{V_HO}, v4, v5, vcc")
        a.e(f"s_cmp_lt_u32 s{S_W}, 2")
        a.e(f"s_cselect_b64 vcc, -1, 0")
        a.e(f"v_cndmask_b32 v{V_HO}, v{V_HO}, v{V_L16}, vcc")
        a.e(f"s_cselect_b32 s{SRD_L}, s{SRD_WS}, s{SRD_X}")
        a.e(f"s_cselect_b32 s{SRD_L+1}, s{SRD_WS+1}, s{SRD_X+1}")
        a.e(f"s_cselect_b32 s{SRD_L+2}, s{SRD_WS+2}, s{SRD_X+2}")
        a.e(f"s_mov_b32 s{SRD_L+3}, 0x00020000")
        a.e(f"s_cselect_b32 s{S_BSTEP}, 6144, 64") if False else None
        a.e(f"s_mov_b32 s{S_T0}, 6144")
        a.e(f"s_cselect_b32 s{S_BSTEP}, s{S_T0}, 64")
        a.e(f"s_mul_i32 s{S_BA}, s{S_J}, {14*6144}")
        a.e(f"s_lshl_b32 s{S_T0}, s{S_W}, 10")
        a.e(f"s_add_u32 s{S_BA}, s{S_BA}, s{S_T0}")
        a.e(f"s_add_u32 s{S_BA}, s{S_BA}, {WS_WQR}")
        a.e(f"s_add_u32 s{S_T1}, s{S_BA}, 4096")
        a.e(f"s_cmp_lt_u32 s{S_W}, 2")
        a.e(f"s_cselect_b32 s{S_BB}, s{S_T1}, 0")
        a.e(f"s_add_u32 s{S_T1}, s{S_T0}, 4096")
        a.e(f"s_min_u32 s{S_T5}, s{S_T1}, 6144")
        a.e(f"s_mov_b32 s{S_T4}, s{S_T0}")
        a.e(f"s_cmp_eq_u32 s{S_W}, 3")
        a.e(f"s_cselect_b32 s{S_EXM}, 0, -1")
        a.e(f"s_cmp_eq_u32 s{S_W}, 2")
        a.e(f"s_cselect_b32 s{S_EXM+1}, 0, -1")
        a.e(f"v_min_u32 v{V_PO0}, 13, v{V_LANE}")
        a.e(f"v_lshlrev_b32 v{V_PO0}, 2, v{V_PO0}")
        a.e(f"v_min_u32 v{V_PO1}, 17, v{V_LANE}")
        a.e(f"v_lshlrev_b32 v{V_PO1}, 2, v{V_PO1}")
        a.e(f"s_lshl_b32 s{S_T0}, s{S_J}, 7")
        a.e(f"s_add_u32 s{S_T0}, s{S_T0}, {WS_FWQ}")
        a.e(f"s_min_u32 s{S_T1}, s{S_NT}, 6")
        a.e(f"s_lshl_b32 s{S_T1}, s{S_T1}, 2")
        a.e(f"s_add_u32 s{S_T1}, s{S_T1}, s{S_W}")
        a.e(f"s_lshl_b32 s{S_T1}, s{S_T1}, 7")
        a.e(f"s_add_u32 s{S_T1}, s{S_T1}, {WS_FW2}")

    stamp(a, 1)
    if P["EXP"] & 1:
        for i in range(2, 8):
            stamp(a, i)
        stamp_flush(a, 8)
        a.e("s_endpgm")
    vm = Cnt(a, "vmcnt", 63)
    lg = Cnt(a, "lgkmcnt", 15)
    stage_b_setup()
    get_nonce(a, lg, V_FL, None, V_NONCE)
    flag_poll(a, vm, [(V_P0, V_PO0, S_T0), (V_P1, V_PO1, S_T1)], V_NONCE)
    stamp(a, 2)
    btok_ = {}
    vm = Cnt(a, "vmcnt", 63)
    pgb = Prog(a, vm, lg, V_BF, V_SIG, base=A_OPS)
    bw = [5]

    for ks in range(14):
        if sb_free_step(ks) > bw[0]:
            bw[0] = sb_free_step(ks)
            pgb.wait_prog(V_FL, V_F, bw[0])
        if ks == 0:
            a.e(f"s_lshl_b32 s{S_PP}, s{S_ROT}, 1")
        else:
            a.e(f"s_add_u32 s{S_PP}, s{S_PP}, 1")
            a.e(f"s_cmp_eq_u32 s{S_PP}, 14")
            a.e(f"s_cselect_b32 s{S_PP}, 0, s{S_PP}")
        a.e(f"s_mul_i32 s{S_SO0}, s{S_PP}, 6144")
        a.e(f"s_add_u32 s{S_SO0}, s{S_SO0}, s{S_BA}")
        a.e(f"s_mul_i32 s{S_SO1}, s{S_PP}, s{S_BSTEP}")
        a.e(f"s_add_u32 s{S_SO1}, s{S_SO1}, s{S_BB}")
        a.e(f"s_add_u32 m0, s{S_T4}, {sb_addr(ks)}")
        a.e("s_nop 0")
        a.e(f"buffer_load_dwordx4 v{V_L16}, {sr(SRD_WS,4)}, s{S_SO0} offen sc1 lds")
        vm.issue()
        a.e(f"s_add_u32 m0, s{S_T5}, {sb_addr(ks)}")
        a.e(f"s_mov_b64 exec, {sr(S_EXM,2)}")
        a.e(f"buffer_load_dwordx4 v{V_HO}, {sr(SRD_L,4)}, s{S_SO1} offen sc1 lds")
        btok_[ks] = vm.issue()
        a.e("s_mov_b64 exec, -1")
        if ks > 0:
            pgb.publish()
    stamp(a, 3)
    l_noP2 = a.newlab("LnoP2")
    a.e(f"s_cmp_ge_u32 s{S_NT}, 7")
    a.e(f"s_cbranch_scc1 {l_noP2}")
    import copy
    vm_snap = (vm.n, vm.done)
    pgb.extra.append((vm.n, 1000))

    a.e(f"s_mul_i32 s{S_BASEA}, s{S_RB}, {72*4096}")
    a.e(f"s_mul_i32 s{S_BASEW}, s{S_NT}, {72*4096}")
    a.e(f"s_add_u32 s{S_BASEW}, s{S_BASEW}, {WS_W2R}")
    a.e(f"s_mul_i32 s{S_T0}, s{S_W}, {7*4096}")
    a.e(f"s_lshl_b32 s{S_T1}, s{S_W}, 14")
    a.e(f"s_add_u32 s{S_T1}, s{S_T1}, {56*4096}")
    S_AH, S_AO, S_WH, S_WO_ = 74, 75, 76, 77
    a.e(f"s_add_u32 s{S_AH}, s{S_BASEA}, s{S_T0}")
    a.e(f"s_add_u32 s{S_AO}, s{S_BASEA}, s{S_T1}")
    a.e(f"s_add_u32 s{S_WH}, s{S_BASEW}, s{S_T0}")
    a.e(f"s_add_u32 s{S_WO_}, s{S_BASEW}, s{S_T1}")

    S_RO = 84
    a.e(f"s_and_b32 s{S_T0}, s{S_RB}, 3")
    a.e(f"s_lshl_b32 s{S_T0}, s{S_T0}, 1")
    a.e(f"s_add_u32 s{S_T0}, s{S_T0}, s{S_NT}")
    a.e(f"s_sub_u32 s{S_T1}, s{S_T0}, 7")
    a.e(f"s_cmp_ge_u32 s{S_T0}, 7")
    a.e(f"s_cselect_b32 s{S_T0}, s{S_T1}, s{S_T0}")
    if not P["ROT2"]:
        a.e(f"s_mov_b32 s{S_T0}, 0")
    for i in range(7):
        a.e(f"s_lshl_b32 s{S_RO2+i}, s{S_T0}, 12")
        if i < 6:
            a.e(f"s_add_u32 s{S_T0}, s{S_T0}, 1")
            a.e(f"s_cmp_eq_u32 s{S_T0}, 7")
            a.e(f"s_cselect_b32 s{S_T0}, 0, s{S_T0}")
    free = list(range(NSLOT))
    wslot, aslot, wtok, atok = {}, {}, {}, {}

    def load_items(kind, i):
        s = free.pop(0)
        base = V_POOL + s * 16
        if kind == "W":
            sb = S_WH if i < 14 else S_WO_
            wslot[i] = s
        else:
            sb = S_AH if i < 14 else S_AO
            aslot[i] = s
        off = (i if i < 7 else (28 + i - 7 if i < 14 else i - 14)) * 4096
        so = S_SO0 if kind == "W" else S_SO1

        def one(q):
            if q == 0:
                if i < 14:
                    a.e(f"s_add_u32 s{so}, s{sb}, s{S_RO2 + i % 7}")
                    if i >= 7:
                        a.e(f"s_add_u32 s{so}, s{so}, {28*4096}")
                else:
                    a.e(f"s_add_u32 s{so}, s{sb}, {off}")
            a.e(f"buffer_load_dwordx4 {vr(base+q*4,4)}, v{V_L16}, {sr(SRD_WS,4)}, s{so} offen offset:{q*1024} sc1")
            tok = vm.issue()
            (wtok if kind == "W" else atok)[(i, q)] = tok
        return [lambda q=q: one(q) for q in range(4)]

    def load_blk(kind, i):
        for f in load_items(kind, i):
            f()

    NWPRE = P["NWPRE"]
    npre_ops = NWPRE * 4
    mk_srd(a, SRD_B, S_B2, 448 * 2)
    a.e(f"v_lshrrev_b32 v4, 4, v{V_LANE}")
    a.e(f"s_lshl_b32 s{S_T0}, s{S_NT}, 7")
    a.e(f"v_lshl_add_u32 v4, v4, 3, s{S_T0}")
    a.e(f"v_mov_b32 v5, 0x40000000")
    a.e(f"s_cmp_eq_u32 s{S_W}, 0")
    a.e(f"s_cselect_b64 vcc, -1, 0")
    a.e(f"v_cndmask_b32 v4, v5, v4, vcc")
    VB = V_POOL + (NSLOT - 1) * 16
    for ct in range(4):
        a.e(f"buffer_load_dwordx2 {vr(VB+2*ct,2)}, v4, {sr(SRD_B,4)}, 0 offen offset:{ct*32}")
        btok = vm.issue()
    for i in range(NWPRE):
        load_blk("W", i)
        pgb.publish()
    pgb.wait_tok(btok_[13])
    pgb.publish()
    stamp(a, 4)
    vm.wait(btok)
    for ct in range(4):
        d = ACC(ct, 0)
        a.e(f"v_lshlrev_b32 v{d}, 16, v{VB+2*ct}")
        a.e(f"v_and_b32 v{d+1}, 0xffff0000, v{VB+2*ct}")
        a.e(f"v_lshlrev_b32 v{d+2}, 16, v{VB+2*ct+1}")
        a.e(f"v_and_b32 v{d+3}, 0xffff0000, v{VB+2*ct+1}")
        for rt in range(1, 4):
            for i in range(4):
                a.e(f"v_mov_b32 v{ACC(ct,rt)+i}, v{d+i}")
    S_FBO, S_GO, S_FA2 = 78, 79, 6
    a.e(f"s_mul_i32 s{S_T0}, s{S_W}, 7")
    a.e(f"s_lshr_b32 s{S_T0}, s{S_T0}, 1")
    a.e(f"s_lshl_b32 s{S_T0}, s{S_T0}, 8")
    a.e(f"s_lshl_b32 s{S_T1}, s{S_RB}, 12")
    a.e(f"s_add_u32 s{S_T0}, s{S_T0}, s{S_T1}")
    a.e(f"s_add_u32 s{S_T0}, s{S_T0}, {WS_FA}")
    a.e(f"s_add_u32 s{S_FA2}, s{S_T0}, {FSTRIDE}")
    a.e(f"v_and_b32 v{V_PO0}, 7, v{V_LANE}")
    a.e(f"v_lshlrev_b32 v{V_PO0}, 7, v{V_PO0}")
    a.e(f"s_lshl_b32 s{S_T2}, s{S_W}, 10")
    a.e(f"s_add_u32 s{S_FBO}, s{S_T2}, s{S_T1}")
    a.e(f"s_add_u32 s{S_FBO}, s{S_FBO}, {WS_FA + 2*FSTRIDE}")
    a.e(f"s_lshl_b32 s{S_T2}, s{S_W}, 7")
    a.e(f"s_add_u32 s{S_T2}, s{S_T2}, s{S_RB}")
    a.e(f"s_lshl_b32 s{S_T2}, s{S_T2}, 8")
    a.e(f"s_add_u32 s{S_GO}, s{S_T2}, {WS_G}")
    a.e(f"v_and_b32 v{V_PO1}, 15, v{V_LANE}")
    a.e(f"v_lshlrev_b32 v{V_PO1}, 4, v{V_PO1}")
    flag_poll(a, vm, [(V_P0, V_PO0, S_T0)], V_NONCE)
    stamp(a, 5)

    NB = 18
    nextA, nextW = 0, NWPRE
    ptok = {}
    checked = set()
    g_tok = [None]
    gate = {7: (S_FA2, V_P0, P["FA2P"]), 14: (S_FBO, V_P1, P["FBP"])}

    def async_check(first):
        if first in checked:
            return
        checked.add(first)
        so, vreg, _ = gate[first]
        vm.wait(ptok[first])
        ok, slow = a.newlab("Lfok"), a.newlab("Lfslow")
        a.e(f"v_cmp_ne_u32 vcc, v{vreg}, v{V_NONCE}")
        a.e(f"s_cbranch_vccnz {slow}")
        a.lab(ok)
        t = a.tail
        t.append(f"{slow}:")
        t.append(f"  s_mov_b32 s{S_SPIN}, 0")
        t.append(f"{slow}_l:")
        t.append(f"  buffer_load_dword v{vreg}, v{V_PO0}, {sr(SRD_WS,4)}, s{so} offen sc1")
        t.append(f"  s_add_u32 s{S_SPIN}, s{S_SPIN}, 1")
        t.append(f"  s_cmp_gt_u32 s{S_SPIN}, {SPIN_MAX}")
        t.append(f"  s_waitcnt vmcnt(0)")
        t.append(f"  s_cbranch_scc1 {ok}")
        t.append(f"  v_cmp_ne_u32 vcc, v{vreg}, v{V_NONCE}")
        t.append(f"  s_cbranch_vccz {ok}")
        t.append(f"  s_sleep 1")
        t.append(f"  s_branch {slow}_l")
        if first == 14:
            a.e(f"buffer_load_dwordx4 {vr(V_G,4)}, v{V_PO1}, {sr(SRD_WS,4)}, s{S_GO} offen sc1")
            g_tok[0] = vm.issue()

    def plan_refill(cur):
        nonlocal nextA, nextW
        out = []
        while free:
            a_blocked = nextA in gate and (nextA not in ptok or gate[nextA][2] + P["PLAG"] > cur)
            if nextW < NB and (nextW <= nextA or nextA >= NB or a_blocked):
                out += load_items("W", nextW); nextW += 1
            elif nextA < NB and not a_blocked:
                if nextA in gate:
                    out.append(lambda f=nextA: async_check(f))
                out += load_items("A", nextA); nextA += 1
            else:
                break
        return out

    for f in plan_refill(-1):
        f()
    pend = []
    for i in range(NB):
        if i == 14:
            vm.wait(g_tok[0])
            a.e("s_nop 7")
            for ct in range(4):
                for rt in range(4):
                    for e in range(4):
                        a.e(f"v_mul_f32 v{ACC(ct,rt)+e}, v{ACC(ct,rt)+e}, v{V_G+rt}")
            a.e("s_nop 1")
        while (i, 3) not in atok or (i, 3) not in wtok:
            if not pend:
                pend = plan_refill(99)
            pend.pop(0)()
        wb, ab = V_POOL + wslot[i] * 16, V_POOL + aslot[i] * 16
        k = 0
        for ct in range(4):
            for rt in range(4):
                vm.wait(max(wtok[(i, ct)], atok[(i, rt)]))
                mfma(a, ACC(ct, rt), wb + ct * 4, ab + rt * 4, ACC(ct, rt))
                k += 1
                if k % 2 == 0 and pend:
                    pend.pop(0)()
        for f in pend:
            f()
        free.append(wslot[i]); free.append(aslot[i])
        for first, (so, vreg, pb) in gate.items():
            if i == pb:
                a.e(f"buffer_load_dword v{vreg}, v{V_PO0}, {sr(SRD_WS,4)}, s{so} offen sc1")
                ptok[first] = vm.issue()
        pend = plan_refill(i)

    a.c("---- reduction ----")
    stamp(a, 6)
    lds_wait_min4(a, lg, V_FL, V_F, 0, 17)
    a.e(f"v_and_b32 v1, 15, v{V_LANE}")
    a.e(f"v_lshrrev_b32 v2, 4, v{V_LANE}")
    a.e(f"s_lshl_b32 s{S_T0}, s{S_W}, 12")
    a.e(f"v_lshl_add_u32 v2, v2, 8, s{S_T0}")
    for ct in range(4):
        a.e(f"v_add_u32 v3, {4*ct}, v1")
        a.e(f"v_and_b32 v3, 15, v3")
        a.e(f"v_lshl_add_u32 v{4+ct}, v3, 4, v2")
    a.e("s_nop 4")
    for rt in range(4):
        for ct in range(4):
            a.e(f"ds_write_b128 v{4+ct}, {vr(ACC(ct,rt),4)} offset:{L_RED + rt*16384 + ct*1024}")
    a.e(f"v_lshrrev_b32 v1, 2, v{V_LANE}")
    a.e(f"v_and_b32 v2, 3, v{V_LANE}")
    a.e(f"v_lshl_add_u32 v3, v2, 2, v1")
    a.e(f"v_and_b32 v3, 15, v3")
    a.e(f"v_lshlrev_b32 v3, 4, v3")
    a.e(f"v_lshl_add_u32 v3, v2, 10, v3")
    a.e(f"s_lshl_b32 s{S_T0}, s{S_W}, 14")
    a.e(f"v_add_u32 v8, s{S_T0}, v3")
    mk_srd(a, SRD_O, S_OUT, 2048 * 896)
    a.e(f"s_lshl_b32 s{S_T0}, s{S_RB}, 6")
    a.e(f"s_lshl_b32 s{S_T1}, s{S_W}, 4")
    a.e(f"s_add_u32 s{S_T0}, s{S_T0}, s{S_T1}")
    a.e(f"v_add_u32 v1, s{S_T0}, v1")
    a.e(f"v_mul_u32_u24 v1, 896, v1")
    a.e(f"v_lshl_add_u32 v9, v2, 5, v1")
    a.e(f"s_lshl_b32 s{S_T1}, s{S_NT}, 7")
    a.e("s_waitcnt lgkmcnt(0)")
    a.e("s_barrier")
    RD = V_POOL
    for g in range(4):
        for src in range(4):
            a.e(f"ds_read_b128 {vr(RD+(g*4+src)*4,4)}, v8 offset:{L_RED + src*4096 + g*256}")
    OUTR = V_ACC
    for g in range(4):
        a.e(f"s_waitcnt lgkmcnt({12-4*g})")
        b = RD + g * 16
        for e in range(4):
            a.e(f"v_add_f32 v{b+e}, v{b+e}, v{b+4+e}")
            a.e(f"v_add_f32 v{b+8+e}, v{b+8+e}, v{b+12+e}")
        for e in range(4):
            a.e(f"v_add_f32 v{b+e}, v{b+e}, v{b+8+e}")
        a.e(f"v_cvt_pk_bf16_f32 v{OUTR+2*g}, v{b}, v{b+1}")
        a.e(f"v_cvt_pk_bf16_f32 v{OUTR+2*g+1}, v{b+2}, v{b+3}")
        if g % 2 == 1:
            a.e(f"buffer_store_dwordx4 {vr(OUTR+2*g-2,4)}, v9, {sr(SRD_O,4)}, s{S_T1} offen offset:{(g//2)*16}")
    if STAMPS:
        a.e("s_waitcnt vmcnt(0)")
    stamp(a, 7)
    stamp_flush(a, 8)
    a.e("s_endpgm")

    a.lab(l_noP2)
    vm.n, vm.done = vm_snap
    pgb.wait_tok(btok_[13])
    pgb.publish()
    l_e = a.newlab("Lnoep")
    a.e(f"s_cmp_lg_u32 s2, 255")
    a.e(f"s_cbranch_scc1 {l_e}")
    a.e(f"s_cmp_lg_u32 s{S_W}, 0")
    a.e(f"s_cbranch_scc1 {l_e}")
    a.e(f"v_lshrrev_b32 v1, 2, v{V_LANE}")
    a.e(f"v_and_b32 v2, 3, v{V_LANE}")
    a.e(f"v_lshlrev_b32 v1, 13, v1")
    a.e(f"v_lshl_add_u32 v1, v2, 10, v1")
    for q in range(1, 4):
        a.e(f"v_add_u32 v{1+q}, {q*256}, v1")
    a.e(f"s_mov_b32 s{S_T0}, {WS_FA + 2*FSTRIDE}")
    vm2 = Cnt(a, "vmcnt", 63)
    flag_poll(a, vm2, [(5 + q, 1 + q, S_T0) for q in range(4)], V_NONCE, sleep=8)
    a.e(f"s_mov_b32 s{S_T0}, {WS_EPOCH}")
    flag_store(a, vm2, V_NONCE, V_ZERO, S_T0)
    a.lab(l_e)
    a.e("s_endpgm")


def generate(P):
    a = Asm()
    K = NAME + "_kernel"
    hdr = [
        "; fused gated-mix kernel: generated by gen/gen.py (hand-written generator)",
        f"; @launch grid=(256,1,1) block=(512,1,1) lds={L_END}",
        '.amdgcn_target "amdgcn-amd-amdhsa--gfx950"',
        ".text",
        f".globl {K}",
        ".p2align 8",
        f".type {K},@function",
        f"{K}:",
    ]
    a.e("s_cmp_ge_u32 s2, 256")
    a.e("s_cbranch_scc1 L_exit")
    a.e("s_load_dwordx16 s[8:23], s[0:1], 0")
    a.e("s_load_dwordx8 s[24:31], s[0:1], 64")
    stamp(a, 0)
    a.e("v_lshrrev_b32 v1, 6, v0")
    a.e("v_and_b32 v0, 63, v0")
    a.e(f"v_readfirstlane_b32 s{S_WAVE}, v1")
    a.e(f"s_and_b32 s{S_XCD}, s2, 7")
    a.e(f"s_lshr_b32 s{S_IDX}, s2, 3")
    MB = P["MAPB"]
    a.e(f"s_and_b32 s{S_M}, s{S_XCD}, {(1<<MB)-1}")
    a.e(f"s_lshl_b32 s{S_M}, s{S_M}, {4-MB}")
    a.e(f"s_and_b32 s{S_T0}, s{S_IDX}, {(1<<(4-MB))-1}")
    a.e(f"s_add_u32 s{S_M}, s{S_M}, s{S_T0}")
    a.e(f"s_lshr_b32 s{S_J}, s{S_IDX}, {4-MB}")
    a.e(f"s_lshl_b32 s{S_J}, s{S_J}, {3-MB}")
    a.e(f"s_lshr_b32 s{S_T0}, s{S_XCD}, {MB}")
    a.e(f"s_add_u32 s{S_J}, s{S_J}, s{S_T0}")
    a.e(f"s_and_b32 s{S_W}, s{S_WAVE}, 3")
    a.e("s_waitcnt lgkmcnt(0)")
    a.e(f"s_mov_b32 s{S_T0}, {WS_EPOCH}")
    a.e(f"s_load_dword s{S_NONCE}, {sr(S_WS,2)}, s{S_T0}")
    a.e(f"s_cmp_ge_u32 s{S_WAVE}, 4")
    a.e("s_cbranch_scc1 L_p2")
    gen_p1(a, P)
    gen_p1_stage_b(a, P)
    a.lab("L_p2")
    gen_p2(a, P)
    a.lines += a.tail
    a.lab("L_exit")
    a.e("s_endpgm")
    ftr = [
        '.section .rodata,"a"',
        ".p2align 6",
        f".amdhsa_kernel {K}",
        "  .amdhsa_next_free_vgpr 256",
        "  .amdhsa_next_free_sgpr 96",
        "  .amdhsa_accum_offset 256",
        "  .amdhsa_group_segment_fixed_size 0",
        "  .amdhsa_kernarg_size 96",
        "  .amdhsa_user_sgpr_count 2",
        "  .amdhsa_user_sgpr_kernarg_segment_ptr 1",
        "  .amdhsa_system_sgpr_workgroup_id_x 1",
        "  .amdhsa_float_denorm_mode_32 3",
        ".end_amdhsa_kernel",
    ]
    return "\n".join(hdr + a.lines + ftr) + "\n"


DEFAULT = dict(ROT=1, ROT2=1, MAPB=1, BGN=3, TFN=4, SWIN=1, RPP=12, FA2P=1, PLAG=1, X2=0, FQ=0xB4, RPA=3, RPF=21, BLAG=5, PRIO=0, RPK=2, P0=4, LD=3, LDB=0, EXP=0, PD=5, PDT=1, LA=5, SIG=12, CHK=3, LAB=6, BTHR=13, NWPRE=6, FBP=8)

if __name__ == "__main__":
    P = dict(DEFAULT)
    out = f"cdna_kernels/{NAME}.s"
    for arg in sys.argv[1:]:
        if "=" in arg:
            k, v = arg.split("=")
            if k == "out":
                out = v
            elif k == "NOPUB":
                NOPUB = int(v)
            elif k == "STMODE":
                STMODE = int(v)
            elif k == "SLEEP":
                SLEEP = int(v)
            elif k == "STAMPS":
                STAMPS = int(v)
            else:
                P[k] = int(v)
    for u in range(504):
        assert (u * 911) >> 16 == u // 72
    for u in range(256):
        assert (u * 4682) >> 16 == u // 14
    for u in range(72):
        assert (u * 9363) >> 16 == u // 7
    open(out, "w").write(generate(P))
    print("wrote", out)
```

```python
import sys

NAME = "gated_mix__sliding_local_dilated__dense_activation_squared_relu__prompt"

WS_A2 = 0
WS_W2R = 0x900000
WS_WQR = WS_W2R + 7 * 72 * 4096
WS_G = WS_WQR + 16 * 14 * 6144
WS_FA = WS_G + 16 * 32 * 256
FSTRIDE = 32 * 16 * 2 * 128
WS_FWQ = WS_FA + 3 * FSTRIDE
WS_FW2 = WS_FWQ + 16 * 128
WS_EPOCH = WS_FW2 + 28 * 128
WS_END = WS_EPOCH + 128

L_X = 0
L_WA = 65536
L_WB = 122880
L_RP = 147456
L_XB = 49152
L_TS = 145408
L_FL = 161792
L_BIAS = L_FL + 512
L_END = L_BIAS + 512
L_RED = 0


def wb_addr(ks):
    if ks < 6:
        return L_WB + ks * 4096
    if ks < 10:
        return 3 * 16384 + (ks - 6) * 4096
    return (ks - 10) * 4096


def sb_addr(ks):
    if ks < 8:
        return L_WA + ks * 7168
    if ks < 12:
        return 16384 + (ks - 8) * 7168
    return L_WB + (ks - 12) * 7168


XQ = [0, 1, 2, 3, 4, 5, 6]


def sb_free_step(ks):
    if ks < 8:
        kmax = (7168 * (ks + 1) + 4095) // 4096 - 1
        return kmax // 2 + 2
    if ks < 12:
        return XQ[5] + 1 if 7168 * (ks - 7) <= 16384 else XQ[6] + 1
    kmax = (7168 * (ks - 11) + 4095) // 4096 - 1
    return 8 + kmax // 2 + 1


def loader_items(P):
    it = [("bias", 0, 4, 0)]
    for p in range(7):
        XQ[p] = max(min(p, 1), p - P["XA"])
    for q in range(7):
        for p in range(7):
            if XQ[p] == q:
                it.append(("x", p, 4, 0 if p < 4 else XQ[p - 4] + 1))
        it.append(("a", 2 * q, 1, 0))
        it.append(("a", 2 * q + 1, 1, 0))
    for ks in range(14):
        if ks == 14 - P["WQPA"]:
            it.append(("pwq", 0, 1, 0))
        it.append(("b", ks, 1, 0 if ks < 6 else (XQ[3] + 1 if ks < 10 else XQ[4] + 1)))
    it.append(("cwq", 0, 0, 0))
    for ks in range(14):
        it.append(("B", ks, 2, sb_free_step(ks)))
    b = it.pop(0)
    it.insert(6, b)
    if P["TCH"] >= 0:
        it.insert(P["TCH"], ("touch", 0, 2, 0))
    cnt = {}
    n = 0
    for (k, i, ops, st) in it:
        n += ops
        cnt[(k, i)] = n
    ncnt = {}
    n = 0
    for (k, i, ops, st) in it:
        if k not in ("a", "b"):
            n += ops
        ncnt[(k, i)] = n
    return it, cnt, ncnt


SPIN_MAX = 1 << 15


class Asm:
    def __init__(self):
        self.lines = []
        self.nlab = 0
        self.tail = []

    def e(self, s):
        self.lines.append("  " + s)

    def c(self, s):
        self.lines.append("  ; " + s)

    def lab(self, l):
        self.lines.append(l + ":")

    def newlab(self, p="L"):
        self.nlab += 1
        return f"{p}_{self.nlab}"


class Cnt:
    def __init__(self, a, name, mx):
        self.a, self.name, self.mx = a, name, mx
        self.n = 0
        self.done = 0

    def issue(self):
        self.n += 1
        return self.n

    def wait(self, tok):
        if tok is None or tok <= self.done:
            return
        k = min(self.n - tok, self.mx)
        self.a.e(f"s_waitcnt {self.name}({k})")
        self.done = self.n - k

    def drain(self):
        self.a.e(f"s_waitcnt {self.name}(0)")
        self.done = self.n

    def mark_drained(self):
        self.done = self.n


def vr(b, n=1):
    return f"v{b}" if n == 1 else f"v[{b}:{b+n-1}]"


def sr(b, n=1):
    return f"s{b}" if n == 1 else f"s[{b}:{b+n-1}]"


S_X, S_WQKV, S_WO, S_BX, S_W1, S_B1, S_W2, S_B2 = 8, 10, 12, 14, 16, 18, 20, 22
S_GATE, S_OUT, S_DBG, S_WS = 24, 26, 28, 30
SRD_WS, SRD_X, SRD_A, SRD_B, SRD_O = 32, 36, 40, 44, 48
S_WAVE, S_XCD, S_IDX, S_M, S_J, S_RB, S_NT = 52, 53, 54, 55, 56, 57, 58
S_T0, S_T1, S_T2, S_T3, S_T4, S_T5 = 60, 61, 62, 63, 64, 65
S_SPIN = 66
S_NONCE = 67
S_W = 68
S_SO0, S_SO1 = 70, 71
S_BASEA, S_BASEW = 72, 73
S_RPF = 69
S_SEEN = 25
S_RO2 = 8
S_ROT, S_PP, S_PB = 59, 62, 63
S_FLA, S_FDONE = 6, 7
S_PG0, S_PG1, S_PG2, S_PG3 = 3, 4, 5, 7


def mk_srd(a, d, p, nbytes):
    a.e(f"s_mov_b32 s{d}, s{p}")
    a.e(f"s_and_b32 s{d+1}, s{p+1}, 0xffff")
    a.e(f"s_mov_b32 s{d+2}, {nbytes}")
    a.e(f"s_mov_b32 s{d+3}, 0x00020000")


def lds_wait_min4(a, lg, vaddr, vtmp, off, need, pre_tok=None):
    if pre_tok is None:
        a.e(f"ds_read_b128 {vr(vtmp,4)}, {vr(vaddr)} offset:{off}")
        pre_tok = lg.issue()
    lg.wait(pre_tok)
    ok = a.newlab("Lok")
    spin = a.newlab("Lspin")
    a.e(f"v_min3_u32 {vr(vtmp)}, {vr(vtmp)}, {vr(vtmp+1)}, {vr(vtmp+2)}")
    a.e(f"v_min_u32 {vr(vtmp)}, {vr(vtmp)}, {vr(vtmp+3)}")
    a.e(f"v_cmp_gt_u32 vcc, {need}, {vr(vtmp)}")
    a.e(f"s_cbranch_vccnz {spin}")
    a.lab(ok)
    t = a.tail
    t.append(f"{spin}:")
    t.append(f"  s_mov_b32 s{S_SPIN}, 0")
    t.append(f"{spin}_l:")
    t.append(f"  ds_read_b128 {vr(vtmp,4)}, {vr(vaddr)} offset:{off}")
    t.append(f"  s_add_u32 s{S_SPIN}, s{S_SPIN}, 1")
    t.append(f"  s_cmp_gt_u32 s{S_SPIN}, {SPIN_MAX*8}")
    t.append(f"  s_waitcnt lgkmcnt(0)")
    t.append(f"  s_cbranch_scc1 {ok}")
    t.append(f"  v_min3_u32 {vr(vtmp)}, {vr(vtmp)}, {vr(vtmp+1)}, {vr(vtmp+2)}")
    t.append(f"  v_min_u32 {vr(vtmp)}, {vr(vtmp)}, {vr(vtmp+3)}")
    t.append(f"  v_cmp_gt_u32 vcc, {need}, {vr(vtmp)}")
    t.append(f"  s_cbranch_vccnz {spin}_l")
    t.append(f"  s_branch {ok}")


def lds_wait_word(a, lg, vaddr, vtmp, off, need, pre_tok=None):
    if pre_tok is None:
        a.e(f"ds_read_b32 {vr(vtmp)}, {vr(vaddr)} offset:{off}")
        pre_tok = lg.issue()
    lg.wait(pre_tok)
    ok = a.newlab("Lok")
    spin = a.newlab("Lspin")
    a.e(f"v_cmp_gt_u32 vcc, {need}, {vr(vtmp)}")
    a.e(f"s_cbranch_vccnz {spin}")
    a.lab(ok)
    t = a.tail
    t.append(f"{spin}:")
    t.append(f"  s_mov_b32 s{S_SPIN}, 0")
    t.append(f"{spin}_l:")
    t.append(f"  ds_read_b32 {vr(vtmp)}, {vr(vaddr)} offset:{off}")
    t.append(f"  s_add_u32 s{S_SPIN}, s{S_SPIN}, 1")
    t.append(f"  s_cmp_gt_u32 s{S_SPIN}, {SPIN_MAX*8}")
    t.append(f"  s_waitcnt lgkmcnt(0)")
    t.append(f"  s_cbranch_scc1 {ok}")
    t.append(f"  v_cmp_gt_u32 vcc, {need}, {vr(vtmp)}")
    t.append(f"  s_cbranch_vccnz {spin}_l")
    t.append(f"  s_branch {ok}")


def lds_signal(a, lg, vaddr, vtmp, val):
    a.e(f"v_mov_b32 {vr(vtmp)}, {val}")
    a.e(f"ds_write_b32 {vr(vaddr)}, {vr(vtmp)}")
    lg.issue()


def mk_sig_addr(a, vdst, vlane, sword):
    a.e(f"v_lshlrev_b32 v{vdst}, 2, v{vlane}")
    a.e(f"v_add_u32 v{vdst}, {L_FL+256}, v{vdst}")
    a.e(f"v_writelane_b32 v{vdst}, s{sword}, 0")


class Prog:
    def __init__(self, a, vm, lg, vaddr, vtmp, base=0):
        self.a, self.vm, self.lg, self.vaddr, self.vtmp, self.base = a, vm, lg, vaddr, vtmp, base
        self.extra = []

    def note_extra(self, pos_before):
        cnt = self.vm.n - pos_before
        if cnt:
            self.extra.append((pos_before, cnt))

    def lines(self, young=0):
        o = []
        o.append(f"s_getreg_b32 s{S_PG0}, hwreg(HW_REG_IB_STS)")
        o.append(f"s_bfe_u32 s{S_PG1}, s{S_PG0}, 0x20016")
        o.append(f"s_and_b32 s{S_PG0}, s{S_PG0}, 15")
        o.append(f"s_lshl4_add_u32 s{S_PG3}, s{S_PG1}, s{S_PG0}")
        o.append(f"s_sub_u32 s{S_PG0}, {self.vm.n + young}, s{S_PG3}")
        if young:
            o.append(f"s_min_u32 s{S_PG0}, s{S_PG0}, {self.vm.n}")
        o.append(f"v_mov_b32 {vr(self.vtmp)}, s{S_PG0}")
        o.append(f"ds_write_b32 {vr(self.vaddr)}, {vr(self.vtmp)}")
        return o

    def publish(self):
        if NOPUB:
            return
        for l in self.lines():
            self.a.e(l)
        self.lg.issue()

    def wait_prog(self, vfl, vtmp4, need):
        a = self.a
        top, done, first = a.newlab("Lwp"), a.newlab("Lwpd"), a.newlab("Lwpf")
        a.e(f"s_cmp_lt_u32 s{S_SEEN}, {need}")
        a.e(f"s_cbranch_scc1 {first}")
        a.lab(done)
        t = a.tail
        t.append(f"{first}:")
        t.append(f"  s_mov_b32 s{S_SPIN}, 0")
        t.append(f"  s_branch {first}_e")
        t.append(f"{top}:")
        if SLEEP:
            t.append(f"  s_sleep {SLEEP}")
        t.append(f"{first}_e:")
        t.append(f"  ds_read_b128 {vr(vtmp4,4)}, {vr(vfl)}")
        for l in self.lines():
            t.append("  " + l)
        t.append(f"  s_add_u32 s{S_SPIN}, s{S_SPIN}, 1")
        t.append(f"  s_cmp_gt_u32 s{S_SPIN}, {SPIN_MAX*8}")
        t.append("  s_waitcnt lgkmcnt(1)")
        t.append(f"  s_cbranch_scc1 {done}")
        t.append(f"  v_min3_u32 {vr(vtmp4)}, {vr(vtmp4)}, {vr(vtmp4+1)}, {vr(vtmp4+2)}")
        t.append(f"  v_min_u32 {vr(vtmp4)}, {vr(vtmp4)}, {vr(vtmp4+3)}")
        t.append("  s_nop 0")
        t.append(f"  v_readfirstlane_b32 s{S_SEEN}, {vr(vtmp4)}")
        t.append("  s_nop 0")
        t.append(f"  s_cmp_lt_u32 s{S_SEEN}, {need}")
        t.append(f"  s_cbranch_scc1 {top}")
        t.append(f"  s_branch {done}")

    def wait_tok(self, tok):
        if tok <= self.vm.done:
            return
        a = self.a
        top, done = a.newlab("Lwt"), a.newlab("Lwtd")
        a.e(f"s_branch {done}")
        a.lab(top)
        if SLEEP:
            a.e(f"s_sleep {SLEEP}")
        a.lab(done)
        for l in self.lines():
            a.e(l)
        a.e(f"s_cmp_gt_u32 s{S_PG3}, {self.vm.n - tok}")
        a.e(f"s_cbranch_scc1 {top}")
        self.lg.issue()
        self.vm.wait(tok)

    def gate_issue(self, vreg, voff, soff):
        pos = self.vm.n
        self.a.e(f"buffer_load_dword v{vreg}, v{voff}, {sr(SRD_WS,4)}, s{soff} offen sc1")
        tok = self.vm.issue()
        return tok

    def gate_check(self, tok, vreg, voff, soff, vnonce, publish=True, skip=False):
        a = self.a
        if publish:
            self.wait_tok(tok)
        else:
            self.vm.wait(tok)
        ok, slow = a.newlab("Lgok"), a.newlab("Lgslow")
        a.e(f"v_cmp_ne_u32 vcc, v{vreg}, v{vnonce}")
        if not skip:
            a.e(f"s_cbranch_vccnz {slow}")
        a.lab(ok)
        t = a.tail
        t.append(f"{slow}:")
        t.append(f"  s_mov_b32 s{S_SPIN}, 0")
        t.append(f"{slow}_l:")
        t.append(f"  buffer_load_dword v{vreg}, v{voff}, {sr(SRD_WS,4)}, s{soff} offen sc1")
        if publish:
            t.append(f"{slow}_w:")
            for l in self.lines(young=1):
                t.append("  " + l)
            t.append(f"  s_cmp_lg_u32 s{S_PG3}, 0")
            t.append(f"  s_cbranch_scc1 {slow}_w")
        t.append(f"  s_add_u32 s{S_SPIN}, s{S_SPIN}, 1")
        t.append(f"  s_cmp_gt_u32 s{S_SPIN}, {SPIN_MAX}")
        t.append(f"  s_waitcnt vmcnt(0)")
        t.append(f"  s_cbranch_scc1 {ok}")
        t.append(f"  v_cmp_ne_u32 vcc, v{vreg}, v{vnonce}")
        t.append(f"  s_cbranch_vccz {ok}")
        t.append(f"  s_sleep 1")
        t.append(f"  s_branch {slow}_l")


def get_nonce(a, lg, vzero_fl, vtmp, vdst):
    a.e(f"v_mov_b32 v{vdst}, s{S_NONCE}")


def init_barrier(a):
    a.e("s_waitcnt lgkmcnt(0)")
    a.e(f"s_add_u32 s{S_NONCE}, s{S_NONCE}, 1")
    a.e("s_barrier")


def flag_store(a, vm, vnonce, vzero, soff):
    a.e("s_mov_b64 exec, 1")
    a.e(f"buffer_store_dword {vr(vnonce)}, {vr(vzero)}, {sr(SRD_WS,4)}, s{soff} offen sc1")
    vm.issue()
    a.e("s_mov_b64 exec, -1")


def flag_poll(a, vm, polls, vnonce, sleep=1):
    top = a.newlab("Lpoll")
    done = a.newlab("Lpdone")
    a.e(f"s_mov_b32 s{S_SPIN}, 0")
    a.lab(top)
    for (vd, vo, so) in polls:
        a.e(f"buffer_load_dword {vr(vd)}, {vr(vo)}, {sr(SRD_WS,4)}, s{so} offen sc1")
        vm.issue()
    a.e(f"s_add_u32 s{S_SPIN}, s{S_SPIN}, 1")
    a.e(f"s_waitcnt vmcnt(0)")
    vm.mark_drained()
    vd0 = polls[0][0]
    a.e(f"v_xor_b32 {vr(vd0)}, {vr(vd0)}, {vr(vnonce)}")
    for (vd, vo, so) in polls[1:]:
        a.e(f"v_xor_b32 {vr(vd)}, {vr(vd)}, {vr(vnonce)}")
        a.e(f"v_or_b32 {vr(vd0)}, {vr(vd0)}, {vr(vd)}")
    a.e(f"v_cmp_ne_u32 vcc, 0, {vr(vd0)}")
    a.e(f"s_cbranch_vccz {done}")
    a.e(f"s_cmp_gt_u32 s{S_SPIN}, {SPIN_MAX}")
    a.e(f"s_cbranch_scc1 {done}")
    if sleep:
        a.e(f"s_sleep {sleep}")
    a.e(f"s_branch {top}")
    a.lab(done)


STAMPS = False
SLEEP = 1
P2SC = 'sc1'
X3 = 0
NOPUB = 0
S_ST = 80


STMODE = 0
NSWAP_A = 56
P2CTX = [False]


def stamp2(a, i):
    if STAMPS and STMODE == 1:
        a.e(f"s_memrealtime {sr(S_ST+2*i,2)}")


def stamp(a, i):
    if STMODE == 1 and 0 < i < 7:
        return
    if STMODE == 2 and 0 < i and not P2CTX[0]:
        return
    if STMODE == 3 and 0 < i and P2CTX[0]:
        return
    if STAMPS:
        a.e(f"{'s_memtime' if STAMPS == 2 else 's_memrealtime'} {sr(S_ST+2*i,2)}")


def stamp_flush(a, n):
    if not STAMPS:
        return
    a.e("s_waitcnt lgkmcnt(0)")
    a.e(f"s_lshl_b32 s{S_T0}, s2, 3")
    a.e(f"s_add_u32 s{S_T0}, s{S_T0}, s{S_WAVE}")
    a.e(f"s_lshl_b32 s{S_T0}, s{S_T0}, 6")
    a.e(f"s_add_u32 s{S_T0}, s{S_T0}, {WS_END}")
    a.e("s_mov_b64 exec, 1")
    a.e("v_mov_b32 v1, 0")
    for i in range(n):
        a.e(f"v_mov_b32 v2, s{S_ST+2*i}")
        a.e(f"buffer_store_dword v2, v1, {sr(SRD_WS,4)}, s{S_T0} offen offset:{4*i}")
        a.e("s_nop 1")
    a.e("s_mov_b64 exec, -1")


def mfma(a, d, A, B, C):
    c = "0" if C is None else vr(C, 4)
    a.e(f"v_mfma_f32_16x16x32_bf16 {vr(d,4)}, {vr(A,4)}, {vr(B,4)}, {c}")


V_LANE, V_L16, V_ZERO = 0, 14, 15
S_FIDX = 76
L_NSC = L_WB
NSC = 9728


def gen_repack_all(a, P, V_NONCE, between):
    vm = Cnt(a, "vmcnt", 63)
    lg = Cnt(a, "lgkmcnt", 15)
    S_U = 77
    SQ = [(78, 79), (80 if not STAMPS else 96, 81 if not STAMPS else 97)]
    SW = [(98, 99), (100, 101), (8, 9), (14, 15)]
    S_ISO = [16, 17, 18, 19]
    SRD_Q, SRD_W2, SRD_WO = SRD_A, SRD_B, SRD_X
    RQ = [144, 170]
    RW = [196, 212, 228, 144]
    RT = 244
    V_QO, V_GO, V_WO_, V_WO3 = 4, 5, 6, 7
    V_LWQ, V_LTQ, V_LWW, V_LTH, V_LTO = 244, 245, 246, 247, 248
    a.e(f"s_sub_u32 s{S_T0}, s{S_J}, 14")
    a.e(f"s_lshl_b32 s{S_U}, s{S_M}, 1")
    a.e(f"s_add_u32 s{S_U}, s{S_U}, s{S_T0}")
    a.e(f"s_lshl_b32 s{S_U}, s{S_U}, 2")
    a.e(f"s_add_u32 s{S_U}, s{S_U}, s{S_W}")
    mk_srd(a, SRD_Q, S_WQKV, 448 * 2688)
    a.e(f"v_lshrrev_b32 v1, 4, v{V_LANE}")
    a.e(f"v_bfe_u32 v2, v{V_LANE}, 2, 2")
    a.e(f"v_and_b32 v3, 3, v{V_LANE}")
    a.e(f"v_lshrrev_b32 v{V_GO}, 2, v{V_LANE}")
    a.e(f"v_mul_u32_u24 v{V_QO}, 2688, v{V_GO}")
    a.e(f"v_lshl_add_u32 v{V_QO}, v3, 4, v{V_QO}")
    BIG = 0x40000000
    qtok = []
    for k in range(2):
        a.e(f"s_add_u32 s{S_T5}, s{S_U}, {128*k}")
        a.e(f"s_cmp_lt_u32 s{S_T5}, 224")
        a.e(f"s_cselect_b32 s{S_T4}, 0, {BIG}")
        a.e(f"s_min_u32 s{S_T5}, s{S_T5}, 223")
        a.e(f"s_mul_i32 s{S_T0}, s{S_T5}, 4682")
        a.e(f"s_lshr_b32 s{S_T0}, s{S_T0}, 16")
        a.e(f"s_mul_i32 s{S_T1}, s{S_T0}, 14")
        a.e(f"s_sub_u32 s{S_T1}, s{S_T5}, s{S_T1}")
        a.e(f"s_mul_i32 s{S_T2}, s{S_T1}, {32*2688}")
        a.e(f"s_mul_i32 s{S_T3}, s{S_T0}, 56")
        a.e(f"s_add_u32 s{S_T2}, s{S_T2}, s{S_T3}")
        a.e(f"s_add_u32 s{S_T3}, s{S_T2}, {16*2688}")
        for i in range(6):
            seg, hf = i >> 1, i & 1
            so = S_T3 if hf else S_T2
            a.e(f"buffer_load_dwordx4 {vr(RQ[k]+i*4,4)}, v{V_QO}, {sr(SRD_Q,4)}, s{so} offen offset:{seg*896}")
            vm.issue()
        a.e(f"s_lshl_b32 s{S_T2}, s{S_T1}, 6")
        a.e(f"v_lshl_add_u32 v{V_WO_}, v{V_GO}, 1, s{S_T2}")
        a.e(f"global_load_ushort v{RQ[k]+24}, v{V_WO_}, {sr(S_GATE,2)}")
        vm.issue()
        a.e(f"global_load_ushort v{RQ[k]+25}, v{V_WO_}, {sr(S_GATE,2)} offset:32")
        qtok.append(vm.issue())
        a.e(f"s_mul_i32 s{SQ[k][0]}, s{S_T5}, 6144")
        a.e(f"s_add_u32 s{SQ[k][0]}, s{SQ[k][0]}, {WS_WQR}")
        a.e(f"s_add_u32 s{SQ[k][0]}, s{SQ[k][0]}, s{S_T4}")
        a.e(f"s_lshl_b32 s{S_T0}, s{S_T0}, 7")
        a.e(f"s_lshl_b32 s{S_T1}, s{S_T1}, 2")
        a.e(f"s_add_u32 s{S_T0}, s{S_T0}, s{S_T1}")
        a.e(f"s_add_u32 s{S_T0}, s{S_T0}, {WS_FWQ}")
        a.e(f"s_add_u32 s{SQ[k][1]}, s{S_T0}, s{S_T4}")
    a.e(f"s_mul_i32 s{S_T0}, s{S_W}, {NSC}")
    a.e(f"s_add_u32 s{S_T0}, s{S_T0}, {L_NSC}")
    a.e(f"v_mul_u32_u24 v{V_LWQ}, 192, v{V_GO}")
    a.e(f"v_lshl_add_u32 v{V_LWQ}, v3, 4, v{V_LWQ}")
    a.e(f"v_add_u32 v{V_LWQ}, s{S_T0}, v{V_LWQ}")
    a.e(f"v_and_b32 v{V_LTH}, 1, v1")
    a.e(f"v_lshrrev_b32 v{V_LTO}, 1, v1")
    a.e(f"v_lshl_add_u32 v{V_LTQ}, v{V_LTH}, 1, v{V_LTO}")
    a.e(f"v_lshl_add_u32 v{V_LTQ}, v{V_LTQ}, 3, v2")
    a.e(f"v_mul_u32_u24 v{V_LTQ}, 192, v{V_LTQ}")
    a.e(f"v_lshl_add_u32 v{V_LTQ}, v3, 3, v{V_LTQ}")
    a.e(f"v_add_u32 v{V_LTQ}, s{S_T0}, v{V_LTQ}")
    yield
    a.e(f"v_and_b32 v3, 3, v{V_LANE}")
    vm.n += 1
    pend = []

    def flush_flags(keep):
        while len(pend) > keep:
            tok, sf = pend.pop(0)
            vm.wait(tok)
            flag_store(a, vm, V_NONCE, V_ZERO, sf)

    nunit = 0
    for k in range(2):
        R = RQ[k]
        a.e(f"s_waitcnt vmcnt({8 if k == 0 else 6})")
        a.e(f"v_cmp_eq_u32 vcc, 3, v3")
        a.e("s_nop 1")
        for i in range(6):
            seg, hf = i >> 1, i & 1
            src = R + 24 + hf if seg == 0 else V_ZERO
            a.e(f"v_cndmask_b32 v{R+i*4+2}, v{R+i*4+2}, v{src}, vcc")
            a.e(f"v_cndmask_b32 v{R+i*4+3}, v{R+i*4+3}, v{V_ZERO}, vcc")
            a.e(f"ds_write_b128 v{V_LWQ}, {vr(R+i*4,4)} offset:{hf*3072+seg*64}")
            lg.issue()
        toks = []
        for c6 in range(6):
            for hh in range(2):
                a.e(f"ds_read_b64_tr_b16 {vr(R+c6*4+hh*2,2)}, v{V_LTQ} offset:{hh*768+c6*32}")
                tk = lg.issue()
            toks.append(tk)
        a.e(f"s_add_u32 s{S_T0}, s{SQ[k][0]}, 4096")
        for c6 in range(6):
            so = SQ[k][0] if c6 < 4 else S_T0
            lg.wait(toks[c6])
            a.e(f"buffer_store_dwordx4 {vr(R+c6*4,4)}, v{V_L16}, {sr(SRD_WS,4)}, s{so} offen offset:{(c6%4)*1024} sc1")
            t = vm.issue()
        pend.append((t, SQ[k][1]))
    between(0)
    flush_flags(0)
    yield


def gen_p1(a, P):
    vm = Cnt(a, "vmcnt", 63)
    lg = Cnt(a, "lgkmcnt", 15)
    V_LANE = 0
    V_T = 1
    V_XR = 8
    V_FL = 12
    V_PROG = 13
    V_L16 = 14
    V_ZERO = 15
    V_TA = 16
    V_SO = 22
    V_BA = 23
    V_F = 24
    V_NONCE = 28
    V_SIG = 29
    V_PA, V_QA = 30, 31
    V_X = 32
    V_ACC = 144
    V_WR = 208
    V_E = 240
    NR = 8

    def X(c, ks):
        return V_X + (c * 14 + ks) * 4

    def ACC(t):
        return V_ACC + t * 16

    a.c("==== P1 program ====")
    if P["EXP"] & 4096:
        a.e(f"v_lshlrev_b32 v4, 2, v0")
        a.e(f"v_add_u32 v4, {L_FL}, v4")
        a.e(f"v_mov_b32 v5, 100")
        a.e(f"ds_write_b32 v4, v5")
        a.e("s_waitcnt lgkmcnt(0)")
        a.e("s_barrier")
        a.e("s_endpgm")
    stamp2(a, 1)
    if P["EXP"] & 2048:
        a.e("s_barrier")
        a.e("s_endpgm")
    if P["PRIO"]:
        a.e(f"s_setprio {P['PRIO']}")
    a.e(f"v_mov_b32 v{V_ZERO}, 0")
    a.e(f"v_mov_b32 v{V_FL}, {L_FL}")
    mk_srd(a, SRD_WS, S_WS, WS_END + 2048 * 64)
    a.e(f"v_lshlrev_b32 v{V_L16}, 4, v{V_LANE}")
    l_nr = a.newlab("Lnorp")
    a.e(f"s_cmp_lt_u32 s{S_J}, 14")
    a.e(f"s_cbranch_scc1 {l_nr}")
    rp = gen_repack_all(a, P, V_NONCE, lambda k: None)
    next(rp)
    a.lab(l_nr)
    l_n3 = a.newlab("Lnot3")
    l_bj = a.newlab("Lbj")
    a.e(f"s_cmp_lg_u32 s{S_W}, 3")
    a.e(f"s_cbranch_scc1 {l_n3}")
    mk_srd(a, SRD_B, S_B1, 1792 * 2)
    a.e(f"v_lshlrev_b32 v4, 2, v{V_LANE}")
    a.e(f"s_lshl_b32 s{S_T3}, s{S_J}, 8")
    a.e(f"buffer_load_dword v5, v4, {sr(SRD_B,4)}, s{S_T3} offen")
    a.e(f"v_add_u32 v6, {L_FL}, v4")
    a.e(f"ds_write_b32 v6, v{V_ZERO}")
    init_barrier(a)
    a.e(f"v_lshlrev_b32 v6, 3, v{V_LANE}")
    a.e(f"v_add_u32 v6, {L_BIAS}, v6")
    a.e("s_waitcnt vmcnt(0)")
    a.e(f"v_lshlrev_b32 v2, 16, v5")
    a.e(f"v_and_b32 v3, 0xffff0000, v5")
    a.e(f"ds_write_b64 v6, v[2:3]")
    a.e(f"v_mov_b32 v2, 1")
    a.e("s_waitcnt lgkmcnt(0)")
    a.e("s_mov_b64 exec, 1")
    a.e(f"ds_write_b32 v{V_FL}, v2 offset:36")
    a.e("s_mov_b64 exec, -1")
    a.e(f"s_branch {l_bj}")
    a.lab(l_n3)
    init_barrier(a)
    a.lab(l_bj)
    stamp2(a, 2)
    a.e(f"s_lshl_b32 s{S_T3}, s{S_W}, 2")
    a.e(f"s_add_u32 s{S_T3}, s{S_T3}, {L_FL}")
    mk_sig_addr(a, V_PROG, V_LANE, S_T3)
    a.e(f"v_and_b32 v1, 31, v{V_LANE}")
    a.e(f"v_lshrrev_b32 v2, 5, v{V_LANE}")
    a.e(f"v_bfe_u32 v3, v{V_LANE}, 1, 3")
    a.e(f"v_xor_b32 v3, v3, v2")
    a.e(f"v_lshlrev_b32 v3, 4, v3")
    a.e(f"v_lshl_add_u32 v3, v1, 7, v3")
    a.e(f"s_lshl_b32 s{S_T3}, s{S_W}, 12")
    a.e(f"v_add_u32 v{V_XR}, s{S_T3}, v3")
    for c in range(1, 4):
        a.e(f"v_xor_b32 v{V_XR+c}, {32*c}, v{V_XR}")
    a.e(f"v_lshlrev_b32 v{V_BA}, 4, v2")
    a.e(f"v_add_u32 v{V_BA}, {L_BIAS}, v{V_BA}")
    a.e(f"v_and_b32 v3, 15, v{V_LANE}")
    a.e(f"v_bfe_u32 v4, v{V_LANE}, 4, 1")
    a.e(f"v_lshlrev_b32 v3, 4, v3")
    a.e(f"v_lshl_add_u32 v3, v4, 10, v3")
    a.e(f"v_lshl_add_u32 v{V_SO}, v2, 8, v3")
    a.e(f"v_bfe_u32 v3, v{V_LANE}, 2, 2")
    a.e(f"v_lshl_add_u32 v5, v2, 3, v3")
    a.e(f"v_lshlrev_b32 v5, 7, v5")
    a.e(f"v_lshl_add_u32 v5, v4, 5, v5")
    a.e(f"v_and_b32 v6, 3, v{V_LANE}")
    a.e(f"v_lshl_add_u32 v5, v6, 3, v5")
    a.e(f"v_lshrrev_b32 v6, 1, v3")
    a.e(f"v_lshl_add_u32 v{V_TA}, v6, 6, v5")
    a.e(f"v_xor_b32 v{V_TA+1}, 64, v{V_TA}")
    for wi, wbase in ((1, L_WA), (2, L_WB)):
        for t in range(2):
            a.e(f"v_add_u32 v{V_TA+2*wi+t}, {wbase}, v{V_TA+t}")
    a.e(f"v_and_b32 v1, 15, v{V_LANE}")
    a.e(f"v_lshl_add_u32 v2, v4, 1, v2")
    a.e(f"v_lshrrev_b32 v3, 2, v1")
    a.e(f"v_lshlrev_b32 v4, 1, v3")
    a.e(f"v_mov_b32 v5, {P['FQ']}")
    a.e(f"v_lshrrev_b32 v4, v4, v5")
    a.e(f"v_and_b32 v4, 3, v4")
    a.e(f"v_xor_b32 v4, v4, v2")
    a.e(f"v_lshl_add_u32 v4, v1, 2, v4")
    a.e(f"v_lshlrev_b32 v4, 4, v4")
    a.e(f"v_add_u32 v4, 6144, v4")
    a.e(f"s_lshl_b32 s{S_T3}, s{S_W}, 10")
    a.e(f"s_add_u32 s{S_T3}, s{S_T3}, 2048")
    a.e(f"v_add_u32 v5, s{S_T3}, v{V_L16}")
    a.e(f"s_cmp_lt_u32 s{S_W}, 2")
    a.e(f"s_cselect_b64 vcc, -1, 0")
    a.e(f"v_cndmask_b32 v{V_PA}, v4, v5, vcc")
    a.e(f"v_cndmask_b32 v{V_QA}, v5, v4, vcc")
    a.e(f"s_lshr_b32 s{S_T3}, s{S_W}, 1")
    a.e(f"s_lshl_b32 s{S_RB}, s{S_M}, 1")
    a.e(f"s_add_u32 s{S_RB}, s{S_RB}, s{S_T3}")
    a.e(f"s_lshl_b32 s{S_T3}, s{S_RB}, 4")
    a.e(f"s_add_u32 s{S_T3}, s{S_T3}, s{S_J}")
    a.e(f"s_lshl_b32 s{S_T3}, s{S_T3}, 1")
    a.e(f"s_and_b32 s{S_T4}, s{S_W}, 1")
    a.e(f"s_add_u32 s{S_T3}, s{S_T3}, s{S_T4}")
    a.e(f"s_lshl_b32 s{S_T5}, s{S_T3}, 7")
    a.e(f"s_mov_b32 s{S_FIDX}, s{S_T5}")

    a.e(f"s_cmp_ge_u32 s{S_J}, 14")
    a.e(f"s_cbranch_scc1 L_p1_noa")

    xr_tok = {}

    def x_read1(p, cp):
        ks, c = 2 * p + (cp >> 1), cp & 1
        a.e(f"ds_read_b128 {vr(X(c,ks),4)}, v{V_XR+cp} offset:{(p%4)*16384}")
        xr_tok[(c, ks)] = lg.issue()

    def x_swap(ks, i):
        a.e(f"v_permlane16_swap_b32 v{X(0,ks)+i}, v{X(1,ks)+i}")

    a.e(f"s_mul_i32 s{S_T3}, s{S_RB}, 72")
    a.e(f"s_lshl_b32 s{S_T4}, s{S_J}, 1")
    a.e(f"s_add_u32 s{S_T3}, s{S_T3}, s{S_T4}")
    a.e(f"s_lshl_b32 s{S_T3}, s{S_T3}, 12")
    a.e(f"s_and_b32 s{S_T4}, s{S_W}, 1")
    a.e(f"s_lshl_b32 s{S_T4}, s{S_T4}, 11")
    a.e(f"s_add_u32 s{S_BASEA}, s{S_T3}, s{S_T4}")
    a.e(f"s_add_u32 s{S_FLA}, s{S_FIDX}, {WS_FA}")
    lds_wait_word(a, lg, V_FL, V_F, 36, 1)
    for t in range(4):
        for q in range(4):
            a.e(f"ds_read_b128 {vr(ACC(t)+4*q,4)}, v{V_BA} offset:{t*128+q*32}")
            btk = lg.issue()
    lg.wait(btk)
    stamp2(a, 5)

    LA = P["LA"]
    NF = 112
    rtok = {}
    fixed = {}
    bg = []

    def at(n, f):
        fixed.setdefault(max(n, -1), []).append(f)

    def need_of(ps, p):
        if ps == 0:
            return ITEM_CNT[("a", 2 * p + 1)]
        return ITEM_CNT[("b", 2 * p + 1)]

    def sched_check(n0, need):
        st = {}
        ok, spin = a.newlab("Lok"), a.newlab("Lspin")

        def f0():
            a.e(f"ds_read_b128 {vr(V_F,4)}, v{V_FL} offset:16")
            st["tok"] = lg.issue()

        def f1():
            lg.wait(st["tok"])
            a.e(f"v_min3_u32 v{V_F}, v{V_F}, v{V_F+1}, v{V_F+2}")

        def f2():
            a.e(f"v_min_u32 v{V_F}, v{V_F}, v{V_F+3}")

        def f3():
            a.e(f"v_cmp_gt_u32 vcc, {need}, v{V_F}")

        def f4():
            a.e(f"s_cbranch_vccnz {spin}")
            a.lab(ok)
            t = a.tail
            t.append(f"{spin}:")
            t.append(f"  s_mov_b32 s{S_SPIN}, 0")
            t.append(f"{spin}_l:")
            if X3 & 4:
                t.append("  s_sleep 2")
            t.append(f"  ds_read_b128 {vr(V_F,4)}, v{V_FL} offset:16")
            t.append(f"  s_add_u32 s{S_SPIN}, s{S_SPIN}, 1")
            t.append(f"  s_cmp_gt_u32 s{S_SPIN}, {SPIN_MAX*8}")
            t.append(f"  s_waitcnt lgkmcnt(0)")
            t.append(f"  s_cbranch_scc1 {ok}")
            t.append(f"  v_min3_u32 v{V_F}, v{V_F}, v{V_F+1}, v{V_F+2}")
            t.append(f"  v_min_u32 v{V_F}, v{V_F}, v{V_F+3}")
            t.append(f"  v_cmp_gt_u32 vcc, {need}, v{V_F}")
            t.append(f"  s_cbranch_vccnz {spin}_l")
            t.append(f"  s_branch {ok}")
        at(n0 - 3 - P["CHK"], f0)
        at(n0 - 3, f1); at(n0 - 2, f2); at(n0 - 1, f3); at(n0, f4)

    def rd(n):
        ps, ks, c, t = n // 56, (n % 56) // 4, (n % 4) // 2, n % 2
        ad = (L_WA + ks * 4096) if ps == 0 else wb_addr(ks)
        wi, base = (1, L_WA) if ps == 0 else ((2, L_WB) if ks < 6 else (0, 0))
        off = ad - base + c * 2048
        d = V_WR + (n % NR) * 4
        a.e(f"ds_read_b64_tr_b16 {vr(d,2)}, v{V_TA+2*wi+t} offset:{off}")
        lg.issue()
        a.e(f"ds_read_b64_tr_b16 {vr(d+2,2)}, v{V_TA+2*wi+t} offset:{off+512}")
        rtok[n] = lg.issue()

    def epi_items(t):
        items = []
        blk = (t & 1) + 28 * (t >> 1)
        for u in range(2):
            e = V_E + ((2 * t + u) % 2) * 4
            for h in range(2):
                sreg = ACC(t) + 8 * u + 4 * h
                tm = V_E + 8 + 4 * h
                for i in range(4):
                    items.append(lambda i=i, sreg=sreg, tm=tm: a.e(f"v_max_f32 v{tm+i}, 0, v{sreg+i}"))
                for i in range(4):
                    items.append(lambda i=i, tm=tm: a.e(f"v_mul_f32 v{tm+i}, v{tm+i}, v{tm+i}"))
                items.append(lambda e=e, h=h, tm=tm: a.e(f"v_cvt_pk_bf16_f32 v{e+2*h}, v{tm}, v{tm+1}"))
                items.append(lambda e=e, h=h, tm=tm: a.e(f"v_cvt_pk_bf16_f32 v{e+2*h+1}, v{tm+2}, v{tm+3}"))

            def st(e=e, u=u):
                a.e(f"s_add_u32 s{S_T3}, s{S_BASEA}, {blk*4096}")
                a.e(f"buffer_store_dwordx4 {vr(e,4)}, v{V_SO}, {sr(SRD_WS,4)}, s{S_T3} offen offset:{u*512} sc1")
                vm.issue()
            items.append(st)
        return items

    def try_flag(srd=SRD_WS, so=S_FLA):
        sk = a.newlab("Ltf")
        a.e(f"s_getreg_b32 s{S_PG0}, hwreg(HW_REG_IB_STS)")
        a.e(f"s_and_b32 s{S_PG0}, s{S_PG0}, 0x00c0000f")
        a.e(f"s_or_b32 s{S_PG0}, s{S_PG0}, s{S_FDONE}")
        a.e(f"s_cbranch_scc1 {sk}")
        a.e("s_mov_b64 exec, 1")
        a.e(f"buffer_store_dword v{V_NONCE}, v{V_ZERO}, {sr(srd,4)}, s{so} offen sc1")
        a.e("s_mov_b64 exec, -1")
        a.e(f"s_mov_b32 s{S_FDONE}, 1")
        a.lab(sk)

    def force_flag(srd, so):
        sk = a.newlab("Lff")
        a.e(f"s_cmp_lg_u32 s{S_FDONE}, 0")
        a.e(f"s_cbranch_scc1 {sk}")
        a.e("s_waitcnt vmcnt(0)")
        a.e("s_mov_b64 exec, 1")
        a.e(f"buffer_store_dword v{V_NONCE}, v{V_ZERO}, {sr(srd,4)}, s{so} offen sc1")
        a.e("s_mov_b64 exec, -1")
        a.lab(sk)
        a.e(f"s_mov_b32 s{S_FDONE}, 0")

    a.e(f"s_mov_b32 s{S_FDONE}, 0")
    for ps in range(2):
        for p in range(7):
            n0 = ps * 56 + p * 8 - LA
            if ps == 0:
                sched_check(n0 - 2, need_of(ps, p))
                k = 0
                for xp in range(7):
                    if XQ[xp] == p:
                        for cp in range(4):
                            at(n0 - 2 + k // 2, lambda xp=xp, cp=cp: x_read1(xp, cp))
                            k += 1
            else:
                sched_check(n0, need_of(ps, p))

            def sig(ps=ps, p=p):
                if ps == 0:
                    xs = [xp for xp in range(7) if XQ[xp] <= p]
                    lg.wait(xr_tok[(1, 2 * max(xs) + 1)])
                lds_signal(a, lg, V_PROG, V_SIG, ps * 7 + p + 2)
            at(ps * 56 + p * 8 + 1, sig)
    get_nonce(a, lg, V_FL, None, V_NONCE)
    at(58, lambda: bg.extend(epi_items(0) + epi_items(1)))
    for f in fixed.pop(-1, []):
        f()
    for n in range(LA):
        rd(n)
    stamp(a, 1)
    stamp2(a, 6)
    nswap = [0]
    for n in range(NF):
        ps, ks, c, t = n // 56, (n % 56) // 4, (n % 4) // 2, n % 2
        nfix = 0
        for f in fixed.pop(n, []):
            f()
            nfix += 1
        if n + LA < NF:
            rd(n + LA)
        if (P["EXP"] & 256) and n % 16 == 0 and n > 0:
            stamp(a, 1 + n // 16)
        if STAMPS and STMODE == 2 and n % 16 == 0:
            a.e(f"s_memrealtime {sr(S_ST+2*(1+n//16),2)}")
        lg.wait(rtok[n])
        lg.wait(xr_tok[(c, ks)])
        w = V_WR + (n % NR) * 4
        acc = ACC(2 * ps + t)
        a.e(f"v_mfma_f32_32x32x16_bf16 {vr(acc,16)}, {vr(w,4)}, {vr(X(c,ks),4)}, {vr(acc,16)}")
        budget = P["BGN"] - nfix
        had_bg = bool(bg)
        while bg and budget > 0:
            bg.pop(0)()
            budget -= 1
        if ps == 1 and not bg and not had_bg and n > 60:
            if n % P["TFN"] == 0:
                try_flag()
            elif budget > 0 and nswap[0] < min(4 * ks, NSWAP_A) and P["SWIN"]:
                x_swap(nswap[0] // 4, nswap[0] % 4)
                nswap[0] += 1
    assert not fixed and not bg, (fixed.keys(), len(bg))
    lds_signal(a, lg, V_PROG, V_SIG, 16)
    if P["EXP"] & 256:
        stamp_flush(a, 8)
        a.e("s_endpgm")
    stamp(a, 2)
    force_flag(SRD_WS, S_FLA)
    a.e("s_nop 7")
    for f in epi_items(2) + epi_items(3):
        f()
    while nswap[0] < NSWAP_A:
        x_swap(nswap[0] // 4, nswap[0] % 4)
        nswap[0] += 1
    assert nswap[0] == NSWAP_A, nswap
    a.e(f"s_add_u32 s{S_FLA}, s{S_FLA}, {FSTRIDE}")
    stamp(a, 3)
    a.e("s_branch L_p1_b")
    a.lab("L_p1_noa")
    if P["EXP"] & 1024:
        a.e("s_endpgm")
    lg = Cnt(a, "lgkmcnt", 15)
    get_nonce(a, lg, V_FL, None, V_NONCE)

    def x_pair(p):
        lds_wait_min4(a, lg, V_FL, V_F, 16, NOA_CNT[("x", p)])
        for cp in range(4):
            x_read1(p, cp)
        lg.drain()
        qs = [q for q in range(7) if all(xp <= p for xp in range(7) if XQ[xp] <= q)]
        lds_signal(a, lg, V_PROG, V_SIG, max(qs) + 2)
        for ks in (2 * p, 2 * p + 1):
            for i in range(4):
                if 4 * ks + i < NSWAP_A:
                    x_swap(ks, i)

    next(rp)
    for p in range(7):
        x_pair(p)
    lds_signal(a, lg, V_PROG, V_SIG, 16)
    get_nonce(a, lg, V_FL, None, V_NONCE)
    a.e(f"s_mov_b32 s{S_FDONE}, 1")
    a.e(f"s_mov_b32 s{S_FLA}, 0")
    if P["EXP"] & 256:
        a.e("s_endpgm")
    stamp(a, 1); stamp(a, 2); stamp(a, 3)
    a.lab("L_p1_b")


def gen_p1_stage_b(a, P):
    vm = Cnt(a, "vmcnt", 63)
    lg = Cnt(a, "lgkmcnt", 15)
    V_LANE = 0
    V_T = 1
    V_FL = 12
    V_PROG = 13
    V_L16 = 14
    V_ZERO = 15
    V_SBA = 16
    V_F = 24
    V_NONCE = 28
    V_SIG = 29
    V_PA, V_QA = 30, 31
    V_X = 32
    V_ACC = 144
    V_HALO = 192
    V_WR = 196
    V_M = 236
    NR = 10

    def X(T, ks):
        return V_X + (T * 14 + ks) * 4

    def ACC(T, c):
        return V_ACC + (T * 6 + c) * 4

    a.c("==== P1 stage B ====")
    if P["EXP"] & 1:
        for i in range(4, 8):
            stamp(a, i)
        stamp_flush(a, 8)
        a.e("s_endpgm")
    a.e("s_waitcnt lgkmcnt(0)")
    bases = {0: 0, 1: L_WA, 2: L_WB}

    def reg_off(ks):
        ad = sb_addr(ks)
        k = 1 if ks < 8 else (0 if ks < 12 else 2)
        return k, ad - bases[k]
    for k, bv in bases.items():
        a.e(f"v_add_u32 v{V_SBA+k}, {bv}, v{V_L16}")
        a.e(f"v_add_u32 v{V_SBA+3+k}, {bv}, v{V_PA}")
        a.e(f"v_add_u32 v{V_M+17+k}, {bv}, v{V_QA}")
    VQ = V_M + 17
    V_MC = V_M
    V_MP = V_M + 4
    V_MP0 = V_M + 8
    V_NEG = V_M + 12
    S_MK = 60
    bg = []

    def mask_bits(f):
        m = 0
        for l in range(64):
            if f(l & 15, l >> 4):
                m |= 1 << l
        return m
    bg.append(lambda: a.e(f"v_mov_b32 v{V_NEG}, 0xf149f2ca"))
    for e in range(4):
        for (dst, f) in ((V_MC + e, lambda q, g, e=e: (q - 4 * g - e) >= 0 and (q - 4 * g - e) % 2 == 0),
                         (V_MP + e, lambda q, g, e=e: (4 * g + e - q) >= 2 and (4 * g + e - q) % 2 == 0)):
            mb = mask_bits(f)

            def mk(dst=dst, mb=mb):
                a.e(f"s_mov_b32 s{S_MK}, 0x{mb & 0xffffffff:08x}")
                a.e(f"s_mov_b32 s{S_MK+1}, 0x{mb >> 32:08x}")
                a.e(f"v_cndmask_b32 v{dst}, v{V_NEG}, 0, {sr(S_MK,2)}")
            bg.append(mk)

    def mk0():
        a.e(f"s_or_b32 s{S_T3}, s{S_M}, s{S_W}")
        a.e(f"s_cselect_b64 {sr(S_MK,2)}, 0, -1")
        for e in range(4):
            a.e(f"v_cndmask_b32 v{V_MP0+e}, v{V_MP+e}, v{V_NEG}, {sr(S_MK,2)}")
    bg.append(mk0)

    def try_flag():
        sk = a.newlab("Ltf")
        a.e(f"s_getreg_b32 s{S_PG0}, hwreg(HW_REG_IB_STS)")
        a.e(f"s_and_b32 s{S_PG0}, s{S_PG0}, 0x00c0000f")
        a.e(f"s_or_b32 s{S_PG0}, s{S_PG0}, s{S_FDONE}")
        a.e(f"s_cbranch_scc1 {sk}")
        a.e("s_mov_b64 exec, 1")
        a.e(f"buffer_store_dword v{V_NONCE}, v{V_ZERO}, {sr(SRD_WS,4)}, s{S_FLA} offen sc1")
        a.e("s_mov_b64 exec, -1")
        a.e(f"s_mov_b32 s{S_FDONE}, 1")
        a.lab(sk)

    LA = P["LAB"]
    NFK = 8
    NF = 14 * NFK
    rtok = {}
    fixed = {}

    def at(n, f):
        fixed.setdefault(max(n, -1), []).append(f)

    def sched_check(n0, need):
        st = {}
        ok, spin = a.newlab("Lok"), a.newlab("Lspin")

        def f0():
            a.e(f"ds_read_b128 {vr(V_F,4)}, v{V_FL} offset:16")
            st["tok"] = lg.issue()

        def f1():
            lg.wait(st["tok"])
            a.e(f"v_min3_u32 v{V_F}, v{V_F}, v{V_F+1}, v{V_F+2}")

        def f4():
            a.e(f"s_cbranch_vccnz {spin}")
            a.lab(ok)
            t = a.tail
            t.append(f"{spin}:")
            t.append(f"  s_mov_b32 s{S_SPIN}, 0")
            t.append(f"{spin}_l:")
            t.append(f"  ds_read_b128 {vr(V_F,4)}, v{V_FL} offset:16")
            t.append(f"  s_getreg_b32 s{S_PG0}, hwreg(HW_REG_IB_STS)")
            t.append(f"  s_and_b32 s{S_PG0}, s{S_PG0}, 0x00c0000f")
            t.append(f"  s_or_b32 s{S_PG0}, s{S_PG0}, s{S_FDONE}")
            t.append(f"  s_cbranch_scc1 {spin}_n")
            t.append(f"  s_mov_b64 exec, 1")
            t.append(f"  buffer_store_dword v{V_NONCE}, v{V_ZERO}, {sr(SRD_WS,4)}, s{S_FLA} offen sc1")
            t.append(f"  s_mov_b64 exec, -1")
            t.append(f"  s_mov_b32 s{S_FDONE}, 1")
            t.append(f"{spin}_n:")
            t.append(f"  s_add_u32 s{S_SPIN}, s{S_SPIN}, 1")
            t.append(f"  s_cmp_gt_u32 s{S_SPIN}, {SPIN_MAX*8}")
            t.append(f"  s_waitcnt lgkmcnt(0)")
            t.append(f"  s_cbranch_scc1 {ok}")
            t.append(f"  v_min3_u32 v{V_F}, v{V_F}, v{V_F+1}, v{V_F+2}")
            t.append(f"  v_min_u32 v{V_F}, v{V_F}, v{V_F+3}")
            t.append(f"  v_cmp_gt_u32 vcc, {need}, v{V_F}")
            t.append(f"  s_cbranch_vccnz {spin}_l")
            t.append(f"  s_branch {ok}")
        at(n0 - 7, f0)
        at(n0 - 3, f1)
        at(n0 - 2, lambda: a.e(f"v_min_u32 v{V_F}, v{V_F}, v{V_F+3}"))
        at(n0 - 1, lambda: a.e(f"v_cmp_gt_u32 vcc, {need}, v{V_F}"))
        at(n0, f4)

    for p in range(7):
        sched_check(16 * p - LA, ITEM_CNT[("B", 2 * p + 1)])
    for sw in range(NSWAP_A, 56):
        ks, i = divmod(sw, 4)
        at((ks - 2) * NFK + 2 * i, lambda ks=ks, i=i: a.e(f"v_permlane16_swap_b32 v{X(0,ks)+i}, v{X(1,ks)+i}"))
    for n in range(1, 64, 8):
        at(n, try_flag)

    def rd(n):
        ks, c = divmod(n, NFK)
        k, off = reg_off(ks)
        d = V_WR + (n % NR) * 4
        if c < 6:
            a.e(f"ds_read_b128 {vr(d,4)}, v{V_SBA+k} offset:{off + c*1024}")
        elif c == 6:
            a.e(f"ds_read_b128 {vr(d,4)}, v{V_SBA+3+k} offset:{off}")
        else:
            a.e(f"ds_read_b128 {vr(d,4)}, v{VQ+k} offset:{off}")
        rtok[n] = lg.issue()

    for f in fixed.pop(-1, []):
        f()
    for n in range(LA):
        rd(n)
    stamp(a, 4)
    for n in range(NF):
        ks, c = divmod(n, NFK)
        for f in fixed.pop(n, []):
            f()
        if n + LA < NF:
            rd(n + LA)
        w = V_WR + (n % NR) * 4
        if c < 6:
            lg.wait(rtok[n])
            for T in range(2):
                C = None if ks == 0 else ACC(T, c)
                if c < 4:
                    mfma(a, ACC(T, c), w, X(T, ks), C)
                else:
                    mfma(a, ACC(T, c), X(T, ks), w, C)
        elif c == 7:
            lg.wait(rtok[n])
            wp = V_WR + ((n - 1) % NR) * 4
            mfma(a, V_HALO, wp, w, None if ks == 0 else V_HALO)
        if n >= 64 and bg and n % 2 == 1:
            bg.pop(0)()
    assert not fixed and not bg

    a.c("---- attention ----")
    stamp(a, 5)
    R = V_X
    QF = [R, R + 4]
    KF = [R + 8, R + 12]
    KP = R + 16
    VV = [R + 20, R + 26]
    VPX = R + 32
    HX = R + 36
    VT1 = R + 40
    SC = [R + 44, R + 48]
    SP = [R + 52, R + 56]
    PF = [R + 60, R + 64]
    OO = [[R + 68, R + 72], [R + 76, R + 80]]
    OP = [R + 84, R + 88]
    TM = [R + 92, R + 96]
    ZG = [R + 100, R + 101]
    GO = R + 102
    V_EXW, V_EXH, V_EXR = 1, 2, 3
    a.e(f"ds_read_b128 {vr(V_F,4)}, v{V_FL}")
    ptk = lg.issue()
    a.e(f"s_lshl_b32 s{S_T3}, s{S_W}, 11")
    a.e(f"s_add_u32 s{S_T3}, s{S_T3}, {L_XB}")
    a.e(f"v_add_u32 v{V_EXR}, s{S_T3}, v{V_L16}")
    a.e(f"v_add_u32 v{V_EXW}, 2048, v{V_EXR}")
    a.e(f"s_lshr_b32 s{S_T3}, s{S_W}, 1")
    a.e(f"s_lshl_b32 s{S_T3}, s{S_T3}, 10")
    a.e(f"s_and_b32 s{S_T4}, s{S_W}, 1")
    a.e(f"s_lshl_b32 s{S_T4}, s{S_T4}, 3")
    a.e(f"s_add_u32 s{S_T3}, s{S_T3}, s{S_T4}")
    a.e(f"s_add_u32 s{S_T3}, s{S_T3}, {L_XB}")
    a.e(f"v_add_u32 v{V_EXH}, s{S_T3}, v{V_L16}")

    def pk(d, s):
        a.e(f"v_cvt_pk_bf16_f32 v{d}, v{s}, v{s+1}")
        a.e(f"v_cvt_pk_bf16_f32 v{d+1}, v{s+2}, v{s+3}")

    pk(KF[1], ACC(1, 2)); pk(KF[1] + 2, ACC(1, 3))
    pk(QF[1], ACC(1, 0)); pk(QF[1] + 2, ACC(1, 1))
    pk(KF[0], ACC(0, 2)); pk(KF[0] + 2, ACC(0, 3))
    pk(VT1, ACC(1, 4)); pk(VT1 + 2, ACC(1, 5))
    pk(HX, V_HALO)
    lds_wait_min4(a, lg, V_FL, V_F, 0, 16, ptk)
    a.e(f"ds_write_b128 v{V_EXW}, {vr(KF[1],4)}")
    a.e(f"ds_write_b128 v{V_EXW}, {vr(VT1,4)} offset:1024")
    a.e(f"ds_write_b64 v{V_EXH}, {vr(HX,2)}")
    mfma(a, SC[1], KF[1], QF[1], V_MC)
    mfma(a, SP[1], KF[0], QF[1], V_MP)
    pk(QF[0], ACC(0, 0)); pk(QF[0] + 2, ACC(0, 1))
    a.e("s_waitcnt lgkmcnt(0)")
    lg.issue(); lg.issue(); lg.issue(); lg.mark_drained()
    lds_signal(a, lg, V_PROG, V_SIG, 17)
    mfma(a, SC[0], KF[0], QF[0], V_MC)
    for dt in range(2):
        pk(VV[dt] + 2, ACC(0, 4 + dt))
        a.e(f"v_mov_b32 v{VV[dt]+4}, v{VT1+2*dt}")
        a.e(f"v_mov_b32 v{VV[dt]+5}, v{VT1+2*dt+1}")

    def zipped(l0, l1):
        for x, y in zip(l0, l1):
            a.e(x)
            a.e(y)

    def gate_code(T):
        z, t0, t1 = ACC(T, 1), TM[T], TM[T] + 1
        return [
            f"v_mov_b32 v{t0}, v{z}",
            f"v_mov_b32 v{t1}, v{z}",
            "s_nop 0",
            f"v_permlane32_swap_b32 v{t0}, v{t1}",
            f"v_mov_b32 v{t0}, v{t1}",
            "s_nop 0",
            f"v_permlane16_swap_b32 v{t0}, v{t1}",
            f"v_mul_f32 v{t1}, 0xbfb8aa3b, v{t1}",
            f"v_exp_f32 v{t1}, v{t1}",
            f"v_add_f32 v{t1}, 1.0, v{t1}",
            f"v_rcp_f32 v{ZG[T]}, v{t1}",
            f"v_sub_f32 v{GO+T}, 1.0, v{ZG[T]}",
        ]
    zipped(gate_code(0), gate_code(1))
    a.e(f"s_mul_i32 s{S_T4}, s{S_RB}, 72")
    a.e(f"s_add_u32 s{S_T4}, s{S_T4}, s{S_J}")
    a.e(f"s_add_u32 s{S_T4}, s{S_T4}, 56")
    a.e(f"s_lshl_b32 s{S_T4}, s{S_T4}, 12")
    a.e(f"s_and_b32 s{S_T0}, s{S_W}, 1")
    a.e(f"s_lshl_b32 s{S_T1}, s{S_T0}, 11")
    a.e(f"s_add_u32 s{S_T4}, s{S_T4}, s{S_T1}")
    a.e(f"s_lshl_b32 s{S_T1}, s{S_J}, 5")
    a.e(f"s_add_u32 s{S_T1}, s{S_T1}, s{S_RB}")
    a.e(f"s_lshl_b32 s{S_T1}, s{S_T1}, 8")
    a.e(f"s_lshl_b32 s{S_T0}, s{S_T0}, 3")
    a.e(f"s_add_u32 s{S_T1}, s{S_T1}, s{S_T0}")
    a.e(f"s_add_u32 s{S_T1}, s{S_T1}, {WS_G}")
    sk = a.newlab("Lff")
    a.e(f"s_cmp_lg_u32 s{S_FDONE}, 0")
    a.e(f"s_cbranch_scc1 {sk}")
    a.e("s_waitcnt vmcnt(0)")
    flag_store(a, vm, V_NONCE, V_ZERO, S_FLA)
    a.lab(sk)
    a.e("s_mov_b64 exec, 0xffff")
    a.e(f"buffer_store_dwordx2 {vr(GO,2)}, v{V_L16}, {sr(SRD_WS,4)}, s{S_T1} offen sc1")
    vm.issue()
    a.e("s_mov_b64 exec, -1")
    lds_wait_min4(a, lg, V_FL, V_F, 0, 17)
    a.e(f"ds_read_b128 {vr(KP,4)}, v{V_EXR}")
    a.e(f"ds_read_b128 {vr(VPX,4)}, v{V_EXR} offset:1024")
    a.e("s_waitcnt lgkmcnt(1)")
    mfma(a, SP[0], KP, QF[0], V_MP0)
    a.e("s_waitcnt lgkmcnt(0)")
    lg.issue(); lg.issue(); lg.mark_drained()
    lds_signal(a, lg, V_PROG, V_SIG, 18)
    for dt in range(2):
        a.e(f"v_mov_b32 v{VV[dt]}, v{VPX+2*dt}")
        a.e(f"v_mov_b32 v{VV[dt]+1}, v{VPX+2*dt+1}")
    CL = (28 ** -0.5) * 1.4426950408889634
    import struct
    clbits = struct.unpack("<I", struct.pack("<f", CL))[0]
    a.e(f"s_mov_b32 s{S_T3}, 0x{clbits:08x}")
    a.e("s_nop 1")

    def xred(op, x, t):
        return [
            f"v_mov_b32 v{t}, v{x}",
            "s_nop 0",
            f"v_permlane32_swap_b32 v{x}, v{t}",
            f"{op} v{x}, v{x}, v{t}",
            f"v_mov_b32 v{t}, v{x}",
            "s_nop 0",
            f"v_permlane16_swap_b32 v{x}, v{t}",
            f"{op} v{x}, v{x}, v{t}",
        ]

    def soft_code(T):
        m, sm, t = TM[T], TM[T] + 1, TM[T] + 2
        sp, sc = SP[T], SC[T]
        o = []
        o.append(f"v_max3_f32 v{m}, v{sc}, v{sc+1}, v{sc+2}")
        o.append(f"v_max3_f32 v{m}, v{m}, v{sc+3}, v{sp}")
        o.append(f"v_max3_f32 v{m}, v{m}, v{sp+1}, v{sp+2}")
        o.append(f"v_max_f32 v{m}, v{m}, v{sp+3}")
        o += xred("v_max_f32", m, t)
        o.append(f"v_mul_f32 v{m}, s{S_T3}, v{m}")
        for e in range(4):
            o.append(f"v_fma_f32 v{sp+e}, v{sp+e}, s{S_T3}, -v{m}")
            o.append(f"v_fma_f32 v{sc+e}, v{sc+e}, s{S_T3}, -v{m}")
        for e in range(4):
            o.append(f"v_exp_f32 v{sp+e}, v{sp+e}")
            o.append(f"v_exp_f32 v{sc+e}, v{sc+e}")
        o.append(f"v_cvt_pk_bf16_f32 v{PF[T]}, v{sp}, v{sp+1}")
        o.append(f"v_cvt_pk_bf16_f32 v{PF[T]+1}, v{sp+2}, v{sp+3}")
        o.append(f"v_cvt_pk_bf16_f32 v{PF[T]+2}, v{sc}, v{sc+1}")
        o.append(f"v_cvt_pk_bf16_f32 v{PF[T]+3}, v{sc+2}, v{sc+3}")
        o.append(f"v_add_f32 v{sm}, v{sp}, v{sp+1}")
        for dt in range(2):
            o.append(f"v_mfma_f32_16x16x32_bf16 {vr(OO[T][dt],4)}, {vr(VV[dt]+2*T,4)}, {vr(PF[T],4)}, 0")
        o.append(f"v_add_f32 v{t}, v{sp+2}, v{sp+3}")
        o.append(f"v_add_f32 v{m}, v{sc}, v{sc+1}")
        o.append(f"v_add3_u32 v{V_SIG}, v{V_SIG}, 0, 0" if False else f"v_add_f32 v{sm}, v{sm}, v{t}")
        o.append(f"v_add_f32 v{t}, v{sc+2}, v{sc+3}")
        o.append(f"v_add_f32 v{sm}, v{sm}, v{m}")
        o.append(f"v_add_f32 v{sm}, v{sm}, v{t}")
        o += xred("v_add_f32", sm, t)
        o.append(f"v_rcp_f32 v{sm}, v{sm}")
        o.append(f"v_mul_f32 v{sm}, v{sm}, v{ZG[T]}")
        for dt in range(2):
            for e in range(4):
                o.append(f"v_mul_f32 v{OO[T][dt]+e}, v{OO[T][dt]+e}, v{sm}")
        for dt in range(2):
            o.append(f"v_cvt_pk_bf16_f32 v{OP[T]+2*dt}, v{OO[T][dt]}, v{OO[T][dt]+1}")
            o.append(f"v_cvt_pk_bf16_f32 v{OP[T]+2*dt+1}, v{OO[T][dt]+2}, v{OO[T][dt]+3}")
        o.append(f"buffer_store_dwordx4 {vr(OP[T],4)}, v{V_L16}, {sr(SRD_WS,4)}, s{S_T4} offen offset:{T*1024} sc1")
        return o
    zipped(soft_code(1), soft_code(0))
    a.e(f"s_add_u32 s{S_T3}, s{S_FIDX}, {WS_FA + 2*FSTRIDE}")
    stamp(a, 6)
    vm.drain()
    flag_store(a, vm, V_NONCE, V_ZERO, S_T3)
    stamp(a, 7)
    stamp_flush(a, 8)
    a.e("s_endpgm")


def gen_p2(a, P):
    vm = Cnt(a, "vmcnt", 63)
    lg = Cnt(a, "lgkmcnt", 15)
    V_LANE = 0
    V_T = 1
    V_L16 = 10
    V_ZERO = 11
    V_FL = 12
    V_NONCE = 13
    V_SIG = 14
    V_BF = 15
    V_F = 16
    V_P0, V_P1 = 20, 21
    V_PO0, V_PO1 = 22, 23
    V_G = 24
    V_HO = 28
    V_ACC = 32
    V_POOL = 96
    NSLOT = 10

    def ACC(ct, rt):
        return V_ACC + (ct * 4 + rt) * 4

    a.c("==== P2 program ====")
    P2CTX[0] = True
    S_W2K, S_WOK = 72, 28
    a.e(f"s_mov_b64 {sr(S_W2K,2)}, {sr(S_W2,2)}")
    a.e(f"s_mov_b64 {sr(S_WOK,2)}, {sr(S_WO,2)}")
    V_XO, V_WO, V_BO = 29, 30, 31
    SRD_L = SRD_O
    S_EXM = 24
    S_BA, S_BB, S_BSTEP, S_LA_, S_LB_, S_FWQO, S_FW2O, S_BST2 = 15, 16, 17, 18, 19, 20, 21, 24
    mk_srd(a, SRD_X, S_X, 2048 * 896)
    a.e(f"s_lshl_b32 s{S_T0}, s{S_M}, 7")
    a.e(f"s_lshl_b32 s{S_T1}, s{S_W}, 5")
    a.e(f"s_add_u32 s{S_T0}, s{S_T0}, s{S_T1}")
    a.e(f"v_lshrrev_b32 v1, 3, v{V_LANE}")
    a.e(f"v_add_u32 v1, s{S_T0}, v1")
    a.e(f"v_mul_u32_u24 v1, 896, v1")
    a.e(f"v_and_b32 v2, 7, v{V_LANE}")
    a.e(f"v_lshrrev_b32 v3, 4, v{V_LANE}")
    a.e(f"v_xor_b32 v2, v2, v3")
    a.e(f"v_lshl_add_u32 v{V_XO}, v2, 4, v1")
    a.e(f"v_xor_b32 v{V_BO}, 64, v{V_XO}")
    mk_srd(a, SRD_A, S_W1, 448 * 3584)
    a.e(f"s_cmp_ge_u32 s{S_J}, 14")
    if X3 & 16:
        a.e(f"s_mov_b32 s{SRD_A+2}, 0")
    if X3 & 8:
        a.e(f"s_mov_b32 s{SRD_X+2}, 0")
    a.e(f"s_cselect_b32 s{SRD_A+2}, 0, s{SRD_A+2}")
    a.e(f"v_and_b32 v6, 1, v3")
    a.e(f"v_lshlrev_b32 v6, 2, v6")
    a.e(f"v_and_b32 v7, 7, v{V_LANE}")
    a.e(f"v_xor_b32 v6, v6, v7")
    a.e(f"s_lshl_b32 s{S_T3}, s{S_W}, 3")
    a.e(f"v_lshrrev_b32 v4, 3, v{V_LANE}")
    a.e(f"v_add_u32 v4, s{S_T3}, v4")
    a.e(f"v_mul_u32_u24 v4, 3584, v4")
    a.e(f"v_lshl_add_u32 v4, v6, 4, v4")
    a.e(f"s_lshl_b32 s{S_T3}, s{S_J}, 8")
    a.e(f"v_add_u32 v{V_WO}, s{S_T3}, v4")
    a.e(f"s_and_b32 s{S_ROT}, s{S_IDX}, 7")
    a.e(f"s_lshr_b32 s{S_T3}, s{S_IDX}, 3")
    a.e(f"s_lshl_b32 s{S_T3}, s{S_T3}, 1")
    a.e(f"s_add_u32 s{S_ROT}, s{S_ROT}, s{S_T3}")
    a.e(f"s_sub_u32 s{S_T3}, s{S_ROT}, 7")
    a.e(f"s_cmp_ge_u32 s{S_ROT}, 7")
    a.e(f"s_cselect_b32 s{S_ROT}, s{S_T3}, s{S_ROT}")
    if not P["ROT"]:
        a.e(f"s_mov_b32 s{S_ROT}, 0")
    S_LX, S_LW, S_LM = 78, 79, 77
    a.e(f"s_lshl_b32 s{S_LX}, s{S_W}, 12")
    a.e(f"s_lshl_b32 s{S_LW}, s{S_W}, 10")
    a.e(f"s_cmp_ge_u32 s{S_J}, 14")
    a.e(f"s_cselect_b32 s{S_LM}, 0x30000, 0")
    mk_srd(a, SRD_WS, S_WS, WS_END + 2048 * 64)
    a.e(f"v_lshlrev_b32 v{V_L16}, 4, v{V_LANE}")
    a.e(f"v_mov_b32 v{V_ZERO}, 0")
    a.e(f"v_mov_b32 v{V_FL}, {L_FL}")
    a.e(f"s_lshl_b32 s{S_T0}, s{S_W}, 2")
    a.e(f"s_add_u32 s{S_T0}, s{S_T0}, {L_FL+16}")
    mk_sig_addr(a, V_BF, V_LANE, S_T0)
    if P["EXP"] & 1024:
        a.e("s_barrier")
        a.e("s_endpgm")

    def stage_b_setup():
        a.e(f"s_and_b32 s{S_RB}, s{S_IDX}, 3")
        a.e(f"s_lshl_b32 s{S_T0}, s{S_XCD}, 2")
        a.e(f"s_add_u32 s{S_RB}, s{S_RB}, s{S_T0}")
        a.e(f"s_lshr_b32 s{S_NT}, s{S_IDX}, 2")
        a.e(f"v_and_b32 v3, 3, v{V_LANE}")
        a.e(f"v_lshrrev_b32 v4, 2, v{V_LANE}")
        a.e(f"v_lshrrev_b32 v5, 4, v{V_LANE}")
        a.e(f"v_lshlrev_b32 v5, 1, v5")
        a.e(f"v_mov_b32 v6, {P['FQ']}")
        a.e(f"v_lshrrev_b32 v5, v5, v6")
        a.e(f"v_and_b32 v5, 3, v5")
        a.e(f"v_xor_b32 v5, v5, v3")
        a.e(f"s_lshl_b32 s{S_T0}, s{S_M}, 7")
        a.e(f"s_sub_u32 s{S_T0}, s{S_T0}, 16")
        a.e(f"s_max_i32 s{S_T0}, s{S_T0}, 0")
        a.e(f"v_add_u32 v4, s{S_T0}, v4")
        a.e(f"v_mul_u32_u24 v4, 896, v4")
        a.e(f"v_lshl_add_u32 v4, v5, 4, v4")
        a.e(f"v_mov_b32 v5, 0x40000000")
        a.e(f"s_cmp_eq_u32 s{S_M}, 0")
        a.e(f"s_cselect_b64 vcc, -1, 0")
        a.e(f"v_cndmask_b32 v{V_HO}, v4, v5, vcc")
        a.e(f"s_cmp_lt_u32 s{S_W}, 2")
        a.e(f"s_cselect_b64 vcc, -1, 0")
        a.e(f"v_cndmask_b32 v{V_HO}, v{V_HO}, v{V_L16}, vcc")
        a.e(f"s_cselect_b32 s{SRD_L}, s{SRD_WS}, s{SRD_X}")
        a.e(f"s_cselect_b32 s{SRD_L+1}, s{SRD_WS+1}, s{SRD_X+1}")
        a.e(f"s_cselect_b32 s{SRD_L+2}, s{SRD_WS+2}, s{SRD_X+2}")
        a.e(f"s_mov_b32 s{SRD_L+3}, 0x00020000")
        a.e(f"s_cselect_b32 s{S_BSTEP}, 6144, 64") if False else None
        a.e(f"s_mov_b32 s{S_T0}, 6144")
        a.e(f"s_cselect_b32 s{S_BSTEP}, s{S_T0}, 64")
        a.e(f"s_mul_i32 s{S_BA}, s{S_J}, {14*6144}")
        a.e(f"s_lshl_b32 s{S_T0}, s{S_W}, 10")
        a.e(f"s_add_u32 s{S_BA}, s{S_BA}, s{S_T0}")
        a.e(f"s_add_u32 s{S_BA}, s{S_BA}, {WS_WQR}")
        a.e(f"s_add_u32 s{S_T1}, s{S_BA}, 4096")
        a.e(f"s_cmp_lt_u32 s{S_W}, 2")
        a.e(f"s_cselect_b32 s{S_BB}, s{S_T1}, 0")
        a.e(f"s_add_u32 s{S_T1}, s{S_T0}, 4096")
        a.e(f"s_min_u32 s{S_LB_}, s{S_T1}, 6144")
        a.e(f"s_mov_b32 s{S_LA_}, s{S_T0}")
        a.e(f"s_lshl_b32 s{S_BST2}, s{S_BSTEP}, 1")
        a.e(f"v_min_u32 v{V_PO0}, 13, v{V_LANE}")
        a.e(f"v_lshlrev_b32 v{V_PO0}, 2, v{V_PO0}")
        a.e(f"v_min_u32 v{V_PO1}, 17, v{V_LANE}")
        a.e(f"v_lshlrev_b32 v{V_PO1}, 2, v{V_PO1}")
        a.e(f"s_lshl_b32 s{S_T0}, s{S_J}, 7")
        a.e(f"s_add_u32 s{S_FWQO}, s{S_T0}, {WS_FWQ}")
        a.e(f"s_min_u32 s{S_T1}, s{S_NT}, 6")
        a.e(f"s_lshl_b32 s{S_T1}, s{S_T1}, 2")
        a.e(f"s_add_u32 s{S_T1}, s{S_T1}, s{S_W}")
        a.e(f"s_lshl_b32 s{S_T1}, s{S_T1}, 7")
        a.e(f"s_add_u32 s{S_FW2O}, s{S_T1}, {WS_FW2}")

    TWO = [22, 23, 30, 31, 69, 53, 73]
    S_AH, S_AO, S_WOO = 74, 75, 76
    SRD_W2, SRD_WO = SRD_A, SRD_X
    S_FBO, S_GO, S_FA2, S_FA1 = 78, 79, 6, 77
    V_WQ = 1
    V_TW, V_TD = 6, 7
    V_TR = [29, 30, 31, 8]
    V_FAO = 9
    VT8, VT9 = V_POOL + 16, V_POOL + 17
    def p2_setup():
        mk_srd(a, SRD_W2, S_W2K, 1792 * 896)
        mk_srd(a, SRD_WO, S_WOK, 448 * 896)
        a.e(f"s_mul_i32 s{S_BASEA}, s{S_RB}, {72*4096}")
        a.e(f"s_mul_i32 s{S_T0}, s{S_W}, {7*4096}")
        a.e(f"s_lshl_b32 s{S_T1}, s{S_W}, 14")
        a.e(f"s_add_u32 s{S_T1}, s{S_T1}, {56*4096}")
        a.e(f"s_add_u32 s{S_AH}, s{S_BASEA}, s{S_T0}")
        a.e(f"s_add_u32 s{S_AO}, s{S_BASEA}, s{S_T1}")
        a.e(f"s_lshl_b32 s{S_T5}, s{S_NT}, 7")
        a.e(f"s_mul_i32 s{S_WOO}, s{S_W}, {112*896}")
        a.e(f"s_add_u32 s{S_WOO}, s{S_WOO}, s{S_T5}")
        a.e(f"s_and_b32 s{S_T0}, s{S_RB}, 3")
        a.e(f"s_lshl_b32 s{S_T0}, s{S_T0}, 1")
        a.e(f"s_add_u32 s{S_T0}, s{S_T0}, s{S_NT}")
        a.e(f"s_sub_u32 s{S_T1}, s{S_T0}, 7")
        a.e(f"s_cmp_ge_u32 s{S_T0}, 7")
        a.e(f"s_cselect_b32 s{S_T0}, s{S_T1}, s{S_T0}")
        if not P["ROT2"]:
            a.e(f"s_mov_b32 s{S_T0}, 0")
        a.e(f"s_mul_i32 s{S_T4}, s{S_W}, 7")
        for q in range(7):
            a.e(f"s_lshl_b32 s{S_RO2+q}, s{S_T0}, 12")
            a.e(f"s_add_u32 s{S_T1}, s{S_T4}, s{S_T0}")
            a.e(f"s_lshr_b32 s{S_T2}, s{S_T1}, 1")
            a.e(f"s_mul_i32 s{S_T2}, s{S_T2}, {128*896}")
            a.e(f"s_and_b32 s{S_T1}, s{S_T1}, 1")
            a.e(f"s_mul_i32 s{S_T1}, s{S_T1}, {32*896}")
            a.e(f"s_add_u32 s{S_T2}, s{S_T2}, s{S_T1}")
            a.e(f"s_add_u32 s{TWO[q]}, s{S_T2}, s{S_T5}")
            if q < 6:
                a.e(f"s_add_u32 s{S_T0}, s{S_T0}, 1")
                a.e(f"s_cmp_eq_u32 s{S_T0}, 7")
                a.e(f"s_cselect_b32 s{S_T0}, 0, s{S_T0}")
        a.e(f"v_lshrrev_b32 v{VT8}, 3, v{V_LANE}")
        a.e(f"v_lshrrev_b32 v{VT9}, 4, v{V_LANE}")
        a.e(f"v_lshlrev_b32 v5, 1, v{VT9}")
        a.e(f"v_and_b32 v6, 7, v{V_LANE}")
        a.e(f"v_xor_b32 v5, v5, v6")
        a.e(f"v_mul_u32_u24 v{V_WQ}, 896, v{VT8}")
        a.e(f"v_lshl_add_u32 v{V_WQ}, v5, 4, v{V_WQ}")
        for q in range(1, 4):
            a.e(f"v_add_u32 v{V_WQ+q}, {q*8*896}, v{V_WQ}")
        a.e(f"v_mov_b32 v5, 0x40000000")
        a.e(f"s_mov_b32 vcc_lo, 0")
        a.e(f"s_mov_b32 vcc_hi, -1")
        a.e("s_nop 1")
        a.e(f"v_cndmask_b32 v5, v{V_WQ+3}, v5, vcc")
        a.e(f"s_lshl_b32 s{S_T0}, s{S_W}, 12")
        a.e(f"s_add_u32 s{S_T0}, s{S_T0}, {L_TS}")
        a.e(f"v_add_u32 v{V_TW}, s{S_T0}, v{V_L16}")
        a.e(f"v_bfe_u32 v{VT8}, v{V_LANE}, 2, 2")
        a.e(f"v_and_b32 v{V_F}, 1, v{VT9}")
        a.e(f"v_lshrrev_b32 v{V_F+1}, 1, v{VT9}")
        a.e(f"v_lshl_add_u32 v{V_F+2}, v{V_F}, 2, v{VT8}")
        a.e(f"v_lshrrev_b32 v{V_F+3}, 1, v{V_F+2}")
        a.e(f"v_lshl_add_u32 v{V_F+2}, v{V_F+1}, 4, v{V_F+2}")
        a.e(f"v_lshlrev_b32 v{V_F+2}, 7, v{V_F+2}")
        a.e(f"v_and_b32 v{VT8}, 3, v{V_LANE}")
        a.e(f"v_lshl_add_u32 v{V_F+2}, v{VT8}, 3, v{V_F+2}")
        a.e(f"v_add_u32 v{V_F+2}, s{S_T0}, v{V_F+2}")
        for ct in range(4):
            a.e(f"v_xor_b32 v{VT8}, {ct}, v{V_F+3}")
            a.e(f"v_lshl_add_u32 v{V_TR[ct]}, v{VT8}, 5, v{V_F+2}")
        a.e(f"v_lshlrev_b32 v{V_TD}, 10, v{V_F+1}")
        a.e(f"s_mul_i32 s{S_T0}, s{S_W}, 7")
        a.e(f"s_lshr_b32 s{S_T0}, s{S_T0}, 1")
        a.e(f"s_lshl_b32 s{S_T0}, s{S_T0}, 8")
        a.e(f"s_lshl_b32 s{S_T1}, s{S_RB}, 12")
        a.e(f"s_add_u32 s{S_T0}, s{S_T0}, s{S_T1}")
        a.e(f"s_add_u32 s{S_FA1}, s{S_T0}, {WS_FA}")
        a.e(f"s_add_u32 s{S_FA2}, s{S_FA1}, {FSTRIDE}")
        a.e(f"v_and_b32 v{V_FAO}, 7, v{V_LANE}")
        a.e(f"v_lshlrev_b32 v{V_FAO}, 7, v{V_FAO}")
        a.e(f"s_lshl_b32 s{S_T2}, s{S_W}, 10")
        a.e(f"s_add_u32 s{S_FBO}, s{S_T2}, s{S_T1}")
        a.e(f"s_add_u32 s{S_FBO}, s{S_FBO}, {WS_FA + 2*FSTRIDE}")
        a.e(f"s_lshl_b32 s{S_T2}, s{S_W}, 7")
        a.e(f"s_add_u32 s{S_T2}, s{S_T2}, s{S_RB}")
        a.e(f"s_lshl_b32 s{S_T2}, s{S_T2}, 8")
        a.e(f"s_add_u32 s{S_GO}, s{S_T2}, {WS_G}")
        a.e(f"v_and_b32 v{V_PO1}, 15, v{V_LANE}")
        a.e(f"v_lshlrev_b32 v{V_PO1}, 4, v{V_PO1}")

    P2O = bool(P["EXP"] & 4096)
    if P["LPRIO"]:
        a.e(f"s_setprio {P['LPRIO']}")
    pg = Prog(a, vm, lg, V_BF, V_SIG)
    a.e(f"s_mov_b32 s{S_SEEN}, 0")
    waited = 0
    barrier_done = False
    S_PH, S_TA_, S_TB_ = 96, 36 + 0, 0
    PH = [S_ROT, 96, 97, 98, 99, 100, 101]
    TW = [8, 9, 10, 11, 12, 13, 14]
    TV = [66 + 100] * 7
    V_XQ = V_POOL
    for q in range(4):
        src = V_BO if q & 1 else V_XO
        a.e(f"v_add_u32 v{V_XQ+q}, {q*(8*896-1024)}, v{src}")
    st = dict(since_pub=0, last=0, blast=0, waited=0, barrier_done=False, btok=None, wq_tok=None)
    VB = V_POOL + (NSLOT - 1) * 16

    def run_items(lo, hi, noa):
      since_pub, last, blast, waited, barrier_done, btok, wq_tok = (st[k] for k in ("since_pub", "last", "blast", "waited", "barrier_done", "btok", "wq_tok"))
      for idx in range(lo, hi):
        (kind, i, ops, step) = ITEMS[idx]
        if idx == 0:
            stamp2(a, 1)
            if noa:
                init_barrier(a)
        if idx == 3:
            if not noa:
                init_barrier(a)
            barrier_done = True
            stamp2(a, 2)
            for p in range(1, 7):
                a.e(f"s_add_u32 s{PH[p]}, s{PH[p-1]}, 1")
                a.e(f"s_cmp_eq_u32 s{PH[p]}, 7")
                a.e(f"s_cselect_b32 s{PH[p]}, 0, s{PH[p]}")
        if kind == "bias":
            stage_b_setup()
            get_nonce(a, lg, V_FL, None, V_NONCE)
            mk_srd(a, SRD_B, S_B2, 448 * 2)
            a.e(f"v_lshrrev_b32 v4, 4, v{V_LANE}")
            a.e(f"s_lshl_b32 s{S_T0}, s{S_NT}, 7")
            a.e(f"v_lshl_add_u32 v4, v4, 3, s{S_T0}")
            a.e(f"v_mov_b32 v5, 0x40000000")
            a.e(f"s_cmp_eq_u32 s{S_W}, 0")
            a.e(f"s_cselect_b64 vcc, -1, 0")
            a.e(f"v_cndmask_b32 v4, v5, v4, vcc")
            for ct in range(4):
                a.e(f"buffer_load_dwordx2 {vr(VB+2*ct,2)}, v4, {sr(SRD_B,4)}, 0 offen offset:{ct*32}")
                btok = vm.issue()
            continue
        if kind == "touch":
            SRD_T = SRD_B if idx > 6 else SRD_O
            a.e(f"s_lshl_b32 s{S_T0}, s{S_IDX}, 2")
            a.e(f"s_add_u32 s{S_T0}, s{S_T0}, s{S_W}")
            a.e(f"s_sub_u32 s{S_T1}, s{S_T0}, 98")
            a.e(f"s_mov_b32 s{S_T4}, {1792*896}")
            a.e(f"s_mov_b32 s{S_T5}, {448*896}")
            a.e(f"s_cmp_lt_u32 s{S_T0}, 98")
            a.e(f"s_cselect_b32 s{SRD_T}, s{S_W2K}, s{S_WOK}")
            a.e(f"s_cselect_b32 s{SRD_T+1}, s{S_W2K+1}, s{S_WOK+1}")
            a.e(f"s_cselect_b32 s{SRD_T+2}, s{S_T4}, s{S_T5}")
            a.e(f"s_mov_b32 s{SRD_T+3}, 0x00020000")
            a.e(f"s_cselect_b32 s{S_T0}, s{S_T0}, s{S_T1}")
            a.e(f"s_and_b32 s{SRD_T+1}, s{SRD_T+1}, 0xffff")
            a.e(f"s_lshl_b32 s{S_T0}, s{S_T0}, 14")
            a.e(f"s_add_u32 s{S_T1}, s{S_T0}, 8192")
            a.e(f"v_lshlrev_b32 v{V_POOL+8}, 7, v{V_LANE}")
            a.e(f"buffer_load_dword v{V_POOL+9}, v{V_POOL+8}, {sr(SRD_T,4)}, s{S_T0} offen")
            vm.issue()
            a.e(f"buffer_load_dword v{V_POOL+10}, v{V_POOL+8}, {sr(SRD_T,4)}, s{S_T1} offen")
            vm.issue()
            continue
        if kind == "pw2":
            w2_tok = pg.gate_issue(V_P1, V_PO1, S_FW2O)
            continue
        if kind == "cwq":
            stamp2(a, 6)
            stamp(a, 1)
            if P["EXP"] & 1:
                pg.wait_tok(last)
                pg.publish()
                for q in range(2, 8):
                    stamp(a, q)
                stamp_flush(a, 8)
                a.e("s_endpgm")
            vm.wait(btok)
            for ct in range(4):
                d = ACC(ct, 0)
                a.e(f"v_lshlrev_b32 v{d}, 16, v{VB+2*ct}")
                a.e(f"v_and_b32 v{d+1}, 0xffff0000, v{VB+2*ct}")
                a.e(f"v_lshlrev_b32 v{d+2}, 16, v{VB+2*ct+1}")
                a.e(f"v_and_b32 v{d+3}, 0xffff0000, v{VB+2*ct+1}")
            pg.publish()
            p2_setup()
            pg.publish()
            for ct in range(4):
                for rt in range(1, 4):
                    for q in range(4):
                        a.e(f"v_mov_b32 v{ACC(ct,rt)+q}, v{ACC(ct,0)+q}")
            if not P2O:
                pg.gate_check(wq_tok, V_P0, V_PO0, S_FWQO, V_NONCE)
            stamp(a, 2)
            continue
        if P2O:
            continue
        if idx == 13:
            stamp2(a, 3)
        if idx == 14:
            stamp2(a, 4)
        if idx == 22:
            stamp2(a, 5)
        if kind == "pwq":
            wq_tok = pg.gate_issue(V_P0, V_PO0, S_FWQO)
            continue
        if STAMPS and STMODE == 3 and kind == "B" and i % 2 == 0:
            a.e(f"s_memrealtime {sr(S_ST+2*(1+i//2),2)}")
        if noa and kind in "ab":
            continue
        if step > waited and not (P["EXP"] & (2048 | 16384)):
            pg.wait_prog(V_FL, V_F, step + 1)
            waited = step
            since_pub = 0
        if kind == "x":
            a.e(f"s_add_u32 m0, s{S_LX}, {(i%4)*16384}")
            a.e(f"s_lshl_b32 s{S_SO1}, s{PH[i]}, 7")
            for q in range(4):
                a.e(f"buffer_load_dwordx4 v{V_XQ+q}, {sr(SRD_X,4)}, s{S_SO1} offen offset:{q*1024} lds")
                last = vm.issue()
            a.e(f"s_mul_i32 s{TW[i]}, s{PH[i]}, {64*3584}")
        elif kind in "ab":
            ad = L_WA + i * 4096 if kind == "a" else wb_addr(i)
            a.e(f"s_add_u32 m0, s{S_LW}, {ad}")
            a.e(f"s_add_u32 s{S_SO0}, s{TW[i//2]}, {32*(i%2)*3584 + (128 if kind == 'b' else 0)}")
            a.e(f"buffer_load_dwordx4 v{V_WO}, {sr(SRD_A,4)}, s{S_SO0} offen lds")
            last = vm.issue()
        else:
            if i % 2 == 0:
                a.e(f"s_mul_i32 s{S_SO0}, s{PH[i//2]}, 12288")
                a.e(f"s_mul_i32 s{S_SO1}, s{PH[i//2]}, s{S_BST2}")
                a.e(f"s_add_u32 s{S_SO0}, s{S_SO0}, s{S_BA}")
                a.e(f"s_add_u32 s{S_SO1}, s{S_SO1}, s{S_BB}")
            else:
                a.e(f"s_add_u32 s{S_SO0}, s{S_SO0}, 6144")
                a.e(f"s_add_u32 s{S_SO1}, s{S_SO1}, s{S_BSTEP}")
            a.e(f"s_add_u32 m0, s{S_LA_}, {sb_addr(i)}")
            a.e("s_nop 0")
            a.e(f"buffer_load_dwordx4 v{V_L16}, {sr(SRD_WS,4)}, s{S_SO0} offen sc1 lds")
            vm.issue()
            a.e(f"s_add_u32 m0, s{S_LB_}, {sb_addr(i)}")
            a.e("s_nop 0")
            a.e(f"buffer_load_dwordx4 v{V_HO}, {sr(SRD_L,4)}, s{S_SO1} offen sc1 lds")
            blast = vm.issue()
        assert vm.n == (NOA_CNT if noa else ITEM_CNT)[(kind, i)] or P2O, (kind, i, vm.n)
        since_pub += ops
        if barrier_done and since_pub >= P["PUBN"]:
            pg.publish()
            since_pub = 0
      st.update(since_pub=since_pub, last=last, blast=blast, waited=waited, barrier_done=barrier_done, btok=btok, wq_tok=wq_tok)

    icwq = [k for k, it in enumerate(ITEMS) if it[0] == "cwq"][0]
    l_lnoa, l_ljoin = a.newlab("Llnoa"), a.newlab("Lljoin")
    a.e(f"s_cmp_ge_u32 s{S_J}, 14")
    a.e(f"s_cbranch_scc1 {l_lnoa}")
    st0 = dict(st); c0 = (vm.n, vm.done, lg.n, lg.done)
    run_items(0, icwq, False)
    a.e(f"s_branch {l_ljoin}")
    st1 = dict(st); c1 = (vm.n, vm.done, lg.n, lg.done)
    a.lab(l_lnoa)
    st.update(st0); vm.n, vm.done, lg.n, lg.done = c0
    run_items(0, icwq, True)
    pg.wait_tok(vm.n)
    st.update(st1); vm.n, vm.done, lg.n, lg.done = c1
    pg.publish()
    st["waited"] = 0
    a.lab(l_ljoin)
    run_items(icwq, len(ITEMS), False)
    blast = st["blast"]
    stamp(a, 3)
    l_noP2 = a.newlab("LnoP2")
    a.e(f"s_cmp_ge_u32 s{S_NT}, 7")
    a.e(f"s_cbranch_scc1 {l_noP2}")
    vm_snap = (vm.n, vm.done)
    pgb = pg
    btok_ = {13: blast}

    free = list(range(NSLOT))
    wslot, aslot, wtok, atok, ttok = {}, {}, {}, {}, {}

    def load_items(kind, i):
        s = free.pop(0)
        base = V_POOL + s * 16
        (wslot if kind == "W" else aslot)[i] = s
        so = S_SO0 if kind == "W" else S_SO1

        def one(q):
            if kind == "A":
                if q == 0:
                    if i < 14:
                        a.e(f"s_add_u32 s{so}, s{S_AH}, s{S_RO2 + i % 7}")
                        if i >= 7:
                            a.e(f"s_add_u32 s{so}, s{so}, {28*4096}")
                    else:
                        a.e(f"s_add_u32 s{so}, s{S_AO}, {(i-14)*4096}")
                a.e(f"buffer_load_dwordx4 {vr(base+q*4,4)}, v{V_L16}, {sr(SRD_WS,4)}, s{so} offen offset:{q*1024} {P2SC}")
                atok[(i, q)] = vm.issue()
            else:
                if i < 7:
                    sreg, srd = TWO[i], SRD_W2
                else:
                    sreg, srd = so, (SRD_W2 if i < 14 else SRD_WO)
                    if q == 0:
                        if i < 14:
                            a.e(f"s_add_u32 s{so}, s{TWO[i-7]}, {64*896}")
                        else:
                            a.e(f"s_add_u32 s{so}, s{S_WOO}, {(i-14)*28*896}")
                vo = 5 if (i >= 14 and q == 3) else V_WQ + q
                a.e(f"buffer_load_dwordx4 {vr(base+q*4,4)}, v{vo}, {sr(srd,4)}, s{sreg} offen")
                wtok[(i, q)] = vm.issue()
        return [lambda q=q: one(q) for q in range(4)]

    def load_blk(kind, i):
        for f in load_items(kind, i):
            f()

    def trans_items(i):
        base = V_POOL + wslot[i] * 16
        out = []

        def wr(q):
            vm.wait(wtok[(i, q)])
            a.e(f"ds_write_b128 v{V_TW}, {vr(base+q*4,4)} offset:{q*1024}")
            lg.issue()

        def rdt(ct):
            if i == 14 and ct == 0:
                for c2 in range(4):
                    a.e(f"v_sub_u32 v{V_TR[c2]}, v{V_TR[c2]}, v{V_TD}")
            a.e(f"ds_read_b64_tr_b16 {vr(base+ct*4,2)}, v{V_TR[ct]}")
            lg.issue()
            a.e(f"ds_read_b64_tr_b16 {vr(base+ct*4+2,2)}, v{V_TR[ct]} offset:{1024 if i < 14 else 2048}")
            ttok[(i, ct)] = lg.issue()
        return [lambda q=q: wr(q) for q in range(4)] + [lambda ct=ct: rdt(ct) for ct in range(4)]

    NWPRE = P["NWPRE"]
    for i in range(NWPRE):
        if i == max(0, NWPRE - P["FA1A"]):
            fa1_tok = pg.gate_issue(V_P0, V_FAO, S_FA1)
        for q, f in enumerate(load_items("W", i)):
            f()
            if q % 2 == 1:
                pg.publish()
    stamp(a, 4)
    if not P2O:
        pg.wait_prog(V_FL, V_F, 12)
    for f in trans_items(0):
        f()
    pg.gate_check(fa1_tok, V_P0, V_FAO, S_FA1, V_NONCE, skip=P2O)
    pg.publish()
    stamp(a, 5)

    NB = 18
    nextA, nextW = 0, NWPRE
    ptok = {}
    checked = set()
    g_tok = [None]
    gate = {7: (S_FA2, V_P0, P["FA2P"]), 14: (S_FBO, V_P1, P["FBP"])}

    def async_check(first):
        if first in checked:
            return
        checked.add(first)
        so, vreg, _ = gate[first]
        vm.wait(ptok[first])
        ok, slow = a.newlab("Lfok"), a.newlab("Lfslow")
        a.e(f"v_cmp_ne_u32 vcc, v{vreg}, v{V_NONCE}")
        if not (P["EXP"] & 4096):
            a.e(f"s_cbranch_vccnz {slow}")
        a.lab(ok)
        t = a.tail
        t.append(f"{slow}:")
        t.append(f"  s_mov_b32 s{S_SPIN}, 0")
        t.append(f"{slow}_l:")
        t.append(f"  buffer_load_dword v{vreg}, v{V_FAO}, {sr(SRD_WS,4)}, s{so} offen sc1")
        t.append(f"  s_add_u32 s{S_SPIN}, s{S_SPIN}, 1")
        t.append(f"  s_cmp_gt_u32 s{S_SPIN}, {SPIN_MAX}")
        t.append(f"  s_waitcnt vmcnt(0)")
        t.append(f"  s_cbranch_scc1 {ok}")
        t.append(f"  v_cmp_ne_u32 vcc, v{vreg}, v{V_NONCE}")
        t.append(f"  s_cbranch_vccz {ok}")
        t.append(f"  s_sleep 1")
        t.append(f"  s_branch {slow}_l")
        if first == 14:
            a.e(f"buffer_load_dwordx4 {vr(V_G,4)}, v{V_PO1}, {sr(SRD_WS,4)}, s{S_GO} offen sc1")
            g_tok[0] = vm.issue()

    def plan_refill(cur):
        nonlocal nextA, nextW
        out = []
        while free:
            a_blocked = nextA in gate and (nextA not in ptok or gate[nextA][2] + P["PLAG"] > cur)
            if nextW < NB and (nextW <= nextA + 1 or nextA >= NB or a_blocked):
                out += load_items("W", nextW); nextW += 1
            elif nextA < NB and not a_blocked:
                if nextA in gate:
                    out.append(lambda f=nextA: async_check(f))
                out += load_items("A", nextA); nextA += 1
            else:
                break
        return out

    for f in plan_refill(-1):
        f()
    pend = []
    for i in range(NB):
        if i == 14:
            vm.wait(g_tok[0])
            a.e("s_nop 7")
            for ct in range(4):
                for rt in range(4):
                    for e in range(4):
                        a.e(f"v_mul_f32 v{ACC(ct,rt)+e}, v{ACC(ct,rt)+e}, v{V_G+rt}")
            a.e("s_nop 1")
        while (i, 3) not in atok or (i, 3) not in wtok:
            if not pend:
                pend = plan_refill(99)
            pend.pop(0)()
        wb, ab = V_POOL + wslot[i] * 16, V_POOL + aslot[i] * 16
        while i + 1 < NB and (i + 1, 3) not in wtok:
            if not pend:
                pend = plan_refill(99)
            pend.pop(0)()
        tr = trans_items(i + 1) if i + 1 < NB else []
        k = 0
        for ct in range(4):
            for rt in range(4):
                vm.wait(atok[(i, rt)])
                lg.wait(ttok[(i, ct)])
                if not (P["EXP"] & 8192):
                    mfma(a, ACC(ct, rt), wb + ct * 4, ab + rt * 4, ACC(ct, rt))
                k += 1
                if k % 2 == 0 and pend:
                    pend.pop(0)()
                if k >= P["TRK"] and tr:
                    tr.pop(0)()
        for f in pend + tr:
            f()
        free.append(wslot[i]); free.append(aslot[i])
        for first, (so, vreg, pb) in gate.items():
            if i == pb:
                a.e(f"buffer_load_dword v{vreg}, v{V_FAO}, {sr(SRD_WS,4)}, s{so} offen sc1")
                ptok[first] = vm.issue()
        pend = plan_refill(i)

    a.c("---- reduction ----")
    stamp(a, 6)
    lds_wait_min4(a, lg, V_FL, V_F, 0, 18)
    a.e(f"v_and_b32 v1, 15, v{V_LANE}")
    a.e(f"v_lshrrev_b32 v2, 4, v{V_LANE}")
    a.e(f"s_lshl_b32 s{S_T0}, s{S_W}, 12")
    a.e(f"v_lshl_add_u32 v2, v2, 8, s{S_T0}")
    for ct in range(4):
        a.e(f"v_add_u32 v3, {4*ct}, v1")
        a.e(f"v_and_b32 v3, 15, v3")
        a.e(f"v_lshl_add_u32 v{4+ct}, v3, 4, v2")
    a.e("s_nop 4")
    for rt in range(4):
        for ct in range(4):
            a.e(f"ds_write_b128 v{4+ct}, {vr(ACC(ct,rt),4)} offset:{L_RED + rt*16384 + ct*1024}")
    a.e(f"v_lshrrev_b32 v1, 2, v{V_LANE}")
    a.e(f"v_and_b32 v2, 3, v{V_LANE}")
    a.e(f"v_lshl_add_u32 v3, v2, 2, v1")
    a.e(f"v_and_b32 v3, 15, v3")
    a.e(f"v_lshlrev_b32 v3, 4, v3")
    a.e(f"v_lshl_add_u32 v3, v2, 10, v3")
    a.e(f"s_lshl_b32 s{S_T0}, s{S_W}, 14")
    a.e(f"v_add_u32 v8, s{S_T0}, v3")
    mk_srd(a, SRD_O, S_OUT, 2048 * 896)
    a.e(f"s_lshl_b32 s{S_T0}, s{S_RB}, 6")
    a.e(f"s_lshl_b32 s{S_T1}, s{S_W}, 4")
    a.e(f"s_add_u32 s{S_T0}, s{S_T0}, s{S_T1}")
    a.e(f"v_add_u32 v1, s{S_T0}, v1")
    a.e(f"v_mul_u32_u24 v1, 896, v1")
    a.e(f"v_lshl_add_u32 v9, v2, 5, v1")
    a.e(f"s_lshl_b32 s{S_T1}, s{S_NT}, 7")
    a.e("s_waitcnt lgkmcnt(0)")
    a.e("s_barrier")
    RD = V_POOL
    for g in range(4):
        for src in range(4):
            a.e(f"ds_read_b128 {vr(RD+(g*4+src)*4,4)}, v8 offset:{L_RED + src*4096 + g*256}")
    OUTR = V_ACC
    for g in range(4):
        a.e(f"s_waitcnt lgkmcnt({12-4*g})")
        b = RD + g * 16
        for e in range(4):
            a.e(f"v_add_f32 v{b+e}, v{b+e}, v{b+4+e}")
            a.e(f"v_add_f32 v{b+8+e}, v{b+8+e}, v{b+12+e}")
        for e in range(4):
            a.e(f"v_add_f32 v{b+e}, v{b+e}, v{b+8+e}")
        a.e(f"v_cvt_pk_bf16_f32 v{OUTR+2*g}, v{b}, v{b+1}")
        a.e(f"v_cvt_pk_bf16_f32 v{OUTR+2*g+1}, v{b+2}, v{b+3}")
        if g % 2 == 1:
            a.e(f"buffer_store_dwordx4 {vr(OUTR+2*g-2,4)}, v9, {sr(SRD_O,4)}, s{S_T1} offen offset:{(g//2)*16}")
    if STAMPS:
        a.e("s_waitcnt vmcnt(0)")
    stamp(a, 7)
    stamp_flush(a, 8)
    a.e("s_endpgm")

    a.lab(l_noP2)
    vm.n, vm.done = vm_snap
    pgb.wait_tok(btok_[13])
    pgb.publish()
    l_e = a.newlab("Lnoep")
    if P["EXP"]:
        a.e("s_endpgm")
    a.e(f"s_cmp_lg_u32 s2, 255")
    a.e(f"s_cbranch_scc1 {l_e}")
    a.e(f"s_cmp_lg_u32 s{S_W}, 0")
    a.e(f"s_cbranch_scc1 {l_e}")
    a.e(f"v_lshrrev_b32 v1, 2, v{V_LANE}")
    a.e(f"v_and_b32 v2, 3, v{V_LANE}")
    a.e(f"v_lshlrev_b32 v1, 13, v1")
    a.e(f"v_lshl_add_u32 v1, v2, 10, v1")
    for q in range(1, 4):
        a.e(f"v_add_u32 v{1+q}, {q*256}, v1")
    a.e(f"s_mov_b32 s{S_T0}, {WS_FA + 2*FSTRIDE}")
    vm2 = Cnt(a, "vmcnt", 63)
    flag_poll(a, vm2, [(5 + q, 1 + q, S_T0) for q in range(4)], V_NONCE, sleep=8)
    a.e(f"s_mov_b32 s{S_T0}, {WS_EPOCH}")
    flag_store(a, vm2, V_NONCE, V_ZERO, S_T0)
    a.lab(l_e)
    a.e("s_endpgm")


def generate(P):
    global ITEMS, ITEM_CNT, NOA_CNT
    ITEMS, ITEM_CNT, NOA_CNT = loader_items(P)
    a = Asm()
    K = NAME + "_kernel"
    hdr = [
        "; fused gated-mix kernel: generated by gen/gen.py (hand-written generator)",
        f"; @launch grid=(256,1,1) block=(512,1,1) lds={L_END}",
        '.amdgcn_target "amdgcn-amd-amdhsa--gfx950"',
        ".text",
        f".globl {K}",
        ".p2align 8",
        f".type {K},@function",
        f"{K}:",
    ]
    a.e("s_cmp_ge_u32 s2, 256")
    a.e("s_cbranch_scc1 L_exit")
    a.e("s_load_dwordx16 s[8:23], s[0:1], 0")
    a.e("s_load_dwordx8 s[24:31], s[0:1], 64")
    stamp(a, 0)
    a.e("v_lshrrev_b32 v1, 6, v0")
    a.e("v_and_b32 v0, 63, v0")
    a.e(f"v_readfirstlane_b32 s{S_WAVE}, v1")
    a.e(f"s_and_b32 s{S_XCD}, s2, 7")
    a.e(f"s_lshr_b32 s{S_IDX}, s2, 3")
    MB = P["MAPB"]
    a.e(f"s_and_b32 s{S_M}, s{S_XCD}, {(1<<MB)-1}")
    a.e(f"s_lshl_b32 s{S_M}, s{S_M}, {4-MB}")
    a.e(f"s_and_b32 s{S_T0}, s{S_IDX}, {(1<<(4-MB))-1}")
    a.e(f"s_add_u32 s{S_M}, s{S_M}, s{S_T0}")
    a.e(f"s_lshr_b32 s{S_J}, s{S_IDX}, {4-MB}")
    a.e(f"s_lshl_b32 s{S_J}, s{S_J}, {3-MB}")
    a.e(f"s_lshr_b32 s{S_T0}, s{S_XCD}, {MB}")
    if P["JFLIP"]:
        a.e(f"s_xor_b32 s{S_T0}, s{S_T0}, {(1<<(3-MB))-1}")
    a.e(f"s_add_u32 s{S_J}, s{S_J}, s{S_T0}")
    a.e(f"s_and_b32 s{S_W}, s{S_WAVE}, 3")
    a.e("s_waitcnt lgkmcnt(0)")
    a.e(f"s_mov_b32 s{S_T0}, {WS_EPOCH}")
    a.e(f"s_load_dword s{S_NONCE}, {sr(S_WS,2)}, s{S_T0}")
    a.e(f"s_cmp_ge_u32 s{S_WAVE}, 4")
    a.e("s_cbranch_scc1 L_p2")
    gen_p1(a, P)
    gen_p1_stage_b(a, P)
    a.lab("L_p2")
    gen_p2(a, P)
    a.lines += a.tail
    a.lab("L_exit")
    a.e("s_endpgm")
    ftr = [
        '.section .rodata,"a"',
        ".p2align 6",
        f".amdhsa_kernel {K}",
        "  .amdhsa_next_free_vgpr 256",
        "  .amdhsa_next_free_sgpr 102",
        "  .amdhsa_accum_offset 256",
        "  .amdhsa_group_segment_fixed_size 0",
        "  .amdhsa_kernarg_size 96",
        "  .amdhsa_user_sgpr_count 2",
        "  .amdhsa_user_sgpr_kernarg_segment_ptr 1",
        "  .amdhsa_system_sgpr_workgroup_id_x 1",
        "  .amdhsa_float_denorm_mode_32 3",
        ".end_amdhsa_kernel",
    ]
    return "\n".join(hdr + a.lines + ftr) + "\n"


DEFAULT = dict(XA=2, JFLIP=1, TCH=22, TRK=6, LPRIO=0, PUBN=2, WQPA=5, W2PA=4, FA1A=2, RQP=5, W2L=5, W2P=29, ROT=1, ROT2=1, MAPB=1, BGN=3, TFN=4, SWIN=1, RPP=12, FA2P=1, PLAG=1, X2=0, FQ=0xB4, RPA=3, RPF=21, BLAG=5, PRIO=0, RPK=2, P0=4, LD=3, LDB=0, EXP=0, PD=5, PDT=1, LA=5, SIG=12, CHK=3, LAB=6, BTHR=13, NWPRE=6, FBP=8)

if __name__ == "__main__":
    P = dict(DEFAULT)
    out = f"cdna_kernels/{NAME}.s"
    for arg in sys.argv[1:]:
        if "=" in arg:
            k, v = arg.split("=")
            if k == "out":
                out = v
            elif k == "NOPUB":
                NOPUB = int(v)
            elif k == "STMODE":
                STMODE = int(v)
            elif k == "X3":
                X3 = int(v)
            elif k == "P2SC":
                P2SC = v.replace("_", " ")
            elif k == "SLEEP":
                SLEEP = int(v)
            elif k == "STAMPS":
                STAMPS = int(v)
            else:
                P[k] = int(v)
    for u in range(504):
        assert (u * 911) >> 16 == u // 72
    for u in range(256):
        assert (u * 4682) >> 16 == u // 14
    for u in range(504):
        assert (u * 9363) >> 16 == u // 7
    open(out, "w").write(generate(P))
    print("wrote", out)
```

```python
import sys

NAME = "gated_mix__sliding_local_dilated__dense_activation_squared_relu__prompt"

WS_A2 = 0
WS_W2R = 0x900000
WS_WQR = WS_W2R + 7 * 72 * 4096
WS_G = WS_WQR + 16 * 14 * 6144
WS_FA = WS_G + 16 * 32 * 256
FSTRIDE = 32 * 16 * 2 * 128
WS_FWQ = WS_FA + 3 * FSTRIDE
WS_FW2 = WS_FWQ + 16 * 128
WS_EPOCH = WS_FW2 + 28 * 128
WS_END = WS_EPOCH + 128

L_X = 0
L_WA = 65536
L_WB = 122880
L_RP = 147456
L_XB = 49152
L_TS = 145408
L_FL = 161792
L_BIAS = L_FL + 512
L_END = L_BIAS + 512
L_RED = 0


def wb_addr(ks):
    if ks < 6:
        return L_WB + ks * 4096
    if ks < 10:
        return 3 * 16384 + (ks - 6) * 4096
    return (ks - 10) * 4096


def sb_addr(ks):
    if ks < 8:
        return L_WA + ks * 7168
    if ks < 12:
        return 16384 + (ks - 8) * 7168
    return L_WB + (ks - 12) * 7168


XQ = [0, 1, 2, 3, 4, 5, 6]


def sb_free_step(ks):
    if ks < 8:
        kmax = (7168 * (ks + 1) + 4095) // 4096 - 1
        return kmax // 2 + 2
    if ks < 12:
        return XQ[5] + 1 if 7168 * (ks - 7) <= 16384 else XQ[6] + 1
    kmax = (7168 * (ks - 11) + 4095) // 4096 - 1
    return 8 + kmax // 2 + 1


def loader_items(P):
    it = [("bias", 0, 4, 0)]
    for p in range(7):
        XQ[p] = max(min(p, 1), p - P["XA"])
    for q in range(7):
        for p in range(7):
            if XQ[p] == q:
                it.append(("x", p, 4, 0 if p < 4 else XQ[p - 4] + 1))
        it.append(("a", 2 * q, 1, 0))
        it.append(("a", 2 * q + 1, 1, 0))
    for ks in range(14):
        if ks == 14 - P["WQPA"]:
            it.append(("pwq", 0, 1, 0))
        it.append(("b", ks, 1, 0 if ks < 6 else (XQ[3] + 1 if ks < 10 else XQ[4] + 1)))
    it.append(("cwq", 0, 0, 0))
    for i in range(P["NW1"]):
        it.append(("W", i, 4, 0))
    it.append(("gwq", 0, 0, 0))
    for ks in range(14):
        it.append(("B", ks, 2, sb_free_step(ks)))
    b = it.pop(0)
    it.insert(6, b)
    if P["TCH"] >= 0:
        it.insert(P["TCH"], ("touch", 0, 2, 0))
    if P["TM"] >= 0:
        it.insert(P["TM"], ("tmall", 0, 2, 0))
    cnt = {}
    n = 0
    for (k, i, ops, st) in it:
        n += ops
        cnt[(k, i)] = n
    ncnt = {}
    n = 0
    for (k, i, ops, st) in it:
        if k not in ("a", "b"):
            n += ops
        ncnt[(k, i)] = n
    return it, cnt, ncnt


SPIN_MAX = 1 << 15


class Asm:
    def __init__(self):
        self.lines = []
        self.nlab = 0
        self.tail = []

    def e(self, s):
        self.lines.append("  " + s)

    def c(self, s):
        self.lines.append("  ; " + s)

    def lab(self, l):
        self.lines.append(l + ":")

    def newlab(self, p="L"):
        self.nlab += 1
        return f"{p}_{self.nlab}"


class Cnt:
    def __init__(self, a, name, mx):
        self.a, self.name, self.mx = a, name, mx
        self.n = 0
        self.done = 0

    def issue(self):
        self.n += 1
        return self.n

    def wait(self, tok):
        if tok is None or tok <= self.done:
            return
        k = min(self.n - tok, self.mx)
        self.a.e(f"s_waitcnt {self.name}({k})")
        self.done = self.n - k

    def drain(self):
        self.a.e(f"s_waitcnt {self.name}(0)")
        self.done = self.n

    def mark_drained(self):
        self.done = self.n


def vr(b, n=1):
    return f"v{b}" if n == 1 else f"v[{b}:{b+n-1}]"


def sr(b, n=1):
    return f"s{b}" if n == 1 else f"s[{b}:{b+n-1}]"


S_X, S_WQKV, S_WO, S_BX, S_W1, S_B1, S_W2, S_B2 = 8, 10, 12, 14, 16, 18, 20, 22
S_GATE, S_OUT, S_DBG, S_WS = 24, 26, 28, 30
SRD_WS, SRD_X, SRD_A, SRD_B, SRD_O = 32, 36, 40, 44, 48
S_WAVE, S_XCD, S_IDX, S_M, S_J, S_RB, S_NT = 52, 53, 54, 55, 56, 57, 58
S_T0, S_T1, S_T2, S_T3, S_T4, S_T5 = 60, 61, 62, 63, 64, 65
S_SPIN = 66
S_NONCE = 67
S_W = 68
S_SO0, S_SO1 = 70, 71
S_BASEA, S_BASEW = 72, 73
S_RPF = 69
S_SEEN = 25
S_RO2 = 8
S_ROT, S_PP, S_PB = 59, 62, 63
S_FLA, S_FDONE = 6, 7
S_PG0, S_PG1, S_PG2, S_PG3 = 3, 4, 5, 7


def mk_srd(a, d, p, nbytes):
    a.e(f"s_mov_b32 s{d}, s{p}")
    a.e(f"s_and_b32 s{d+1}, s{p+1}, 0xffff")
    a.e(f"s_mov_b32 s{d+2}, {nbytes}")
    a.e(f"s_mov_b32 s{d+3}, 0x00020000")


def lds_wait_min4(a, lg, vaddr, vtmp, off, need, pre_tok=None):
    if pre_tok is None:
        a.e(f"ds_read_b128 {vr(vtmp,4)}, {vr(vaddr)} offset:{off}")
        pre_tok = lg.issue()
    lg.wait(pre_tok)
    ok = a.newlab("Lok")
    spin = a.newlab("Lspin")
    a.e(f"v_min3_u32 {vr(vtmp)}, {vr(vtmp)}, {vr(vtmp+1)}, {vr(vtmp+2)}")
    a.e(f"v_min_u32 {vr(vtmp)}, {vr(vtmp)}, {vr(vtmp+3)}")
    a.e(f"v_cmp_gt_u32 vcc, {need}, {vr(vtmp)}")
    a.e(f"s_cbranch_vccnz {spin}")
    a.lab(ok)
    t = a.tail
    t.append(f"{spin}:")
    t.append(f"  s_mov_b32 s{S_SPIN}, 0")
    t.append(f"{spin}_l:")
    t.append(f"  ds_read_b128 {vr(vtmp,4)}, {vr(vaddr)} offset:{off}")
    t.append(f"  s_add_u32 s{S_SPIN}, s{S_SPIN}, 1")
    t.append(f"  s_cmp_gt_u32 s{S_SPIN}, {SPIN_MAX*8}")
    t.append(f"  s_waitcnt lgkmcnt(0)")
    t.append(f"  s_cbranch_scc1 {ok}")
    t.append(f"  v_min3_u32 {vr(vtmp)}, {vr(vtmp)}, {vr(vtmp+1)}, {vr(vtmp+2)}")
    t.append(f"  v_min_u32 {vr(vtmp)}, {vr(vtmp)}, {vr(vtmp+3)}")
    t.append(f"  v_cmp_gt_u32 vcc, {need}, {vr(vtmp)}")
    t.append(f"  s_cbranch_vccnz {spin}_l")
    t.append(f"  s_branch {ok}")


def lds_wait_word(a, lg, vaddr, vtmp, off, need, pre_tok=None):
    if pre_tok is None:
        a.e(f"ds_read_b32 {vr(vtmp)}, {vr(vaddr)} offset:{off}")
        pre_tok = lg.issue()
    lg.wait(pre_tok)
    ok = a.newlab("Lok")
    spin = a.newlab("Lspin")
    a.e(f"v_cmp_gt_u32 vcc, {need}, {vr(vtmp)}")
    a.e(f"s_cbranch_vccnz {spin}")
    a.lab(ok)
    t = a.tail
    t.append(f"{spin}:")
    t.append(f"  s_mov_b32 s{S_SPIN}, 0")
    t.append(f"{spin}_l:")
    t.append(f"  ds_read_b32 {vr(vtmp)}, {vr(vaddr)} offset:{off}")
    t.append(f"  s_add_u32 s{S_SPIN}, s{S_SPIN}, 1")
    t.append(f"  s_cmp_gt_u32 s{S_SPIN}, {SPIN_MAX*8}")
    t.append(f"  s_waitcnt lgkmcnt(0)")
    t.append(f"  s_cbranch_scc1 {ok}")
    t.append(f"  v_cmp_gt_u32 vcc, {need}, {vr(vtmp)}")
    t.append(f"  s_cbranch_vccnz {spin}_l")
    t.append(f"  s_branch {ok}")


def lds_signal(a, lg, vaddr, vtmp, val):
    a.e(f"v_mov_b32 {vr(vtmp)}, {val}")
    a.e(f"ds_write_b32 {vr(vaddr)}, {vr(vtmp)}")
    lg.issue()


def mk_sig_addr(a, vdst, vlane, sword):
    a.e(f"v_lshlrev_b32 v{vdst}, 2, v{vlane}")
    a.e(f"v_add_u32 v{vdst}, {L_FL+256}, v{vdst}")
    a.e(f"v_writelane_b32 v{vdst}, s{sword}, 0")


class Prog:
    def __init__(self, a, vm, lg, vaddr, vtmp, base=0):
        self.a, self.vm, self.lg, self.vaddr, self.vtmp, self.base = a, vm, lg, vaddr, vtmp, base
        self.extra = []

    def note_extra(self, pos_before):
        cnt = self.vm.n - pos_before
        if cnt:
            self.extra.append((pos_before, cnt))

    def lines(self, young=0):
        o = []
        o.append(f"s_getreg_b32 s{S_PG0}, hwreg(HW_REG_IB_STS)")
        o.append(f"s_bfe_u32 s{S_PG1}, s{S_PG0}, 0x20016")
        o.append(f"s_and_b32 s{S_PG0}, s{S_PG0}, 15")
        o.append(f"s_lshl4_add_u32 s{S_PG3}, s{S_PG1}, s{S_PG0}")
        o.append(f"s_sub_u32 s{S_PG0}, {self.vm.n + young}, s{S_PG3}")
        if young:
            o.append(f"s_min_u32 s{S_PG0}, s{S_PG0}, {self.vm.n}")
        o.append(f"v_mov_b32 {vr(self.vtmp)}, s{S_PG0}")
        o.append(f"ds_write_b32 {vr(self.vaddr)}, {vr(self.vtmp)}")
        return o

    def publish(self):
        if NOPUB:
            return
        for l in self.lines():
            self.a.e(l)
        self.lg.issue()

    def wait_prog(self, vfl, vtmp4, need):
        a = self.a
        top, done, first = a.newlab("Lwp"), a.newlab("Lwpd"), a.newlab("Lwpf")
        a.e(f"s_cmp_lt_u32 s{S_SEEN}, {need}")
        a.e(f"s_cbranch_scc1 {first}")
        a.lab(done)
        t = a.tail
        t.append(f"{first}:")
        t.append(f"  s_mov_b32 s{S_SPIN}, 0")
        t.append(f"  s_branch {first}_e")
        t.append(f"{top}:")
        if SLEEP:
            t.append(f"  s_sleep {SLEEP}")
        t.append(f"{first}_e:")
        t.append(f"  ds_read_b128 {vr(vtmp4,4)}, {vr(vfl)}")
        for l in self.lines():
            t.append("  " + l)
        t.append(f"  s_add_u32 s{S_SPIN}, s{S_SPIN}, 1")
        t.append(f"  s_cmp_gt_u32 s{S_SPIN}, {SPIN_MAX*8}")
        t.append("  s_waitcnt lgkmcnt(1)")
        t.append(f"  s_cbranch_scc1 {done}")
        t.append(f"  v_min3_u32 {vr(vtmp4)}, {vr(vtmp4)}, {vr(vtmp4+1)}, {vr(vtmp4+2)}")
        t.append(f"  v_min_u32 {vr(vtmp4)}, {vr(vtmp4)}, {vr(vtmp4+3)}")
        t.append("  s_nop 0")
        t.append(f"  v_readfirstlane_b32 s{S_SEEN}, {vr(vtmp4)}")
        t.append("  s_nop 0")
        t.append(f"  s_cmp_lt_u32 s{S_SEEN}, {need}")
        t.append(f"  s_cbranch_scc1 {top}")
        t.append(f"  s_branch {done}")

    def wait_tok(self, tok):
        if tok <= self.vm.done:
            return
        a = self.a
        top, done = a.newlab("Lwt"), a.newlab("Lwtd")
        a.e(f"s_branch {done}")
        a.lab(top)
        if SLEEP:
            a.e(f"s_sleep {SLEEP}")
        a.lab(done)
        for l in self.lines():
            a.e(l)
        a.e(f"s_cmp_gt_u32 s{S_PG3}, {self.vm.n - tok}")
        a.e(f"s_cbranch_scc1 {top}")
        self.lg.issue()
        self.vm.wait(tok)

    def gate_issue(self, vreg, voff, soff):
        pos = self.vm.n
        self.a.e(f"buffer_load_dword v{vreg}, v{voff}, {sr(SRD_WS,4)}, s{soff} offen sc1")
        tok = self.vm.issue()
        return tok

    def gate_check(self, tok, vreg, voff, soff, vnonce, publish=True, skip=False):
        a = self.a
        if publish:
            self.wait_tok(tok)
        else:
            self.vm.wait(tok)
        ok, slow = a.newlab("Lgok"), a.newlab("Lgslow")
        a.e(f"v_cmp_ne_u32 vcc, v{vreg}, v{vnonce}")
        if not skip:
            a.e(f"s_cbranch_vccnz {slow}")
        a.lab(ok)
        t = a.tail
        t.append(f"{slow}:")
        t.append(f"  s_mov_b32 s{S_SPIN}, 0")
        t.append(f"{slow}_l:")
        t.append(f"  buffer_load_dword v{vreg}, v{voff}, {sr(SRD_WS,4)}, s{soff} offen sc1")
        if publish:
            t.append(f"{slow}_w:")
            for l in self.lines(young=1):
                t.append("  " + l)
            t.append(f"  s_cmp_lg_u32 s{S_PG3}, 0")
            t.append(f"  s_cbranch_scc1 {slow}_w")
        t.append(f"  s_add_u32 s{S_SPIN}, s{S_SPIN}, 1")
        t.append(f"  s_cmp_gt_u32 s{S_SPIN}, {SPIN_MAX}")
        t.append(f"  s_waitcnt vmcnt(0)")
        t.append(f"  s_cbranch_scc1 {ok}")
        t.append(f"  v_cmp_ne_u32 vcc, v{vreg}, v{vnonce}")
        t.append(f"  s_cbranch_vccz {ok}")
        t.append(f"  s_sleep 1")
        t.append(f"  s_branch {slow}_l")


def get_nonce(a, lg, vzero_fl, vtmp, vdst):
    a.e(f"v_mov_b32 v{vdst}, s{S_NONCE}")


def kernarg_wait(a):
    a.e("s_waitcnt lgkmcnt(0)")
    a.e(f"s_mov_b32 s{S_T5}, {WS_EPOCH}")
    a.e(f"s_load_dword s{S_NONCE}, {sr(S_WS,2)}, s{S_T5}")


def init_barrier(a):
    a.e("s_waitcnt lgkmcnt(0)")
    a.e(f"s_add_u32 s{S_NONCE}, s{S_NONCE}, 1")
    a.e("s_barrier")


def flag_store(a, vm, vnonce, vzero, soff):
    a.e("s_mov_b64 exec, 1")
    a.e(f"buffer_store_dword {vr(vnonce)}, {vr(vzero)}, {sr(SRD_WS,4)}, s{soff} offen sc1")
    vm.issue()
    a.e("s_mov_b64 exec, -1")


def flag_poll(a, vm, polls, vnonce, sleep=1):
    top = a.newlab("Lpoll")
    done = a.newlab("Lpdone")
    a.e(f"s_mov_b32 s{S_SPIN}, 0")
    a.lab(top)
    for (vd, vo, so) in polls:
        a.e(f"buffer_load_dword {vr(vd)}, {vr(vo)}, {sr(SRD_WS,4)}, s{so} offen sc1")
        vm.issue()
    a.e(f"s_add_u32 s{S_SPIN}, s{S_SPIN}, 1")
    a.e(f"s_waitcnt vmcnt(0)")
    vm.mark_drained()
    vd0 = polls[0][0]
    a.e(f"v_xor_b32 {vr(vd0)}, {vr(vd0)}, {vr(vnonce)}")
    for (vd, vo, so) in polls[1:]:
        a.e(f"v_xor_b32 {vr(vd)}, {vr(vd)}, {vr(vnonce)}")
        a.e(f"v_or_b32 {vr(vd0)}, {vr(vd0)}, {vr(vd)}")
    a.e(f"v_cmp_ne_u32 vcc, 0, {vr(vd0)}")
    a.e(f"s_cbranch_vccz {done}")
    a.e(f"s_cmp_gt_u32 s{S_SPIN}, {SPIN_MAX}")
    a.e(f"s_cbranch_scc1 {done}")
    if sleep:
        a.e(f"s_sleep {sleep}")
    a.e(f"s_branch {top}")
    a.lab(done)


STAMPS = False
SLEEP = 1
OUTSC = 'nt'
P2SC = 'sc1'
X3 = 0
NOPUB = 0
S_ST = 80


STMODE = 0
NSWAP_A = 56
P2CTX = [False]


def stamp2(a, i):
    if STAMPS and STMODE == 1:
        a.e(f"s_memrealtime {sr(S_ST+2*i,2)}")


def stamp(a, i):
    if STMODE == 1 and 0 < i < 7:
        return
    if STMODE == 2 and 0 < i and not P2CTX[0]:
        return
    if STMODE == 3 and 0 < i and P2CTX[0]:
        return
    if STAMPS:
        a.e(f"{'s_memtime' if STAMPS == 2 else 's_memrealtime'} {sr(S_ST+2*i,2)}")


DBGWG = -1


def stamp_flush(a, n):
    if not STAMPS:
        return
    a.e("s_waitcnt lgkmcnt(0)")
    if DBGWG >= 0:
        sk = a.newlab("Lsf")
        a.e(f"s_cmp_lg_u32 s2, {DBGWG}")
        a.e(f"s_cbranch_scc1 {sk}")
        a.e(f"s_cmp_lg_u32 s{S_W}, 0")
        a.e(f"s_cbranch_scc1 {sk}")
        a.e(f"s_load_dwordx2 s[60:61], s[0:1], 80")
        a.e(f"s_lshl_b32 s62, s{S_WAVE}, 3")
        a.e("s_waitcnt lgkmcnt(0)")
        a.e("s_mov_b64 exec, 1")
        a.e("v_mov_b32 v1, s62")
        for i in range(n):
            a.e(f"v_mov_b32 v2, s{S_ST+2*i}")
            a.e(f"global_store_dword v1, v2, s[60:61] offset:{4*i}")
            a.e("s_nop 1")
        a.e("s_mov_b64 exec, -1")
        a.lab(sk)
        return
    a.e(f"s_lshl_b32 s{S_T0}, s2, 3")
    a.e(f"s_add_u32 s{S_T0}, s{S_T0}, s{S_WAVE}")
    a.e(f"s_lshl_b32 s{S_T0}, s{S_T0}, 6")
    a.e(f"s_add_u32 s{S_T0}, s{S_T0}, {WS_END}")
    a.e("s_mov_b64 exec, 1")
    a.e("v_mov_b32 v1, 0")
    for i in range(n):
        a.e(f"v_mov_b32 v2, s{S_ST+2*i}")
        a.e(f"buffer_store_dword v2, v1, {sr(SRD_WS,4)}, s{S_T0} offen offset:{4*i}")
        a.e("s_nop 1")
    a.e("s_mov_b64 exec, -1")


def mfma(a, d, A, B, C):
    c = "0" if C is None else vr(C, 4)
    a.e(f"v_mfma_f32_16x16x32_bf16 {vr(d,4)}, {vr(A,4)}, {vr(B,4)}, {c}")


V_LANE, V_L16, V_ZERO = 0, 14, 15
S_FIDX = 76
L_NSC = L_WB
NSC = 9728


def gen_repack_all(a, P, V_NONCE, between):
    vm = Cnt(a, "vmcnt", 63)
    lg = Cnt(a, "lgkmcnt", 15)
    S_U = 77
    SQ = [(78, 79), (80 if not STAMPS else 96, 81 if not STAMPS else 97)]
    SW = [(98, 99), (100, 101), (8, 9), (14, 15)]
    S_ISO = [16, 17, 18, 19]
    SRD_Q, SRD_W2, SRD_WO = SRD_A, SRD_B, SRD_X
    RQ = [144, 170]
    RW = [196, 212, 228, 144]
    RT = 244
    V_QO, V_GO, V_WO_, V_WO3 = 4, 5, 6, 7
    V_LWQ, V_LTQ, V_LWW, V_LTH, V_LTO = 244, 245, 246, 247, 248
    a.e(f"s_sub_u32 s{S_T0}, s{S_J}, 14")
    a.e(f"s_lshl_b32 s{S_U}, s{S_M}, 1")
    a.e(f"s_add_u32 s{S_U}, s{S_U}, s{S_T0}")
    a.e(f"s_lshl_b32 s{S_U}, s{S_U}, 2")
    a.e(f"s_add_u32 s{S_U}, s{S_U}, s{S_W}")
    mk_srd(a, SRD_Q, S_WQKV, 448 * 2688)
    a.e(f"v_lshrrev_b32 v1, 4, v{V_LANE}")
    a.e(f"v_bfe_u32 v2, v{V_LANE}, 2, 2")
    a.e(f"v_and_b32 v3, 3, v{V_LANE}")
    a.e(f"v_lshrrev_b32 v{V_GO}, 2, v{V_LANE}")
    a.e(f"v_mul_u32_u24 v{V_QO}, 2688, v{V_GO}")
    a.e(f"v_lshl_add_u32 v{V_QO}, v3, 4, v{V_QO}")
    BIG = 0x40000000
    qtok = []
    for k in range(2):
        a.e(f"s_add_u32 s{S_T5}, s{S_U}, {128*k}")
        a.e(f"s_cmp_lt_u32 s{S_T5}, 224")
        a.e(f"s_cselect_b32 s{S_T4}, 0, {BIG}")
        a.e(f"s_min_u32 s{S_T5}, s{S_T5}, 223")
        a.e(f"s_mul_i32 s{S_T0}, s{S_T5}, 4682")
        a.e(f"s_lshr_b32 s{S_T0}, s{S_T0}, 16")
        a.e(f"s_mul_i32 s{S_T1}, s{S_T0}, 14")
        a.e(f"s_sub_u32 s{S_T1}, s{S_T5}, s{S_T1}")
        a.e(f"s_mul_i32 s{S_T2}, s{S_T1}, {32*2688}")
        a.e(f"s_mul_i32 s{S_T3}, s{S_T0}, 56")
        a.e(f"s_add_u32 s{S_T2}, s{S_T2}, s{S_T3}")
        a.e(f"s_add_u32 s{S_T3}, s{S_T2}, {16*2688}")
        for i in range(6):
            seg, hf = i >> 1, i & 1
            so = S_T3 if hf else S_T2
            a.e(f"buffer_load_dwordx4 {vr(RQ[k]+i*4,4)}, v{V_QO}, {sr(SRD_Q,4)}, s{so} offen offset:{seg*896}")
            vm.issue()
        a.e(f"s_lshl_b32 s{S_T2}, s{S_T1}, 6")
        a.e(f"v_lshl_add_u32 v{V_WO_}, v{V_GO}, 1, s{S_T2}")
        a.e(f"global_load_ushort v{RQ[k]+24}, v{V_WO_}, {sr(S_GATE,2)}")
        vm.issue()
        a.e(f"global_load_ushort v{RQ[k]+25}, v{V_WO_}, {sr(S_GATE,2)} offset:32")
        qtok.append(vm.issue())
        a.e(f"s_mul_i32 s{SQ[k][0]}, s{S_T5}, 6144")
        a.e(f"s_add_u32 s{SQ[k][0]}, s{SQ[k][0]}, {WS_WQR}")
        a.e(f"s_add_u32 s{SQ[k][0]}, s{SQ[k][0]}, s{S_T4}")
        a.e(f"s_lshl_b32 s{S_T0}, s{S_T0}, 7")
        a.e(f"s_lshl_b32 s{S_T1}, s{S_T1}, 2")
        a.e(f"s_add_u32 s{S_T0}, s{S_T0}, s{S_T1}")
        a.e(f"s_add_u32 s{S_T0}, s{S_T0}, {WS_FWQ}")
        a.e(f"s_add_u32 s{SQ[k][1]}, s{S_T0}, s{S_T4}")
    a.e(f"s_mul_i32 s{S_T0}, s{S_W}, {NSC}")
    a.e(f"s_add_u32 s{S_T0}, s{S_T0}, {L_NSC}")
    a.e(f"v_mul_u32_u24 v{V_LWQ}, 192, v{V_GO}")
    a.e(f"v_lshl_add_u32 v{V_LWQ}, v3, 4, v{V_LWQ}")
    a.e(f"v_add_u32 v{V_LWQ}, s{S_T0}, v{V_LWQ}")
    a.e(f"v_and_b32 v{V_LTH}, 1, v1")
    a.e(f"v_lshrrev_b32 v{V_LTO}, 1, v1")
    a.e(f"v_lshl_add_u32 v{V_LTQ}, v{V_LTH}, 1, v{V_LTO}")
    a.e(f"v_lshl_add_u32 v{V_LTQ}, v{V_LTQ}, 3, v2")
    a.e(f"v_mul_u32_u24 v{V_LTQ}, 192, v{V_LTQ}")
    a.e(f"v_lshl_add_u32 v{V_LTQ}, v3, 3, v{V_LTQ}")
    a.e(f"v_add_u32 v{V_LTQ}, s{S_T0}, v{V_LTQ}")
    yield
    a.e(f"v_and_b32 v3, 3, v{V_LANE}")
    vm.n += 1
    pend = []

    def flush_flags(keep):
        while len(pend) > keep:
            tok, sf = pend.pop(0)
            vm.wait(tok)
            flag_store(a, vm, V_NONCE, V_ZERO, sf)

    nunit = 0
    for k in range(2):
        R = RQ[k]
        a.e(f"s_waitcnt vmcnt({8 if k == 0 else 6})")
        a.e(f"v_cmp_eq_u32 vcc, 3, v3")
        a.e("s_nop 1")
        for i in range(6):
            seg, hf = i >> 1, i & 1
            src = R + 24 + hf if seg == 0 else V_ZERO
            a.e(f"v_cndmask_b32 v{R+i*4+2}, v{R+i*4+2}, v{src}, vcc")
            a.e(f"v_cndmask_b32 v{R+i*4+3}, v{R+i*4+3}, v{V_ZERO}, vcc")
            a.e(f"ds_write_b128 v{V_LWQ}, {vr(R+i*4,4)} offset:{hf*3072+seg*64}")
            lg.issue()
        toks = []
        for c6 in range(6):
            for hh in range(2):
                a.e(f"ds_read_b64_tr_b16 {vr(R+c6*4+hh*2,2)}, v{V_LTQ} offset:{hh*768+c6*32}")
                tk = lg.issue()
            toks.append(tk)
        a.e(f"s_add_u32 s{S_T0}, s{SQ[k][0]}, 4096")
        for c6 in range(6):
            so = SQ[k][0] if c6 < 4 else S_T0
            lg.wait(toks[c6])
            a.e(f"buffer_store_dwordx4 {vr(R+c6*4,4)}, v{V_L16}, {sr(SRD_WS,4)}, s{so} offen offset:{(c6%4)*1024} sc1")
            t = vm.issue()
        pend.append((t, SQ[k][1]))
    between(0)
    flush_flags(0)
    yield


def gen_p1(a, P):
    vm = Cnt(a, "vmcnt", 63)
    lg = Cnt(a, "lgkmcnt", 15)
    V_LANE = 0
    V_T = 1
    V_XR = 8
    V_FL = 12
    V_PROG = 13
    V_L16 = 14
    V_ZERO = 15
    V_TA = 16
    V_SO = 22
    V_BA = 23
    V_F = 24
    V_NONCE = 28
    V_SIG = 29
    V_PA, V_QA = 30, 31
    V_X = 32
    V_ACC = 144
    V_WR = 208
    V_E = 240
    NR = 8

    def X(c, ks):
        return V_X + (c * 14 + ks) * 4

    def ACC(t):
        return V_ACC + t * 16

    a.c("==== P1 program ====")
    kernarg_wait(a)
    if P["EXP"] & 4096:
        a.e(f"v_lshlrev_b32 v4, 2, v0")
        a.e(f"v_add_u32 v4, {L_FL}, v4")
        a.e(f"v_mov_b32 v5, 100")
        a.e(f"ds_write_b32 v4, v5")
        a.e("s_waitcnt lgkmcnt(0)")
        a.e("s_barrier")
        a.e("s_endpgm")
    stamp2(a, 1)
    if P["EXP"] & 2048:
        a.e("s_barrier")
        a.e("s_endpgm")
    if P["PRIO"]:
        a.e(f"s_setprio {P['PRIO']}")
    a.e(f"v_mov_b32 v{V_ZERO}, 0")
    a.e(f"v_mov_b32 v{V_FL}, {L_FL}")
    mk_srd(a, SRD_WS, S_WS, WS_END + 2048 * 64)
    a.e(f"v_lshlrev_b32 v{V_L16}, 4, v{V_LANE}")
    l_nr = a.newlab("Lnorp")
    a.e(f"s_cmp_lt_u32 s{S_J}, 14")
    a.e(f"s_cbranch_scc1 {l_nr}")
    rp = gen_repack_all(a, P, V_NONCE, lambda k: None)
    next(rp)
    a.lab(l_nr)
    l_n3 = a.newlab("Lnot3")
    l_bj = a.newlab("Lbj")
    a.e(f"s_cmp_lg_u32 s{S_W}, 3")
    a.e(f"s_cbranch_scc1 {l_n3}")
    mk_srd(a, SRD_B, S_B1, 1792 * 2)
    a.e(f"v_lshlrev_b32 v4, 2, v{V_LANE}")
    a.e(f"s_lshl_b32 s{S_T3}, s{S_J}, 8")
    a.e(f"buffer_load_dword v5, v4, {sr(SRD_B,4)}, s{S_T3} offen")
    a.e(f"v_add_u32 v6, {L_FL}, v4")
    a.e(f"ds_write_b32 v6, v{V_ZERO}")
    init_barrier(a)
    a.e(f"v_lshlrev_b32 v6, 3, v{V_LANE}")
    a.e(f"v_add_u32 v6, {L_BIAS}, v6")
    a.e("s_waitcnt vmcnt(0)")
    a.e(f"v_lshlrev_b32 v2, 16, v5")
    a.e(f"v_and_b32 v3, 0xffff0000, v5")
    a.e(f"ds_write_b64 v6, v[2:3]")
    a.e(f"v_mov_b32 v2, 1")
    a.e("s_waitcnt lgkmcnt(0)")
    a.e("s_mov_b64 exec, 1")
    a.e(f"ds_write_b32 v{V_FL}, v2 offset:36")
    a.e("s_mov_b64 exec, -1")
    a.e(f"s_branch {l_bj}")
    a.lab(l_n3)
    init_barrier(a)
    a.lab(l_bj)
    stamp2(a, 2)
    a.e(f"s_lshl_b32 s{S_T3}, s{S_W}, 2")
    a.e(f"s_add_u32 s{S_T3}, s{S_T3}, {L_FL}")
    mk_sig_addr(a, V_PROG, V_LANE, S_T3)
    a.e(f"v_and_b32 v1, 31, v{V_LANE}")
    a.e(f"v_lshrrev_b32 v2, 5, v{V_LANE}")
    a.e(f"v_bfe_u32 v3, v{V_LANE}, 1, 3")
    a.e(f"v_xor_b32 v3, v3, v2")
    a.e(f"v_lshlrev_b32 v3, 4, v3")
    a.e(f"v_lshl_add_u32 v3, v1, 7, v3")
    a.e(f"s_lshl_b32 s{S_T3}, s{S_W}, 12")
    a.e(f"v_add_u32 v{V_XR}, s{S_T3}, v3")
    for c in range(1, 4):
        a.e(f"v_xor_b32 v{V_XR+c}, {32*c}, v{V_XR}")
    a.e(f"v_lshlrev_b32 v{V_BA}, 4, v2")
    a.e(f"v_add_u32 v{V_BA}, {L_BIAS}, v{V_BA}")
    a.e(f"v_and_b32 v3, 15, v{V_LANE}")
    a.e(f"v_bfe_u32 v4, v{V_LANE}, 4, 1")
    a.e(f"v_lshlrev_b32 v3, 4, v3")
    a.e(f"v_lshl_add_u32 v3, v4, 10, v3")
    a.e(f"v_lshl_add_u32 v{V_SO}, v2, 8, v3")
    a.e(f"v_bfe_u32 v3, v{V_LANE}, 2, 2")
    a.e(f"v_lshl_add_u32 v5, v2, 3, v3")
    a.e(f"v_lshlrev_b32 v5, 7, v5")
    a.e(f"v_lshl_add_u32 v5, v4, 5, v5")
    a.e(f"v_and_b32 v6, 3, v{V_LANE}")
    a.e(f"v_lshl_add_u32 v5, v6, 3, v5")
    a.e(f"v_lshrrev_b32 v6, 1, v3")
    a.e(f"v_lshl_add_u32 v{V_TA}, v6, 6, v5")
    a.e(f"v_xor_b32 v{V_TA+1}, 64, v{V_TA}")
    for wi, wbase in ((1, L_WA), (2, L_WB)):
        for t in range(2):
            a.e(f"v_add_u32 v{V_TA+2*wi+t}, {wbase}, v{V_TA+t}")
    a.e(f"v_and_b32 v1, 15, v{V_LANE}")
    a.e(f"v_lshl_add_u32 v2, v4, 1, v2")
    a.e(f"v_lshrrev_b32 v3, 2, v1")
    a.e(f"v_lshlrev_b32 v4, 1, v3")
    a.e(f"v_mov_b32 v5, {P['FQ']}")
    a.e(f"v_lshrrev_b32 v4, v4, v5")
    a.e(f"v_and_b32 v4, 3, v4")
    a.e(f"v_xor_b32 v4, v4, v2")
    a.e(f"v_lshl_add_u32 v4, v1, 2, v4")
    a.e(f"v_lshlrev_b32 v4, 4, v4")
    a.e(f"v_add_u32 v4, 6144, v4")
    a.e(f"s_lshl_b32 s{S_T3}, s{S_W}, 10")
    a.e(f"s_add_u32 s{S_T3}, s{S_T3}, 2048")
    a.e(f"v_add_u32 v5, s{S_T3}, v{V_L16}")
    a.e(f"s_cmp_lt_u32 s{S_W}, 2")
    a.e(f"s_cselect_b64 vcc, -1, 0")
    a.e(f"v_cndmask_b32 v{V_PA}, v4, v5, vcc")
    a.e(f"v_cndmask_b32 v{V_QA}, v5, v4, vcc")
    a.e(f"s_lshr_b32 s{S_T3}, s{S_W}, 1")
    a.e(f"s_lshl_b32 s{S_RB}, s{S_M}, 1")
    a.e(f"s_add_u32 s{S_RB}, s{S_RB}, s{S_T3}")
    a.e(f"s_lshl_b32 s{S_T3}, s{S_RB}, 4")
    a.e(f"s_add_u32 s{S_T3}, s{S_T3}, s{S_J}")
    a.e(f"s_lshl_b32 s{S_T3}, s{S_T3}, 1")
    a.e(f"s_and_b32 s{S_T4}, s{S_W}, 1")
    a.e(f"s_add_u32 s{S_T3}, s{S_T3}, s{S_T4}")
    a.e(f"s_lshl_b32 s{S_T5}, s{S_T3}, 7")
    a.e(f"s_mov_b32 s{S_FIDX}, s{S_T5}")

    a.e(f"s_cmp_ge_u32 s{S_J}, 14")
    a.e(f"s_cbranch_scc1 L_p1_noa")

    xr_tok = {}

    def x_read1(p, cp):
        ks, c = 2 * p + (cp >> 1), cp & 1
        a.e(f"ds_read_b128 {vr(X(c,ks),4)}, v{V_XR+cp} offset:{(p%4)*16384}")
        xr_tok[(c, ks)] = lg.issue()

    def x_swap(ks, i):
        a.e(f"v_permlane16_swap_b32 v{X(0,ks)+i}, v{X(1,ks)+i}")

    a.e(f"s_mul_i32 s{S_T3}, s{S_RB}, 72")
    a.e(f"s_lshl_b32 s{S_T4}, s{S_J}, 1")
    a.e(f"s_add_u32 s{S_T3}, s{S_T3}, s{S_T4}")
    a.e(f"s_lshl_b32 s{S_T3}, s{S_T3}, 12")
    a.e(f"s_and_b32 s{S_T4}, s{S_W}, 1")
    a.e(f"s_lshl_b32 s{S_T4}, s{S_T4}, 11")
    a.e(f"s_add_u32 s{S_BASEA}, s{S_T3}, s{S_T4}")
    a.e(f"s_add_u32 s{S_FLA}, s{S_FIDX}, {WS_FA}")
    lds_wait_word(a, lg, V_FL, V_F, 36, 1)
    for t in range(4):
        for q in range(4):
            a.e(f"ds_read_b128 {vr(ACC(t)+4*q,4)}, v{V_BA} offset:{t*128+q*32}")
            btk = lg.issue()
    lg.wait(btk)
    stamp2(a, 5)

    LA = P["LA"]
    NF = 112
    rtok = {}
    fixed = {}
    bg = []

    def at(n, f):
        fixed.setdefault(max(n, -1), []).append(f)

    def need_of(ps, p):
        if ps == 0:
            return ITEM_CNT[("a", 2 * p + 1)]
        return ITEM_CNT[("b", 2 * p + 1)]

    def sched_check(n0, need):
        st = {}
        ok, spin = a.newlab("Lok"), a.newlab("Lspin")

        def f0():
            a.e(f"ds_read_b128 {vr(V_F,4)}, v{V_FL} offset:16")
            st["tok"] = lg.issue()

        def f1():
            lg.wait(st["tok"])
            a.e(f"v_min3_u32 v{V_F}, v{V_F}, v{V_F+1}, v{V_F+2}")

        def f2():
            a.e(f"v_min_u32 v{V_F}, v{V_F}, v{V_F+3}")

        def f3():
            a.e(f"v_cmp_gt_u32 vcc, {need}, v{V_F}")

        def f4():
            a.e(f"s_cbranch_vccnz {spin}")
            a.lab(ok)
            t = a.tail
            t.append(f"{spin}:")
            t.append(f"  s_mov_b32 s{S_SPIN}, 0")
            t.append(f"{spin}_l:")
            if X3 & 4:
                t.append("  s_sleep 2")
            t.append(f"  ds_read_b128 {vr(V_F,4)}, v{V_FL} offset:16")
            t.append(f"  s_add_u32 s{S_SPIN}, s{S_SPIN}, 1")
            t.append(f"  s_cmp_gt_u32 s{S_SPIN}, {SPIN_MAX*8}")
            t.append(f"  s_waitcnt lgkmcnt(0)")
            t.append(f"  s_cbranch_scc1 {ok}")
            t.append(f"  v_min3_u32 v{V_F}, v{V_F}, v{V_F+1}, v{V_F+2}")
            t.append(f"  v_min_u32 v{V_F}, v{V_F}, v{V_F+3}")
            t.append(f"  v_cmp_gt_u32 vcc, {need}, v{V_F}")
            t.append(f"  s_cbranch_vccnz {spin}_l")
            t.append(f"  s_branch {ok}")
        at(n0 - 3 - P["CHK"], f0)
        at(n0 - 3, f1); at(n0 - 2, f2); at(n0 - 1, f3); at(n0, f4)

    def rd(n):
        ps, ks, c, t = n // 56, (n % 56) // 4, (n % 4) // 2, n % 2
        ad = (L_WA + ks * 4096) if ps == 0 else wb_addr(ks)
        wi, base = (1, L_WA) if ps == 0 else ((2, L_WB) if ks < 6 else (0, 0))
        off = ad - base + c * 2048
        d = V_WR + (n % NR) * 4
        a.e(f"ds_read_b64_tr_b16 {vr(d,2)}, v{V_TA+2*wi+t} offset:{off}")
        lg.issue()
        a.e(f"ds_read_b64_tr_b16 {vr(d+2,2)}, v{V_TA+2*wi+t} offset:{off+512}")
        rtok[n] = lg.issue()

    def epi_items(t):
        items = []
        blk = (t & 1) + 28 * (t >> 1)
        for u in range(2):
            e = V_E + ((2 * t + u) % 2) * 4
            for h in range(2):
                sreg = ACC(t) + 8 * u + 4 * h
                tm = V_E + 8 + 4 * h
                for i in range(4):
                    items.append(lambda i=i, sreg=sreg, tm=tm: a.e(f"v_max_f32 v{tm+i}, 0, v{sreg+i}"))
                for i in range(4):
                    items.append(lambda i=i, tm=tm: a.e(f"v_mul_f32 v{tm+i}, v{tm+i}, v{tm+i}"))
                items.append(lambda e=e, h=h, tm=tm: a.e(f"v_cvt_pk_bf16_f32 v{e+2*h}, v{tm}, v{tm+1}"))
                items.append(lambda e=e, h=h, tm=tm: a.e(f"v_cvt_pk_bf16_f32 v{e+2*h+1}, v{tm+2}, v{tm+3}"))

            def st(e=e, u=u):
                a.e(f"s_add_u32 s{S_T3}, s{S_BASEA}, {blk*4096 + (0x40000000 if X3 & 64 else 0)}")
                a.e(f"buffer_store_dwordx4 {vr(e,4)}, v{V_SO}, {sr(SRD_WS,4)}, s{S_T3} offen offset:{u*512} sc1")
                vm.issue()
            items.append(st)
        return items

    def try_flag(srd=SRD_WS, so=S_FLA):
        sk = a.newlab("Ltf")
        a.e(f"s_getreg_b32 s{S_PG0}, hwreg(HW_REG_IB_STS)")
        a.e(f"s_and_b32 s{S_PG0}, s{S_PG0}, 0x00c0000f")
        a.e(f"s_or_b32 s{S_PG0}, s{S_PG0}, s{S_FDONE}")
        a.e(f"s_cbranch_scc1 {sk}")
        a.e("s_mov_b64 exec, 1")
        a.e(f"buffer_store_dword v{V_NONCE}, v{V_ZERO}, {sr(srd,4)}, s{so} offen sc1")
        a.e("s_mov_b64 exec, -1")
        a.e(f"s_mov_b32 s{S_FDONE}, 1")
        a.lab(sk)

    def force_flag(srd, so):
        sk = a.newlab("Lff")
        a.e(f"s_cmp_lg_u32 s{S_FDONE}, 0")
        a.e(f"s_cbranch_scc1 {sk}")
        a.e("s_waitcnt vmcnt(0)")
        a.e("s_mov_b64 exec, 1")
        a.e(f"buffer_store_dword v{V_NONCE}, v{V_ZERO}, {sr(srd,4)}, s{so} offen sc1")
        a.e("s_mov_b64 exec, -1")
        a.lab(sk)
        a.e(f"s_mov_b32 s{S_FDONE}, 0")

    a.e(f"s_mov_b32 s{S_FDONE}, 0")
    for ps in range(2):
        for p in range(7):
            n0 = ps * 56 + p * 8 - LA
            if ps == 0:
                sched_check(n0 - 2, need_of(ps, p))
                k = 0
                for xp in range(7):
                    if XQ[xp] == p:
                        for cp in range(4):
                            at(n0 - 2 + k // 2, lambda xp=xp, cp=cp: x_read1(xp, cp))
                            k += 1
            else:
                sched_check(n0, need_of(ps, p))

            def sig(ps=ps, p=p):
                if ps == 0:
                    xs = [xp for xp in range(7) if XQ[xp] <= p]
                    lg.wait(xr_tok[(1, 2 * max(xs) + 1)])
                lds_signal(a, lg, V_PROG, V_SIG, ps * 7 + p + 2)
            at(ps * 56 + p * 8 + 1, sig)
    get_nonce(a, lg, V_FL, None, V_NONCE)
    at(58, lambda: bg.extend(epi_items(0) + epi_items(1)))
    for f in fixed.pop(-1, []):
        f()
    for n in range(LA):
        rd(n)
    stamp(a, 1)
    stamp2(a, 6)
    nswap = [0]
    for n in range(NF):
        ps, ks, c, t = n // 56, (n % 56) // 4, (n % 4) // 2, n % 2
        nfix = 0
        for f in fixed.pop(n, []):
            f()
            nfix += 1
        if n + LA < NF:
            rd(n + LA)
        if (P["EXP"] & 256) and n % 16 == 0 and n > 0:
            stamp(a, 1 + n // 16)
        if STAMPS and STMODE == 2 and n % 16 == 0:
            a.e(f"s_memrealtime {sr(S_ST+2*(1+n//16),2)}")
        lg.wait(rtok[n])
        lg.wait(xr_tok[(c, ks)])
        w = V_WR + (n % NR) * 4
        acc = ACC(2 * ps + t)
        a.e(f"v_mfma_f32_32x32x16_bf16 {vr(acc,16)}, {vr(w,4)}, {vr(X(c,ks),4)}, {vr(acc,16)}")
        budget = P["BGN"] - nfix
        had_bg = bool(bg)
        while bg and budget > 0:
            bg.pop(0)()
            budget -= 1
        if ps == 1 and not bg and not had_bg and n > 60:
            if n % P["TFN"] == 0:
                try_flag()
            elif budget > 0 and nswap[0] < min(4 * ks, NSWAP_A) and P["SWIN"]:
                x_swap(nswap[0] // 4, nswap[0] % 4)
                nswap[0] += 1
    assert not fixed and not bg, (fixed.keys(), len(bg))
    lds_signal(a, lg, V_PROG, V_SIG, 16)
    if P["EXP"] & 256:
        stamp_flush(a, 8)
        a.e("s_endpgm")
    stamp(a, 2)
    force_flag(SRD_WS, S_FLA)
    a.e("s_nop 7")
    for f in epi_items(2) + epi_items(3):
        f()
    while nswap[0] < NSWAP_A:
        x_swap(nswap[0] // 4, nswap[0] % 4)
        nswap[0] += 1
    assert nswap[0] == NSWAP_A, nswap
    a.e(f"s_add_u32 s{S_FLA}, s{S_FLA}, {FSTRIDE}")
    stamp(a, 3)
    a.e("s_branch L_p1_b")
    a.lab("L_p1_noa")
    if P["EXP"] & 1024:
        a.e("s_endpgm")
    lg = Cnt(a, "lgkmcnt", 15)
    get_nonce(a, lg, V_FL, None, V_NONCE)

    def x_pair(p):
        lds_wait_min4(a, lg, V_FL, V_F, 16, NOA_CNT[("x", p)])
        for cp in range(4):
            x_read1(p, cp)
        lg.drain()
        qs = [q for q in range(7) if all(xp <= p for xp in range(7) if XQ[xp] <= q)]
        lds_signal(a, lg, V_PROG, V_SIG, max(qs) + 2)
        for ks in (2 * p, 2 * p + 1):
            for i in range(4):
                if 4 * ks + i < NSWAP_A:
                    x_swap(ks, i)

    next(rp)
    for p in range(7):
        x_pair(p)
    lds_signal(a, lg, V_PROG, V_SIG, 16)
    get_nonce(a, lg, V_FL, None, V_NONCE)
    a.e(f"s_mov_b32 s{S_FDONE}, 1")
    a.e(f"s_mov_b32 s{S_FLA}, 0")
    if P["EXP"] & 256:
        a.e("s_endpgm")
    stamp(a, 1); stamp(a, 2); stamp(a, 3)
    a.lab("L_p1_b")


def gen_p1_stage_b(a, P):
    vm = Cnt(a, "vmcnt", 63)
    lg = Cnt(a, "lgkmcnt", 15)
    V_LANE = 0
    V_T = 1
    V_FL = 12
    V_PROG = 13
    V_L16 = 14
    V_ZERO = 15
    V_SBA = 16
    V_F = 24
    V_NONCE = 28
    V_SIG = 29
    V_PA, V_QA = 30, 31
    V_X = 32
    V_ACC = 144
    V_HALO = 192
    V_WR = 196
    V_M = 236
    NR = 10

    def X(T, ks):
        return V_X + (T * 14 + ks) * 4

    def ACC(T, c):
        return V_ACC + (T * 6 + c) * 4

    a.c("==== P1 stage B ====")
    if P["EXP"] & 1:
        for i in range(4, 8):
            stamp(a, i)
        stamp_flush(a, 8)
        a.e("s_endpgm")
    a.e("s_waitcnt lgkmcnt(0)")
    bases = {0: 0, 1: L_WA, 2: L_WB}

    def reg_off(ks):
        ad = sb_addr(ks)
        k = 1 if ks < 8 else (0 if ks < 12 else 2)
        return k, ad - bases[k]
    for k, bv in bases.items():
        a.e(f"v_add_u32 v{V_SBA+k}, {bv}, v{V_L16}")
        a.e(f"v_add_u32 v{V_SBA+3+k}, {bv}, v{V_PA}")
        a.e(f"v_add_u32 v{V_M+17+k}, {bv}, v{V_QA}")
    VQ = V_M + 17
    V_MC = V_M
    V_MP = V_M + 4
    V_MP0 = V_M + 8
    V_NEG = V_M + 12
    S_MK = 60
    bg = []

    def mask_bits(f):
        m = 0
        for l in range(64):
            if f(l & 15, l >> 4):
                m |= 1 << l
        return m
    bg.append(lambda: a.e(f"v_mov_b32 v{V_NEG}, 0xf149f2ca"))
    for e in range(4):
        for (dst, f) in ((V_MC + e, lambda q, g, e=e: (q - 4 * g - e) >= 0 and (q - 4 * g - e) % 2 == 0),
                         (V_MP + e, lambda q, g, e=e: (4 * g + e - q) >= 2 and (4 * g + e - q) % 2 == 0)):
            mb = mask_bits(f)

            def mk(dst=dst, mb=mb):
                a.e(f"s_mov_b32 s{S_MK}, 0x{mb & 0xffffffff:08x}")
                a.e(f"s_mov_b32 s{S_MK+1}, 0x{mb >> 32:08x}")
                a.e(f"v_cndmask_b32 v{dst}, v{V_NEG}, 0, {sr(S_MK,2)}")
            bg.append(mk)

    def mk0():
        a.e(f"s_or_b32 s{S_T3}, s{S_M}, s{S_W}")
        a.e(f"s_cselect_b64 {sr(S_MK,2)}, 0, -1")
        for e in range(4):
            a.e(f"v_cndmask_b32 v{V_MP0+e}, v{V_MP+e}, v{V_NEG}, {sr(S_MK,2)}")
    bg.append(mk0)

    def try_flag():
        sk = a.newlab("Ltf")
        a.e(f"s_getreg_b32 s{S_PG0}, hwreg(HW_REG_IB_STS)")
        a.e(f"s_and_b32 s{S_PG0}, s{S_PG0}, 0x00c0000f")
        a.e(f"s_or_b32 s{S_PG0}, s{S_PG0}, s{S_FDONE}")
        a.e(f"s_cbranch_scc1 {sk}")
        a.e("s_mov_b64 exec, 1")
        a.e(f"buffer_store_dword v{V_NONCE}, v{V_ZERO}, {sr(SRD_WS,4)}, s{S_FLA} offen sc1")
        a.e("s_mov_b64 exec, -1")
        a.e(f"s_mov_b32 s{S_FDONE}, 1")
        a.lab(sk)

    LA = P["LAB"]
    NFK = 8
    NF = 14 * NFK
    rtok = {}
    fixed = {}

    def at(n, f):
        fixed.setdefault(max(n, -1), []).append(f)

    def sched_check(n0, need):
        st = {}
        ok, spin = a.newlab("Lok"), a.newlab("Lspin")

        def f0():
            a.e(f"ds_read_b128 {vr(V_F,4)}, v{V_FL} offset:16")
            st["tok"] = lg.issue()

        def f1():
            lg.wait(st["tok"])
            a.e(f"v_min3_u32 v{V_F}, v{V_F}, v{V_F+1}, v{V_F+2}")

        def f4():
            a.e(f"s_cbranch_vccnz {spin}")
            a.lab(ok)
            t = a.tail
            t.append(f"{spin}:")
            t.append(f"  s_mov_b32 s{S_SPIN}, 0")
            t.append(f"{spin}_l:")
            t.append(f"  ds_read_b128 {vr(V_F,4)}, v{V_FL} offset:16")
            t.append(f"  s_getreg_b32 s{S_PG0}, hwreg(HW_REG_IB_STS)")
            t.append(f"  s_and_b32 s{S_PG0}, s{S_PG0}, 0x00c0000f")
            t.append(f"  s_or_b32 s{S_PG0}, s{S_PG0}, s{S_FDONE}")
            t.append(f"  s_cbranch_scc1 {spin}_n")
            t.append(f"  s_mov_b64 exec, 1")
            t.append(f"  buffer_store_dword v{V_NONCE}, v{V_ZERO}, {sr(SRD_WS,4)}, s{S_FLA} offen sc1")
            t.append(f"  s_mov_b64 exec, -1")
            t.append(f"  s_mov_b32 s{S_FDONE}, 1")
            t.append(f"{spin}_n:")
            t.append(f"  s_add_u32 s{S_SPIN}, s{S_SPIN}, 1")
            t.append(f"  s_cmp_gt_u32 s{S_SPIN}, {SPIN_MAX*8}")
            t.append(f"  s_waitcnt lgkmcnt(0)")
            t.append(f"  s_cbranch_scc1 {ok}")
            t.append(f"  v_min3_u32 v{V_F}, v{V_F}, v{V_F+1}, v{V_F+2}")
            t.append(f"  v_min_u32 v{V_F}, v{V_F}, v{V_F+3}")
            t.append(f"  v_cmp_gt_u32 vcc, {need}, v{V_F}")
            t.append(f"  s_cbranch_vccnz {spin}_l")
            t.append(f"  s_branch {ok}")
        at(n0 - 7, f0)
        at(n0 - 3, f1)
        at(n0 - 2, lambda: a.e(f"v_min_u32 v{V_F}, v{V_F}, v{V_F+3}"))
        at(n0 - 1, lambda: a.e(f"v_cmp_gt_u32 vcc, {need}, v{V_F}"))
        at(n0, f4)

    for p in range(7):
        sched_check(16 * p - LA, ITEM_CNT[("B", 2 * p + 1)])
    for sw in range(NSWAP_A, 56):
        ks, i = divmod(sw, 4)
        at((ks - 2) * NFK + 2 * i, lambda ks=ks, i=i: a.e(f"v_permlane16_swap_b32 v{X(0,ks)+i}, v{X(1,ks)+i}"))
    for n in range(1, 64, 8):
        at(n, try_flag)

    def rd(n):
        ks, c = divmod(n, NFK)
        k, off = reg_off(ks)
        d = V_WR + (n % NR) * 4
        if c < 6:
            a.e(f"ds_read_b128 {vr(d,4)}, v{V_SBA+k} offset:{off + c*1024}")
        elif c == 6:
            a.e(f"ds_read_b128 {vr(d,4)}, v{V_SBA+3+k} offset:{off}")
        else:
            a.e(f"ds_read_b128 {vr(d,4)}, v{VQ+k} offset:{off}")
        rtok[n] = lg.issue()

    for f in fixed.pop(-1, []):
        f()
    for n in range(LA):
        rd(n)
    stamp(a, 4)
    for n in range(NF):
        ks, c = divmod(n, NFK)
        if P["PRIOB"] and n == P["PRIOBN"]:
            a.e(f"s_setprio {P['PRIOB']}")
        for f in fixed.pop(n, []):
            f()
        if n + LA < NF:
            rd(n + LA)
        w = V_WR + (n % NR) * 4
        if c < 6:
            lg.wait(rtok[n])
            for T in range(2):
                C = None if ks == 0 else ACC(T, c)
                if c < 4:
                    mfma(a, ACC(T, c), w, X(T, ks), C)
                else:
                    mfma(a, ACC(T, c), X(T, ks), w, C)
        elif c == 7:
            lg.wait(rtok[n])
            wp = V_WR + ((n - 1) % NR) * 4
            mfma(a, V_HALO, wp, w, None if ks == 0 else V_HALO)
        if n >= 64 and bg and n % 2 == 1:
            bg.pop(0)()
    assert not fixed and not bg

    a.c("---- attention ----")
    stamp(a, 5)
    R = V_X
    QF = [R, R + 4]
    KF = [R + 8, R + 12]
    KP = R + 16
    VV = [R + 20, R + 26]
    VPX = R + 32
    HX = R + 36
    VT1 = R + 40
    SC = [R + 44, R + 48]
    SP = [R + 52, R + 56]
    PF = [R + 60, R + 64]
    OO = [[R + 68, R + 72], [R + 76, R + 80]]
    OP = [R + 84, R + 88]
    TM = [R + 92, R + 96]
    ZG = [R + 100, R + 101]
    GO = R + 102
    V_EXW, V_EXH, V_EXR = 1, 2, 3
    a.e(f"ds_read_b128 {vr(V_F,4)}, v{V_FL}")
    ptk = lg.issue()
    a.e(f"s_lshl_b32 s{S_T3}, s{S_W}, 11")
    a.e(f"s_add_u32 s{S_T3}, s{S_T3}, {L_XB}")
    a.e(f"v_add_u32 v{V_EXR}, s{S_T3}, v{V_L16}")
    a.e(f"v_add_u32 v{V_EXW}, 2048, v{V_EXR}")
    a.e(f"s_lshr_b32 s{S_T3}, s{S_W}, 1")
    a.e(f"s_lshl_b32 s{S_T3}, s{S_T3}, 10")
    a.e(f"s_and_b32 s{S_T4}, s{S_W}, 1")
    a.e(f"s_lshl_b32 s{S_T4}, s{S_T4}, 3")
    a.e(f"s_add_u32 s{S_T3}, s{S_T3}, s{S_T4}")
    a.e(f"s_add_u32 s{S_T3}, s{S_T3}, {L_XB}")
    a.e(f"v_add_u32 v{V_EXH}, s{S_T3}, v{V_L16}")

    def pk(d, s):
        a.e(f"v_cvt_pk_bf16_f32 v{d}, v{s}, v{s+1}")
        a.e(f"v_cvt_pk_bf16_f32 v{d+1}, v{s+2}, v{s+3}")

    pk(KF[1], ACC(1, 2)); pk(KF[1] + 2, ACC(1, 3))
    pk(QF[1], ACC(1, 0)); pk(QF[1] + 2, ACC(1, 1))
    pk(KF[0], ACC(0, 2)); pk(KF[0] + 2, ACC(0, 3))
    pk(VT1, ACC(1, 4)); pk(VT1 + 2, ACC(1, 5))
    pk(HX, V_HALO)
    lds_wait_min4(a, lg, V_FL, V_F, 0, 16, ptk)
    a.e(f"ds_write_b128 v{V_EXW}, {vr(KF[1],4)}")
    a.e(f"ds_write_b128 v{V_EXW}, {vr(VT1,4)} offset:1024")
    a.e(f"ds_write_b64 v{V_EXH}, {vr(HX,2)}")
    mfma(a, SC[1], KF[1], QF[1], V_MC)
    mfma(a, SP[1], KF[0], QF[1], V_MP)
    pk(QF[0], ACC(0, 0)); pk(QF[0] + 2, ACC(0, 1))
    a.e("s_waitcnt lgkmcnt(0)")
    lg.issue(); lg.issue(); lg.issue(); lg.mark_drained()
    lds_signal(a, lg, V_PROG, V_SIG, 17)
    mfma(a, SC[0], KF[0], QF[0], V_MC)
    for dt in range(2):
        pk(VV[dt] + 2, ACC(0, 4 + dt))
        a.e(f"v_mov_b32 v{VV[dt]+4}, v{VT1+2*dt}")
        a.e(f"v_mov_b32 v{VV[dt]+5}, v{VT1+2*dt+1}")

    def zipped(l0, l1):
        for x, y in zip(l0, l1):
            a.e(x)
            a.e(y)

    def gate_code(T):
        z, t0, t1 = ACC(T, 1), TM[T], TM[T] + 1
        return [
            f"v_mov_b32 v{t0}, v{z}",
            f"v_mov_b32 v{t1}, v{z}",
            "s_nop 0",
            f"v_permlane32_swap_b32 v{t0}, v{t1}",
            f"v_mov_b32 v{t0}, v{t1}",
            "s_nop 0",
            f"v_permlane16_swap_b32 v{t0}, v{t1}",
            f"v_mul_f32 v{t1}, 0xbfb8aa3b, v{t1}",
            f"v_exp_f32 v{t1}, v{t1}",
            f"v_add_f32 v{t1}, 1.0, v{t1}",
            f"v_rcp_f32 v{ZG[T]}, v{t1}",
            f"v_sub_f32 v{GO+T}, 1.0, v{ZG[T]}",
        ]
    zipped(gate_code(0), gate_code(1))
    a.e(f"s_mul_i32 s{S_T4}, s{S_RB}, 72")
    a.e(f"s_add_u32 s{S_T4}, s{S_T4}, s{S_J}")
    a.e(f"s_add_u32 s{S_T4}, s{S_T4}, 56")
    a.e(f"s_lshl_b32 s{S_T4}, s{S_T4}, 12")
    a.e(f"s_and_b32 s{S_T0}, s{S_W}, 1")
    a.e(f"s_lshl_b32 s{S_T1}, s{S_T0}, 11")
    a.e(f"s_add_u32 s{S_T4}, s{S_T4}, s{S_T1}")
    a.e(f"s_lshl_b32 s{S_T1}, s{S_J}, 5")
    a.e(f"s_add_u32 s{S_T1}, s{S_T1}, s{S_RB}")
    a.e(f"s_lshl_b32 s{S_T1}, s{S_T1}, 8")
    a.e(f"s_lshl_b32 s{S_T0}, s{S_T0}, 3")
    a.e(f"s_add_u32 s{S_T1}, s{S_T1}, s{S_T0}")
    a.e(f"s_add_u32 s{S_T1}, s{S_T1}, {WS_G}")
    sk = a.newlab("Lff")
    a.e(f"s_cmp_lg_u32 s{S_FDONE}, 0")
    a.e(f"s_cbranch_scc1 {sk}")
    a.e("s_waitcnt vmcnt(0)")
    flag_store(a, vm, V_NONCE, V_ZERO, S_FLA)
    a.lab(sk)
    a.e("s_mov_b64 exec, 0xffff")
    a.e(f"buffer_store_dwordx2 {vr(GO,2)}, v{V_L16}, {sr(SRD_WS,4)}, s{S_T1} offen sc1")
    vm.issue()
    a.e("s_mov_b64 exec, -1")
    lds_wait_min4(a, lg, V_FL, V_F, 0, 17)
    a.e(f"ds_read_b128 {vr(KP,4)}, v{V_EXR}")
    a.e(f"ds_read_b128 {vr(VPX,4)}, v{V_EXR} offset:1024")
    a.e("s_waitcnt lgkmcnt(1)")
    mfma(a, SP[0], KP, QF[0], V_MP0)
    a.e("s_waitcnt lgkmcnt(0)")
    lg.issue(); lg.issue(); lg.mark_drained()
    lds_signal(a, lg, V_PROG, V_SIG, 18)
    for dt in range(2):
        a.e(f"v_mov_b32 v{VV[dt]}, v{VPX+2*dt}")
        a.e(f"v_mov_b32 v{VV[dt]+1}, v{VPX+2*dt+1}")
    CL = (28 ** -0.5) * 1.4426950408889634
    import struct
    clbits = struct.unpack("<I", struct.pack("<f", CL))[0]
    a.e(f"s_mov_b32 s{S_T3}, 0x{clbits:08x}")
    a.e("s_nop 1")

    def xred(op, x, t):
        return [
            f"v_mov_b32 v{t}, v{x}",
            "s_nop 0",
            f"v_permlane32_swap_b32 v{x}, v{t}",
            f"{op} v{x}, v{x}, v{t}",
            f"v_mov_b32 v{t}, v{x}",
            "s_nop 0",
            f"v_permlane16_swap_b32 v{x}, v{t}",
            f"{op} v{x}, v{x}, v{t}",
        ]

    def soft_code(T):
        m, sm, t = TM[T], TM[T] + 1, TM[T] + 2
        sp, sc = SP[T], SC[T]
        o = []
        o.append(f"v_max3_f32 v{m}, v{sc}, v{sc+1}, v{sc+2}")
        o.append(f"v_max3_f32 v{m}, v{m}, v{sc+3}, v{sp}")
        o.append(f"v_max3_f32 v{m}, v{m}, v{sp+1}, v{sp+2}")
        o.append(f"v_max_f32 v{m}, v{m}, v{sp+3}")
        o += xred("v_max_f32", m, t)
        o.append(f"v_mul_f32 v{m}, s{S_T3}, v{m}")
        for e in range(4):
            o.append(f"v_fma_f32 v{sp+e}, v{sp+e}, s{S_T3}, -v{m}")
            o.append(f"v_fma_f32 v{sc+e}, v{sc+e}, s{S_T3}, -v{m}")
        for e in range(4):
            o.append(f"v_exp_f32 v{sp+e}, v{sp+e}")
            o.append(f"v_exp_f32 v{sc+e}, v{sc+e}")
        o.append(f"v_cvt_pk_bf16_f32 v{PF[T]}, v{sp}, v{sp+1}")
        o.append(f"v_cvt_pk_bf16_f32 v{PF[T]+1}, v{sp+2}, v{sp+3}")
        o.append(f"v_cvt_pk_bf16_f32 v{PF[T]+2}, v{sc}, v{sc+1}")
        o.append(f"v_cvt_pk_bf16_f32 v{PF[T]+3}, v{sc+2}, v{sc+3}")
        o.append(f"v_add_f32 v{sm}, v{sp}, v{sp+1}")
        for dt in range(2):
            o.append(f"v_mfma_f32_16x16x32_bf16 {vr(OO[T][dt],4)}, {vr(VV[dt]+2*T,4)}, {vr(PF[T],4)}, 0")
        o.append(f"v_add_f32 v{t}, v{sp+2}, v{sp+3}")
        o.append(f"v_add_f32 v{m}, v{sc}, v{sc+1}")
        o.append(f"v_add3_u32 v{V_SIG}, v{V_SIG}, 0, 0" if False else f"v_add_f32 v{sm}, v{sm}, v{t}")
        o.append(f"v_add_f32 v{t}, v{sc+2}, v{sc+3}")
        o.append(f"v_add_f32 v{sm}, v{sm}, v{m}")
        o.append(f"v_add_f32 v{sm}, v{sm}, v{t}")
        o += xred("v_add_f32", sm, t)
        o.append(f"v_rcp_f32 v{sm}, v{sm}")
        o.append(f"v_mul_f32 v{sm}, v{sm}, v{ZG[T]}")
        for dt in range(2):
            for e in range(4):
                o.append(f"v_mul_f32 v{OO[T][dt]+e}, v{OO[T][dt]+e}, v{sm}")
        for dt in range(2):
            o.append(f"v_cvt_pk_bf16_f32 v{OP[T]+2*dt}, v{OO[T][dt]}, v{OO[T][dt]+1}")
            o.append(f"v_cvt_pk_bf16_f32 v{OP[T]+2*dt+1}, v{OO[T][dt]+2}, v{OO[T][dt]+3}")
        o.append(f"buffer_store_dwordx4 {vr(OP[T],4)}, v{V_L16}, {sr(SRD_WS,4)}, s{S_T4} offen offset:{T*1024} sc1")
        return o
    zipped(soft_code(1), soft_code(0))
    a.e(f"s_add_u32 s{S_T3}, s{S_FIDX}, {WS_FA + 2*FSTRIDE}")
    stamp(a, 6)
    vm.drain()
    flag_store(a, vm, V_NONCE, V_ZERO, S_T3)
    stamp(a, 7)
    stamp_flush(a, 8)
    a.e("s_endpgm")


def gen_p2(a, P):
    vm = Cnt(a, "vmcnt", 63)
    lg = Cnt(a, "lgkmcnt", 15)
    V_LANE = 0
    V_T = 1
    V_L16 = 10
    V_ZERO = 11
    V_FL = 12
    V_NONCE = 13
    V_SIG = 14
    V_BF = 15
    V_F = 16
    V_P0, V_P1 = 20, 21
    V_PO0, V_PO1 = 22, 23
    V_G = 24
    V_HO = 28
    V_ACC = 32
    V_POOL = 96
    NSLOT = 10

    def ACC(ct, rt):
        return V_ACC + (ct * 4 + rt) * 4

    a.c("==== P2 program ====")
    P2CTX[0] = True
    S_W2K, S_WOK = 72, 28

    V_XO, V_WO, V_BO = 29, 30, 31
    SRD_L = SRD_O
    S_EXM = 24
    S_BA, S_BB, S_BSTEP, S_LA_, S_LB_, S_FWQO, S_FW2O, S_BST2 = 15, 16, 17, 18, 19, 20, 21, 24
    a.e(f"s_lshl_b32 s{S_T0}, s{S_M}, 7")
    a.e(f"s_lshl_b32 s{S_T1}, s{S_W}, 5")
    a.e(f"s_add_u32 s{S_T0}, s{S_T0}, s{S_T1}")
    a.e(f"v_lshrrev_b32 v1, 3, v{V_LANE}")
    a.e(f"v_add_u32 v1, s{S_T0}, v1")
    a.e(f"v_mul_u32_u24 v1, 896, v1")
    a.e(f"v_and_b32 v2, 7, v{V_LANE}")
    a.e(f"v_lshrrev_b32 v3, 4, v{V_LANE}")
    a.e(f"v_xor_b32 v2, v2, v3")
    a.e(f"v_lshl_add_u32 v{V_XO}, v2, 4, v1")
    a.e(f"v_xor_b32 v{V_BO}, 64, v{V_XO}")
    a.e(f"v_and_b32 v6, 1, v3")
    a.e(f"v_lshlrev_b32 v6, 2, v6")
    a.e(f"v_and_b32 v7, 7, v{V_LANE}")
    a.e(f"v_xor_b32 v6, v6, v7")
    a.e(f"s_lshl_b32 s{S_T3}, s{S_W}, 3")
    a.e(f"v_lshrrev_b32 v4, 3, v{V_LANE}")
    a.e(f"v_add_u32 v4, s{S_T3}, v4")
    a.e(f"v_mul_u32_u24 v4, 3584, v4")
    a.e(f"v_lshl_add_u32 v4, v6, 4, v4")
    a.e(f"s_lshl_b32 s{S_T3}, s{S_J}, 8")
    a.e(f"v_add_u32 v{V_WO}, s{S_T3}, v4")
    a.e(f"s_and_b32 s{S_ROT}, s{S_IDX}, 7")
    a.e(f"s_lshr_b32 s{S_T3}, s{S_IDX}, 3")
    a.e(f"s_lshl_b32 s{S_T3}, s{S_T3}, 1")
    a.e(f"s_add_u32 s{S_ROT}, s{S_ROT}, s{S_T3}")
    a.e(f"s_sub_u32 s{S_T3}, s{S_ROT}, 7")
    a.e(f"s_cmp_ge_u32 s{S_ROT}, 7")
    a.e(f"s_cselect_b32 s{S_ROT}, s{S_T3}, s{S_ROT}")
    if not P["ROT"]:
        a.e(f"s_mov_b32 s{S_ROT}, 0")
    S_LX, S_LW, S_LM = 78, 79, 77
    a.e(f"s_lshl_b32 s{S_LX}, s{S_W}, 12")
    a.e(f"s_lshl_b32 s{S_LW}, s{S_W}, 10")
    a.e(f"s_cmp_ge_u32 s{S_J}, 14")
    a.e(f"s_cselect_b32 s{S_LM}, 0x30000, 0")
    a.e(f"v_lshlrev_b32 v{V_L16}, 4, v{V_LANE}")
    a.e(f"v_mov_b32 v{V_ZERO}, 0")
    a.e(f"v_mov_b32 v{V_FL}, {L_FL}")
    a.e(f"s_lshl_b32 s{S_T0}, s{S_W}, 2")
    a.e(f"s_add_u32 s{S_T0}, s{S_T0}, {L_FL+16}")
    mk_sig_addr(a, V_BF, V_LANE, S_T0)
    if P["EXP"] & 1024:
        a.e("s_barrier")
        a.e("s_endpgm")

    def stage_b_setup():
        a.e(f"s_and_b32 s{S_RB}, s{S_IDX}, 3")
        a.e(f"s_lshl_b32 s{S_T0}, s{S_XCD}, 2")
        a.e(f"s_add_u32 s{S_RB}, s{S_RB}, s{S_T0}")
        a.e(f"s_lshr_b32 s{S_NT}, s{S_IDX}, 2")
        a.e(f"v_and_b32 v3, 3, v{V_LANE}")
        a.e(f"v_lshrrev_b32 v4, 2, v{V_LANE}")
        a.e(f"v_lshrrev_b32 v5, 4, v{V_LANE}")
        a.e(f"v_lshlrev_b32 v5, 1, v5")
        a.e(f"v_mov_b32 v6, {P['FQ']}")
        a.e(f"v_lshrrev_b32 v5, v5, v6")
        a.e(f"v_and_b32 v5, 3, v5")
        a.e(f"v_xor_b32 v5, v5, v3")
        a.e(f"s_lshl_b32 s{S_T0}, s{S_M}, 7")
        a.e(f"s_sub_u32 s{S_T0}, s{S_T0}, 16")
        a.e(f"s_max_i32 s{S_T0}, s{S_T0}, 0")
        a.e(f"v_add_u32 v4, s{S_T0}, v4")
        a.e(f"v_mul_u32_u24 v4, 896, v4")
        a.e(f"v_lshl_add_u32 v4, v5, 4, v4")
        a.e(f"v_mov_b32 v5, 0x40000000")
        a.e(f"s_cmp_eq_u32 s{S_M}, 0")
        a.e(f"s_cselect_b64 vcc, -1, 0")
        a.e(f"v_cndmask_b32 v{V_HO}, v4, v5, vcc")
        a.e(f"s_cmp_lt_u32 s{S_W}, 2")
        a.e(f"s_cselect_b64 vcc, -1, 0")
        a.e(f"v_cndmask_b32 v{V_HO}, v{V_HO}, v{V_L16}, vcc")
        a.e(f"s_cselect_b32 s{SRD_L}, s{SRD_WS}, s{SRD_X}")
        a.e(f"s_cselect_b32 s{SRD_L+1}, s{SRD_WS+1}, s{SRD_X+1}")
        a.e(f"s_cselect_b32 s{SRD_L+2}, s{SRD_WS+2}, s{SRD_X+2}")
        a.e(f"s_mov_b32 s{SRD_L+3}, 0x00020000")
        a.e(f"s_cselect_b32 s{S_BSTEP}, 6144, 64") if False else None
        a.e(f"s_mov_b32 s{S_T0}, 6144")
        a.e(f"s_cselect_b32 s{S_BSTEP}, s{S_T0}, 64")
        a.e(f"s_mul_i32 s{S_BA}, s{S_J}, {14*6144}")
        a.e(f"s_lshl_b32 s{S_T0}, s{S_W}, 10")
        a.e(f"s_add_u32 s{S_BA}, s{S_BA}, s{S_T0}")
        a.e(f"s_add_u32 s{S_BA}, s{S_BA}, {WS_WQR}")
        a.e(f"s_add_u32 s{S_T1}, s{S_BA}, 4096")
        a.e(f"s_cmp_lt_u32 s{S_W}, 2")
        a.e(f"s_cselect_b32 s{S_BB}, s{S_T1}, 0")
        a.e(f"s_add_u32 s{S_T1}, s{S_T0}, 4096")
        a.e(f"s_min_u32 s{S_LB_}, s{S_T1}, 6144")
        a.e(f"s_mov_b32 s{S_LA_}, s{S_T0}")
        a.e(f"s_lshl_b32 s{S_BST2}, s{S_BSTEP}, 1")
        a.e(f"v_min_u32 v{V_PO0}, 13, v{V_LANE}")
        a.e(f"v_lshlrev_b32 v{V_PO0}, 2, v{V_PO0}")
        a.e(f"v_min_u32 v{V_PO1}, 17, v{V_LANE}")
        a.e(f"v_lshlrev_b32 v{V_PO1}, 2, v{V_PO1}")
        a.e(f"s_lshl_b32 s{S_T0}, s{S_J}, 7")
        a.e(f"s_add_u32 s{S_FWQO}, s{S_T0}, {WS_FWQ}")
        a.e(f"s_min_u32 s{S_T1}, s{S_NT}, 6")
        a.e(f"s_lshl_b32 s{S_T1}, s{S_T1}, 2")
        a.e(f"s_add_u32 s{S_T1}, s{S_T1}, s{S_W}")
        a.e(f"s_lshl_b32 s{S_T1}, s{S_T1}, 7")
        a.e(f"s_add_u32 s{S_FW2O}, s{S_T1}, {WS_FW2}")

    TWO = [22, 23, 30, 31, 69, 53, 73]
    S_AH, S_AO, S_WOO = 74, 75, 76
    SRD_W2, SRD_WO = SRD_A, SRD_X
    S_FBO, S_GO, S_FA2, S_FA1 = 78, 79, 6, 77
    V_WQ = 1
    V_TW, V_TD = 6, 7
    V_TR = [29, 30, 31, 8]
    V_FAO = 9
    VT8, VT9 = V_POOL + 16, V_POOL + 17
    def p2_setup():
        mk_srd(a, SRD_W2, S_W2K, 1792 * 896)
        mk_srd(a, SRD_WO, S_WOK, 448 * 896)
        a.e(f"s_mul_i32 s{S_BASEA}, s{S_RB}, {72*4096}")
        a.e(f"s_mul_i32 s{S_T0}, s{S_W}, {7*4096}")
        a.e(f"s_lshl_b32 s{S_T1}, s{S_W}, 14")
        a.e(f"s_add_u32 s{S_T1}, s{S_T1}, {56*4096}")
        a.e(f"s_add_u32 s{S_AH}, s{S_BASEA}, s{S_T0}")
        a.e(f"s_add_u32 s{S_AO}, s{S_BASEA}, s{S_T1}")
        a.e(f"s_lshl_b32 s{S_T5}, s{S_NT}, 7")
        a.e(f"s_mul_i32 s{S_WOO}, s{S_W}, {112*896}")
        a.e(f"s_add_u32 s{S_WOO}, s{S_WOO}, s{S_T5}")
        a.e(f"s_and_b32 s{S_T0}, s{S_RB}, 3")
        a.e(f"s_lshl_b32 s{S_T0}, s{S_T0}, 1")
        a.e(f"s_add_u32 s{S_T0}, s{S_T0}, s{S_NT}")
        a.e(f"s_sub_u32 s{S_T1}, s{S_T0}, 7")
        a.e(f"s_cmp_ge_u32 s{S_T0}, 7")
        a.e(f"s_cselect_b32 s{S_T0}, s{S_T1}, s{S_T0}")
        if not P["ROT2"]:
            a.e(f"s_mov_b32 s{S_T0}, 0")
        a.e(f"s_mul_i32 s{S_T4}, s{S_W}, 7")
        for q in range(7):
            a.e(f"s_lshl_b32 s{S_RO2+q}, s{S_T0}, 12")
            a.e(f"s_add_u32 s{S_T1}, s{S_T4}, s{S_T0}")
            a.e(f"s_lshr_b32 s{S_T2}, s{S_T1}, 1")
            a.e(f"s_mul_i32 s{S_T2}, s{S_T2}, {128*896}")
            a.e(f"s_and_b32 s{S_T1}, s{S_T1}, 1")
            a.e(f"s_mul_i32 s{S_T1}, s{S_T1}, {32*896}")
            a.e(f"s_add_u32 s{S_T2}, s{S_T2}, s{S_T1}")
            a.e(f"s_add_u32 s{TWO[q]}, s{S_T2}, s{S_T5}")
            if q < 6:
                a.e(f"s_add_u32 s{S_T0}, s{S_T0}, 1")
                a.e(f"s_cmp_eq_u32 s{S_T0}, 7")
                a.e(f"s_cselect_b32 s{S_T0}, 0, s{S_T0}")
        a.e(f"v_lshrrev_b32 v{VT8}, 3, v{V_LANE}")
        a.e(f"v_lshrrev_b32 v{VT9}, 4, v{V_LANE}")
        a.e(f"v_lshlrev_b32 v5, 1, v{VT9}")
        a.e(f"v_and_b32 v6, 7, v{V_LANE}")
        a.e(f"v_xor_b32 v5, v5, v6")
        a.e(f"v_mul_u32_u24 v{V_WQ}, 896, v{VT8}")
        a.e(f"v_lshl_add_u32 v{V_WQ}, v5, 4, v{V_WQ}")
        for q in range(1, 4):
            a.e(f"v_add_u32 v{V_WQ+q}, {q*8*896}, v{V_WQ}")
        a.e(f"v_mov_b32 v5, 0x40000000")
        a.e(f"s_mov_b32 vcc_lo, 0")
        a.e(f"s_mov_b32 vcc_hi, -1")
        a.e("s_nop 1")
        a.e(f"v_cndmask_b32 v5, v{V_WQ+3}, v5, vcc")
        a.e(f"s_lshl_b32 s{S_T0}, s{S_W}, 12")
        a.e(f"s_add_u32 s{S_T0}, s{S_T0}, {L_TS}")
        a.e(f"v_add_u32 v{V_TW}, s{S_T0}, v{V_L16}")
        a.e(f"v_bfe_u32 v{VT8}, v{V_LANE}, 2, 2")
        a.e(f"v_and_b32 v{V_F}, 1, v{VT9}")
        a.e(f"v_lshrrev_b32 v{V_F+1}, 1, v{VT9}")
        a.e(f"v_lshl_add_u32 v{V_F+2}, v{V_F}, 2, v{VT8}")
        a.e(f"v_lshrrev_b32 v{V_F+3}, 1, v{V_F+2}")
        a.e(f"v_lshl_add_u32 v{V_F+2}, v{V_F+1}, 4, v{V_F+2}")
        a.e(f"v_lshlrev_b32 v{V_F+2}, 7, v{V_F+2}")
        a.e(f"v_and_b32 v{VT8}, 3, v{V_LANE}")
        a.e(f"v_lshl_add_u32 v{V_F+2}, v{VT8}, 3, v{V_F+2}")
        a.e(f"v_add_u32 v{V_F+2}, s{S_T0}, v{V_F+2}")
        for ct in range(4):
            a.e(f"v_xor_b32 v{VT8}, {ct}, v{V_F+3}")
            a.e(f"v_lshl_add_u32 v{V_TR[ct]}, v{VT8}, 5, v{V_F+2}")
        a.e(f"v_lshlrev_b32 v{V_TD}, 10, v{V_F+1}")
        a.e(f"s_mul_i32 s{S_T0}, s{S_W}, 7")
        a.e(f"s_lshr_b32 s{S_T0}, s{S_T0}, 1")
        a.e(f"s_lshl_b32 s{S_T0}, s{S_T0}, 8")
        a.e(f"s_lshl_b32 s{S_T1}, s{S_RB}, 12")
        a.e(f"s_add_u32 s{S_T0}, s{S_T0}, s{S_T1}")
        a.e(f"s_add_u32 s{S_FA1}, s{S_T0}, {WS_FA}")
        a.e(f"s_add_u32 s{S_FA2}, s{S_FA1}, {FSTRIDE}")
        a.e(f"v_and_b32 v{V_FAO}, 7, v{V_LANE}")
        a.e(f"v_lshlrev_b32 v{V_FAO}, 7, v{V_FAO}")
        a.e(f"s_lshl_b32 s{S_T2}, s{S_W}, 10")
        a.e(f"s_add_u32 s{S_FBO}, s{S_T2}, s{S_T1}")
        a.e(f"s_add_u32 s{S_FBO}, s{S_FBO}, {WS_FA + 2*FSTRIDE}")
        a.e(f"s_lshl_b32 s{S_T2}, s{S_W}, 7")
        a.e(f"s_add_u32 s{S_T2}, s{S_T2}, s{S_RB}")
        a.e(f"s_lshl_b32 s{S_T2}, s{S_T2}, 8")
        a.e(f"s_add_u32 s{S_GO}, s{S_T2}, {WS_G}")
        a.e(f"v_and_b32 v{V_PO1}, 15, v{V_LANE}")
        a.e(f"v_lshlrev_b32 v{V_PO1}, 4, v{V_PO1}")

    free = list(range(NSLOT))
    wslot, aslot, wtok, atok, ttok = {}, {}, {}, {}, {}

    def load_items(kind, i):
        s = free.pop(0)
        base = V_POOL + s * 16
        (wslot if kind == "W" else aslot)[i] = s
        so = S_SO0 if kind == "W" else S_SO1

        def one(q):
            if kind == "A":
                if q == 0:
                    if i < 14:
                        a.e(f"s_add_u32 s{so}, s{S_AH}, s{S_RO2 + i % 7}")
                        if i >= 7:
                            a.e(f"s_add_u32 s{so}, s{so}, {28*4096}")
                    else:
                        a.e(f"s_add_u32 s{so}, s{S_AO}, {(i-14)*4096}")
                a.e(f"buffer_load_dwordx4 {vr(base+q*4,4)}, v{V_L16}, {sr(SRD_WS,4)}, {'0' if X3 & 128 else 's%d' % so} offen offset:{q*1024} {P2SC}")
                atok[(i, q)] = vm.issue()
            else:
                if i < 7:
                    sreg, srd = TWO[i], SRD_W2
                else:
                    sreg, srd = so, (SRD_W2 if i < 14 else SRD_WO)
                    if q == 0:
                        if i < 14:
                            a.e(f"s_add_u32 s{so}, s{TWO[i-7]}, {64*896}")
                        else:
                            a.e(f"s_add_u32 s{so}, s{S_WOO}, {(i-14)*28*896}")
                vo = 5 if (i >= 14 and q == 3) else V_WQ + q
                a.e(f"buffer_load_dwordx4 {vr(base+q*4,4)}, v{vo}, {sr(srd,4)}, {'0' if X3 & 256 else 's%d' % sreg} offen")
                wtok[(i, q)] = vm.issue()
        return [lambda q=q: one(q) for q in range(4)]

    def load_blk(kind, i):
        for f in load_items(kind, i):
            f()

    def trans_items(i):
        base = V_POOL + wslot[i] * 16
        out = []

        def wr(q):
            vm.wait(wtok[(i, q)])
            a.e(f"ds_write_b128 v{V_TW}, {vr(base+q*4,4)} offset:{q*1024}")
            lg.issue()

        def rdt(ct):
            if i == 14 and ct == 0:
                for c2 in range(4):
                    a.e(f"v_sub_u32 v{V_TR[c2]}, v{V_TR[c2]}, v{V_TD}")
            a.e(f"ds_read_b64_tr_b16 {vr(base+ct*4,2)}, v{V_TR[ct]}")
            lg.issue()
            a.e(f"ds_read_b64_tr_b16 {vr(base+ct*4+2,2)}, v{V_TR[ct]} offset:{1024 if i < 14 else 2048}")
            ttok[(i, ct)] = lg.issue()
        return [lambda q=q: wr(q) for q in range(4)] + [lambda ct=ct: rdt(ct) for ct in range(4)]

    def setup_all():
        pg.publish()
        p2_setup()
        pg.publish()
        for ct in range(4):
            for rt in range(1, 4):
                for q in range(4):
                    a.e(f"v_mov_b32 v{ACC(ct,rt)+q}, v{ACC(ct,0)+q}")
            pg.publish()
        a.e(f"s_cmp_ge_u32 s{S_NT}, 7")
        a.e(f"s_cselect_b32 s{SRD_W2+2}, 0, s{SRD_W2+2}")

    P2O = bool(P["EXP"] & 4096)
    if P["LPRIO"]:
        a.e(f"s_setprio {P['LPRIO']}")
    pg = Prog(a, vm, lg, V_BF, V_SIG)
    waited = 0
    barrier_done = False
    S_PH, S_TA_, S_TB_ = 96, 36 + 0, 0
    PH = [S_ROT, 96, 97, 98, 99, 100, 101]
    TW = [8, 9, 10, 11, 12, 13, 14]
    TV = [66 + 100] * 7
    V_XQ = V_POOL
    for q in range(4):
        src = V_BO if q & 1 else V_XO
        a.e(f"v_add_u32 v{V_XQ+q}, {q*(8*896-1024)}, v{src}")
    st = dict(since_pub=0, last=0, blast=0, waited=0, barrier_done=False, btok=None, wq_tok=None)
    VB = V_POOL + (NSLOT - 1) * 16

    def run_items(lo, hi, noa):
      since_pub, last, blast, waited, barrier_done, btok, wq_tok = (st[k] for k in ("since_pub", "last", "blast", "waited", "barrier_done", "btok", "wq_tok"))
      for idx in range(lo, hi):
        (kind, i, ops, step) = ITEMS[idx]
        if idx == 1:
            mk_srd(a, SRD_A, S_W1, 0 if X3 & 16 else 448 * 3584)
        if idx == 3:
            mk_srd(a, SRD_WS, S_WS, WS_END + 2048 * 64)
            a.e(f"s_mov_b64 {sr(S_W2K,2)}, {sr(S_W2,2)}")
            a.e(f"s_mov_b64 {sr(S_WOK,2)}, {sr(S_WO,2)}")
            a.e(f"s_mov_b32 s{S_SEEN}, 0")
        if idx == 0:
            stamp2(a, 1)
            if noa:
                init_barrier(a)
        if idx == 3:
            if not noa:
                init_barrier(a)
            barrier_done = True
            stamp2(a, 2)
            for p in range(1, 7):
                a.e(f"s_add_u32 s{PH[p]}, s{PH[p-1]}, 1")
                a.e(f"s_cmp_eq_u32 s{PH[p]}, 7")
                a.e(f"s_cselect_b32 s{PH[p]}, 0, s{PH[p]}")
        if kind == "bias":
            stage_b_setup()
            get_nonce(a, lg, V_FL, None, V_NONCE)
            mk_srd(a, SRD_B, S_B2, 448 * 2)
            a.e(f"v_lshrrev_b32 v4, 4, v{V_LANE}")
            a.e(f"s_lshl_b32 s{S_T0}, s{S_NT}, 7")
            a.e(f"v_lshl_add_u32 v4, v4, 3, s{S_T0}")
            a.e(f"v_mov_b32 v5, 0x40000000")
            a.e(f"s_cmp_eq_u32 s{S_W}, 0")
            a.e(f"s_cselect_b64 vcc, -1, 0")
            a.e(f"v_cndmask_b32 v4, v5, v4, vcc")
            for ct in range(4):
                a.e(f"buffer_load_dwordx2 {vr(VB+2*ct,2)}, v4, {sr(SRD_B,4)}, 0 offen offset:{ct*32}")
                btok = vm.issue()
            continue
        if kind == "tmall":
            SRD_T = SRD_O
            a.e(f"s_lshl_b32 s{S_T0}, s2, 2")
            a.e(f"s_add_u32 s{S_T0}, s{S_T0}, s{S_W}")
            a.e(f"s_sub_u32 s{S_T1}, s{S_T0}, 784")
            a.e(f"s_mov_b32 s{S_T4}, {1792*896}")
            a.e(f"s_mov_b32 s{S_T5}, {448*896}")
            a.e(f"s_cmp_lt_u32 s{S_T0}, 784")
            a.e(f"s_cselect_b32 s{SRD_T}, s{S_W2K}, s{S_WOK}")
            a.e(f"s_cselect_b32 s{SRD_T+1}, s{S_W2K+1}, s{S_WOK+1}")
            a.e(f"s_cselect_b32 s{SRD_T+2}, s{S_T4}, s{S_T5}")
            a.e(f"s_mov_b32 s{SRD_T+3}, 0x00020000")
            a.e(f"s_cselect_b32 s{S_T1}, s{S_T0}, s{S_T1}")
            a.e(f"s_and_b32 s{SRD_T+1}, s{SRD_T+1}, 0xffff")
            a.e(f"s_lshl_b32 s{S_T1}, s{S_T1}, 11")
            a.e(f"v_lshlrev_b32 v{V_POOL+8}, 7, v{V_LANE}")
            a.e(f"v_lshlrev_b32 v{V_POOL+11}, 8, v{V_LANE}")
            a.e("s_mov_b64 exec, 0xffff")
            a.e(f"buffer_load_dword v{V_POOL+9}, v{V_POOL+8}, {sr(SRD_T,4)}, s{S_T1} offen")
            vm.issue()
            mk_srd(a, SRD_T, S_W1, 448 * 3584)
            a.e(f"s_mul_i32 s{S_T0}, s{S_T0}, {7*256}")
            a.e("s_mov_b64 exec, 0x7f")
            a.e(f"buffer_load_dword v{V_POOL+10}, v{V_POOL+11}, {sr(SRD_T,4)}, s{S_T0} offen offset:128")
            vm.issue()
            a.e("s_mov_b64 exec, -1")
            continue
        if kind == "touch":
            SRD_T = SRD_B if idx > 6 else SRD_O
            a.e(f"s_lshl_b32 s{S_T0}, s{S_IDX}, 2")
            a.e(f"s_add_u32 s{S_T0}, s{S_T0}, s{S_W}")
            a.e(f"s_sub_u32 s{S_T1}, s{S_T0}, 98")
            a.e(f"s_mov_b32 s{S_T4}, {1792*896}")
            a.e(f"s_mov_b32 s{S_T5}, {448*896}")
            a.e(f"s_cmp_lt_u32 s{S_T0}, 98")
            a.e(f"s_cselect_b32 s{SRD_T}, s{S_W2K}, s{S_WOK}")
            a.e(f"s_cselect_b32 s{SRD_T+1}, s{S_W2K+1}, s{S_WOK+1}")
            a.e(f"s_cselect_b32 s{SRD_T+2}, s{S_T4}, s{S_T5}")
            a.e(f"s_mov_b32 s{SRD_T+3}, 0x00020000")
            a.e(f"s_cselect_b32 s{S_T0}, s{S_T0}, s{S_T1}")
            a.e(f"s_and_b32 s{SRD_T+1}, s{SRD_T+1}, 0xffff")
            a.e(f"s_lshl_b32 s{S_T0}, s{S_T0}, 14")
            a.e(f"s_add_u32 s{S_T1}, s{S_T0}, 8192")
            a.e(f"v_lshlrev_b32 v{V_POOL+8}, 7, v{V_LANE}")
            a.e(f"buffer_load_dword v{V_POOL+9}, v{V_POOL+8}, {sr(SRD_T,4)}, s{S_T0} offen")
            vm.issue()
            a.e(f"buffer_load_dword v{V_POOL+10}, v{V_POOL+8}, {sr(SRD_T,4)}, s{S_T1} offen")
            vm.issue()
            continue
        if kind == "pw2":
            w2_tok = pg.gate_issue(V_P1, V_PO1, S_FW2O)
            continue
        if kind == "cwq":
            stamp2(a, 6)
            stamp(a, 1)
            if P["EXP"] & 1:
                pg.wait_tok(last)
                pg.publish()
                for q in range(2, 8):
                    stamp(a, q)
                stamp_flush(a, 8)
                a.e("s_endpgm")
            vm.wait(btok)
            for ct in range(4):
                d = ACC(ct, 0)
                a.e(f"v_lshlrev_b32 v{d}, 16, v{VB+2*ct}")
                a.e(f"v_and_b32 v{d+1}, 0xffff0000, v{VB+2*ct}")
                a.e(f"v_lshlrev_b32 v{d+2}, 16, v{VB+2*ct+1}")
                a.e(f"v_and_b32 v{d+3}, 0xffff0000, v{VB+2*ct+1}")
            if not P["SETL"]:
                setup_all()
            continue
        if kind == "W":
            for q, f in enumerate(load_items("W", i)):
                f()
                if q % 2 == 1:
                    pg.publish()
            continue
        if kind == "gwq":
            if not P2O:
                pg.gate_check(wq_tok, V_P0, V_PO0, S_FWQO, V_NONCE)
            stamp(a, 2)
            continue
        if P2O:
            continue
        if idx == 13:
            stamp2(a, 3)
        if idx == 14:
            stamp2(a, 4)
        if idx == 22:
            stamp2(a, 5)
        if kind == "pwq":
            wq_tok = pg.gate_issue(V_P0, V_PO0, S_FWQO)
            continue
        if STAMPS and STMODE == 3 and kind == "B" and i % 2 == 0:
            a.e(f"s_memrealtime {sr(S_ST+2*(1+i//2),2)}")
        if noa and kind in "ab":
            continue
        if step > waited and not (P["EXP"] & (2048 | 16384)):
            pg.wait_prog(V_FL, V_F, step + 1)
            waited = step
            since_pub = 0
        if kind == "x":
            a.e(f"s_add_u32 m0, s{S_LX}, {(i%4)*16384}")
            a.e(f"s_lshl_b32 s{S_SO1}, s{PH[i]}, 7")
            for q in range(4):
                a.e(f"buffer_load_dwordx4 v{V_XQ+q}, {sr(SRD_X,4)}, s{S_SO1} offen offset:{q*1024} lds")
                last = vm.issue()
            a.e(f"s_mul_i32 s{TW[i]}, s{PH[i]}, {64*3584}")
        elif kind in "ab":
            ad = L_WA + i * 4096 if kind == "a" else wb_addr(i)
            a.e(f"s_add_u32 m0, s{S_LW}, {ad}")
            a.e(f"s_add_u32 s{S_SO0}, s{TW[i//2]}, {32*(i%2)*3584 + (128 if kind == 'b' else 0)}")
            a.e(f"buffer_load_dwordx4 v{V_WO}, {sr(SRD_A,4)}, s{S_SO0} offen lds")
            last = vm.issue()
        else:
            if i % 2 == 0:
                a.e(f"s_mul_i32 s{S_SO0}, s{PH[i//2]}, 12288")
                a.e(f"s_mul_i32 s{S_SO1}, s{PH[i//2]}, s{S_BST2}")
                a.e(f"s_add_u32 s{S_SO0}, s{S_SO0}, s{S_BA}")
                a.e(f"s_add_u32 s{S_SO1}, s{S_SO1}, s{S_BB}")
            else:
                a.e(f"s_add_u32 s{S_SO0}, s{S_SO0}, 6144")
                a.e(f"s_add_u32 s{S_SO1}, s{S_SO1}, s{S_BSTEP}")
            if X3 & 32:
                a.e(f"s_mov_b32 s{S_SO0}, {WS_WQR}")
                a.e(f"s_mov_b32 s{S_SO1}, 0")
            a.e(f"s_add_u32 m0, s{S_LA_}, {sb_addr(i)}")
            a.e("s_nop 0")
            a.e(f"buffer_load_dwordx4 v{V_L16}, {sr(SRD_WS,4)}, s{S_SO0} offen sc1 lds")
            vm.issue()
            a.e(f"s_add_u32 m0, s{S_LB_}, {sb_addr(i)}")
            a.e("s_nop 0")
            a.e(f"buffer_load_dwordx4 v{V_HO}, {sr(SRD_L,4)}, s{S_SO1} offen sc1 lds")
            blast = vm.issue()
        assert vm.n == (NOA_CNT if noa else ITEM_CNT)[(kind, i)] or P2O, (kind, i, vm.n)
        since_pub += ops
        if barrier_done and since_pub >= P["PUBN"]:
            pg.publish()
            since_pub = 0
      st.update(since_pub=since_pub, last=last, blast=blast, waited=waited, barrier_done=barrier_done, btok=btok, wq_tok=wq_tok)

    kernarg_wait(a)
    mk_srd(a, SRD_X, S_X, 0 if X3 & 8 else 2048 * 896)
    icwq = [k for k, it in enumerate(ITEMS) if it[0] == "cwq"][0]
    l_lnoa, l_ljoin = a.newlab("Llnoa"), a.newlab("Lljoin")
    a.e(f"s_cmp_ge_u32 s{S_J}, 14")
    a.e(f"s_cbranch_scc1 {l_lnoa}")
    st0 = dict(st); c0 = (vm.n, vm.done, lg.n, lg.done)
    run_items(0, icwq, False)
    a.e(f"s_branch {l_ljoin}")
    st1 = dict(st); c1 = (vm.n, vm.done, lg.n, lg.done)
    a.lab(l_lnoa)
    st.update(st0); vm.n, vm.done, lg.n, lg.done = c0
    run_items(0, icwq, True)
    pg.wait_tok(vm.n)
    st.update(st1); vm.n, vm.done, lg.n, lg.done = c1
    pg.publish()
    st["waited"] = 0
    a.lab(l_ljoin)
    run_items(icwq, len(ITEMS), False)
    blast = st["blast"]
    stamp(a, 3)
    l_noP2 = a.newlab("LnoP2")
    a.e(f"s_cmp_ge_u32 s{S_NT}, 7")
    a.e(f"s_cbranch_scc1 {l_noP2}")
    vm_snap = (vm.n, vm.done)
    if P["SETL"]:
        assert P["NW1"] == 0
        setup_all()
    pgb = pg
    btok_ = {13: blast}

    NWPRE = P["NWPRE"]
    if P["NW1"] >= NWPRE:
        fa1_tok = pg.gate_issue(V_P0, V_FAO, S_FA1)
    for i in range(P["NW1"], NWPRE):
        if i == max(P["NW1"], NWPRE - P["FA1A"]):
            fa1_tok = pg.gate_issue(V_P0, V_FAO, S_FA1)
        for q, f in enumerate(load_items("W", i)):
            f()
            if q % 2 == 1:
                pg.publish()
    stamp(a, 4)
    if not P2O:
        pg.wait_prog(V_FL, V_F, 12)
    for f in trans_items(0):
        f()
    pg.gate_check(fa1_tok, V_P0, V_FAO, S_FA1, V_NONCE, skip=P2O)
    pg.publish()
    stamp(a, 5)

    NB = 18
    nextA, nextW = 0, NWPRE
    ptok = {}
    checked = set()
    g_tok = [None]
    gate = {7: (S_FA2, V_P0, P["FA2P"]), 14: (S_FBO, V_P1, P["FBP"])}

    def async_check(first):
        if first in checked:
            return
        checked.add(first)
        so, vreg, _ = gate[first]
        vm.wait(ptok[first])
        ok, slow = a.newlab("Lfok"), a.newlab("Lfslow")
        a.e(f"v_cmp_ne_u32 vcc, v{vreg}, v{V_NONCE}")
        if not (P["EXP"] & 4096):
            a.e(f"s_cbranch_vccnz {slow}")
        a.lab(ok)
        t = a.tail
        t.append(f"{slow}:")
        t.append(f"  s_mov_b32 s{S_SPIN}, 0")
        t.append(f"{slow}_l:")
        t.append(f"  buffer_load_dword v{vreg}, v{V_FAO}, {sr(SRD_WS,4)}, s{so} offen sc1")
        t.append(f"  s_add_u32 s{S_SPIN}, s{S_SPIN}, 1")
        t.append(f"  s_cmp_gt_u32 s{S_SPIN}, {SPIN_MAX}")
        t.append(f"  s_waitcnt vmcnt(0)")
        t.append(f"  s_cbranch_scc1 {ok}")
        t.append(f"  v_cmp_ne_u32 vcc, v{vreg}, v{V_NONCE}")
        t.append(f"  s_cbranch_vccz {ok}")
        t.append(f"  s_branch {slow}_l")
        if first == 14:
            a.e(f"buffer_load_dwordx4 {vr(V_G,4)}, v{V_PO1}, {sr(SRD_WS,4)}, s{S_GO} offen sc1")
            g_tok[0] = vm.issue()

    def plan_refill(cur):
        nonlocal nextA, nextW
        out = []
        while free:
            a_blocked = nextA in gate and (nextA not in ptok or gate[nextA][2] + P["PLAG"] > cur or (nextA == 14 and P["LATE"]))
            if nextW < NB and (nextW <= nextA + 1 or nextA >= NB or a_blocked):
                out += load_items("W", nextW); nextW += 1
            elif nextA < NB and not a_blocked:
                if nextA in gate:
                    out.append(lambda f=nextA: async_check(f))
                out += load_items("A", nextA); nextA += 1
            else:
                break
        return out

    for f in plan_refill(-1):
        f()
    pend = []
    V_RW, V_RR, V_RO = [V_WQ, V_WQ + 1, V_WQ + 2, V_WQ + 3], 5, V_PO0

    def red_setup():
        a.e(f"v_and_b32 v{V_F}, 15, v{V_LANE}")
        a.e(f"v_lshrrev_b32 v{V_F+1}, 4, v{V_LANE}")
        a.e(f"s_lshl_b32 s{S_T0}, s{S_W}, 12")
        a.e(f"v_lshl_add_u32 v{V_F+1}, v{V_F+1}, 8, s{S_T0}")
        for ct in range(4):
            a.e(f"v_add_u32 v{V_F+2}, {4*ct}, v{V_F}")
            a.e(f"v_and_b32 v{V_F+2}, 15, v{V_F+2}")
            a.e(f"v_lshl_add_u32 v{V_RW[ct]}, v{V_F+2}, 4, v{V_F+1}")
        a.e(f"v_lshrrev_b32 v{V_F}, 2, v{V_LANE}")
        a.e(f"v_and_b32 v{V_F+1}, 3, v{V_LANE}")
        a.e(f"v_lshl_add_u32 v{V_F+2}, v{V_F+1}, 2, v{V_F}")
        a.e(f"v_and_b32 v{V_F+2}, 15, v{V_F+2}")
        a.e(f"v_lshlrev_b32 v{V_F+2}, 4, v{V_F+2}")
        a.e(f"v_lshl_add_u32 v{V_F+2}, v{V_F+1}, 10, v{V_F+2}")
        a.e(f"s_lshl_b32 s{S_T0}, s{S_W}, 14")
        a.e(f"v_add_u32 v{V_RR}, s{S_T0}, v{V_F+2}")
        mk_srd(a, SRD_O, S_OUT, 2048 * 896)
        a.e(f"s_lshl_b32 s{S_T0}, s{S_RB}, 6")
        a.e(f"s_lshl_b32 s{S_T1}, s{S_W}, 4")
        a.e(f"s_add_u32 s{S_T0}, s{S_T0}, s{S_T1}")
        a.e(f"v_add_u32 v{V_F}, s{S_T0}, v{V_F}")
        a.e(f"v_mul_u32_u24 v{V_F}, 896, v{V_F}")
        a.e(f"v_lshl_add_u32 v{V_RO}, v{V_F+1}, 5, v{V_F}")
        a.e(f"s_lshl_b32 s{S_T5}, s{S_NT}, 7")

    LATE = P["LATE"]
    for i in range(NB):
        if i == 14 and LATE:
            for f in pend:
                f()
            pend = []
            while nextW < NB:
                load_blk("W", nextW); nextW += 1
            for b in range(15, 18):
                for f in trans_items(b):
                    f()
            red_setup()
            async_check(14)
            for b in range(14, 18):
                load_blk("A", b)
            nextA = NB
        if i == NB - 2 and not LATE:
            for f in pend:
                f()
            pend = []
            assert nextW == NB
            red_setup()
        if i == 14:
            vm.wait(g_tok[0])
            a.e("s_nop 7")
            for ct in range(4):
                for rt in range(4):
                    for e in range(4):
                        a.e(f"v_mul_f32 v{ACC(ct,rt)+e}, v{ACC(ct,rt)+e}, v{V_G+rt}")
            a.e("s_nop 1")
        while (i, 3) not in atok or (i, 3) not in wtok:
            if not pend:
                pend = plan_refill(99)
            pend.pop(0)()
        wb, ab = V_POOL + wslot[i] * 16, V_POOL + aslot[i] * 16
        while i + 1 < NB and (i + 1, 3) not in wtok:
            if not pend:
                pend = plan_refill(99)
            pend.pop(0)()
        tr = trans_items(i + 1) if (i + 1 < NB and not (LATE and i >= 14)) else []
        if i == NB - 1:
            a.e(f"ds_read_b128 {vr(V_F,4)}, v{V_FL}")
            done_tok = lg.issue()
        k = 0
        for ct in range(4):
            for rt in range(4):
                vm.wait(atok[(i, rt)])
                lg.wait(ttok[(i, ct)])
                if not (P["EXP"] & 8192):
                    mfma(a, ACC(ct, rt), wb + ct * 4, ab + rt * 4, ACC(ct, rt))
                k += 1
                if k % 2 == 0 and pend:
                    pend.pop(0)()
                if k >= P["TRK"] and tr:
                    tr.pop(0)()
        for f in pend + tr:
            f()
        free.append(wslot[i]); free.append(aslot[i])
        for first, (so, vreg, pb) in gate.items():
            if i == pb:
                a.e(f"buffer_load_dword v{vreg}, v{V_FAO}, {sr(SRD_WS,4)}, s{so} offen sc1")
                ptok[first] = vm.issue()
        pend = plan_refill(i)

    a.c("---- reduction ----")
    for _ in range(P["DLY"]):
        a.e("s_sleep 64")
    stamp(a, 6)
    lds_wait_min4(a, lg, V_FL, V_F, 0, 18, done_tok)
    a.e("s_nop 2")
    for rt in range(4):
        for ct in range(4):
            a.e(f"ds_write_b128 v{V_RW[ct]}, {vr(ACC(ct,rt),4)} offset:{L_RED + rt*16384 + ct*1024}")
    a.e("s_waitcnt lgkmcnt(0)")
    a.e("s_barrier")
    RD = V_POOL
    for g in range(4):
        for src in range(4):
            a.e(f"ds_read_b128 {vr(RD+(g*4+src)*4,4)}, v{V_RR} offset:{L_RED + src*4096 + g*256}")
    OUTR = V_ACC
    for g in range(4):
        a.e(f"s_waitcnt lgkmcnt({12-4*g})")
        b = RD + g * 16
        for e in range(4):
            a.e(f"v_add_f32 v{b+e}, v{b+e}, v{b+4+e}")
            a.e(f"v_add_f32 v{b+8+e}, v{b+8+e}, v{b+12+e}")
        for e in range(4):
            a.e(f"v_add_f32 v{b+e}, v{b+e}, v{b+8+e}")
        a.e(f"v_cvt_pk_bf16_f32 v{OUTR+2*g}, v{b}, v{b+1}")
        a.e(f"v_cvt_pk_bf16_f32 v{OUTR+2*g+1}, v{b+2}, v{b+3}")
        if g % 2 == 1:
            a.e(f"buffer_store_dwordx4 {vr(OUTR+2*g-2,4)}, v{V_RO}, {sr(SRD_O,4)}, s{S_T5} offen offset:{(g//2)*16} {OUTSC}")
    if STAMPS:
        a.e("s_waitcnt vmcnt(0)")
    stamp(a, 7)
    stamp_flush(a, 8)
    a.e("s_endpgm")

    a.lab(l_noP2)
    vm.n, vm.done = vm_snap
    pgb.wait_tok(btok_[13])
    pgb.publish()
    l_e = a.newlab("Lnoep")
    if P["EXP"]:
        a.e("s_endpgm")
    a.e(f"s_cmp_lg_u32 s2, 255")
    a.e(f"s_cbranch_scc1 {l_e}")
    a.e(f"s_cmp_lg_u32 s{S_W}, 0")
    a.e(f"s_cbranch_scc1 {l_e}")
    a.e(f"v_lshrrev_b32 v1, 2, v{V_LANE}")
    a.e(f"v_and_b32 v2, 3, v{V_LANE}")
    a.e(f"v_lshlrev_b32 v1, 13, v1")
    a.e(f"v_lshl_add_u32 v1, v2, 10, v1")
    for q in range(1, 4):
        a.e(f"v_add_u32 v{1+q}, {q*256}, v1")
    a.e(f"s_mov_b32 s{S_T0}, {WS_FA + 2*FSTRIDE}")
    vm2 = Cnt(a, "vmcnt", 63)
    flag_poll(a, vm2, [(5 + q, 1 + q, S_T0) for q in range(4)], V_NONCE, sleep=8)
    a.e(f"s_mov_b32 s{S_T0}, {WS_EPOCH}")
    flag_store(a, vm2, V_NONCE, V_ZERO, S_T0)
    a.lab(l_e)
    a.e("s_endpgm")


def generate(P):
    global ITEMS, ITEM_CNT, NOA_CNT
    ITEMS, ITEM_CNT, NOA_CNT = loader_items(P)
    a = Asm()
    K = NAME + "_kernel"
    hdr = [
        "; fused gated-mix kernel: generated by gen/gen.py (hand-written generator)",
        f"; @launch grid=(256,1,1) block=(512,1,1) lds={L_END}",
        '.amdgcn_target "amdgcn-amd-amdhsa--gfx950"',
        ".text",
        f".globl {K}",
        ".p2align 8",
        f".type {K},@function",
        f"{K}:",
    ]
    a.e("s_cmp_ge_u32 s2, 256")
    a.e("s_cbranch_scc1 L_exit")
    a.e("s_load_dwordx16 s[8:23], s[0:1], 0")
    a.e("s_load_dwordx8 s[24:31], s[0:1], 64")
    stamp(a, 0)
    a.e("v_lshrrev_b32 v1, 6, v0")
    a.e("v_and_b32 v0, 63, v0")
    a.e(f"v_readfirstlane_b32 s{S_WAVE}, v1")
    a.e(f"s_and_b32 s{S_XCD}, s2, 7")
    a.e(f"s_lshr_b32 s{S_IDX}, s2, 3")
    MB = P["MAPB"]
    a.e(f"s_and_b32 s{S_M}, s{S_XCD}, {(1<<MB)-1}")
    a.e(f"s_lshl_b32 s{S_M}, s{S_M}, {4-MB}")
    a.e(f"s_and_b32 s{S_T0}, s{S_IDX}, {(1<<(4-MB))-1}")
    a.e(f"s_add_u32 s{S_M}, s{S_M}, s{S_T0}")
    a.e(f"s_lshr_b32 s{S_J}, s{S_IDX}, {4-MB}")
    a.e(f"s_lshl_b32 s{S_J}, s{S_J}, {3-MB}")
    a.e(f"s_lshr_b32 s{S_T0}, s{S_XCD}, {MB}")
    if P["JFLIP"]:
        a.e(f"s_xor_b32 s{S_T0}, s{S_T0}, {(1<<(3-MB))-1}")
    a.e(f"s_add_u32 s{S_J}, s{S_J}, s{S_T0}")
    a.e(f"s_and_b32 s{S_W}, s{S_WAVE}, 3")
    if P["CPF"]:
        a.e("s_getpc_b64 s[4:5]")
        a.lab("L_pc")
        a.e(f"s_lshr_b32 s6, s2, 3")
        a.e(f"s_lshl_b32 s6, s6, 3")
        a.e(f"s_add_u32 s6, s6, s{S_WAVE}")
        a.e(f"s_lshl_b32 s6, s6, 8")
        a.e(f"s_min_u32 s6, s6, L_exit-L_pc-256")
        a.e("s_load_dword s7, s[4:5], s6")
        a.e("s_add_u32 s6, s6, 128")
        a.e("s_load_dword s3, s[4:5], s6")
    for _ in range(P["DLY0"]):
        a.e("s_sleep 64")
    a.e(f"s_cmp_ge_u32 s{S_WAVE}, 4")
    a.e("s_cbranch_scc1 L_p2")
    gen_p1(a, P)
    gen_p1_stage_b(a, P)
    a.lab("L_p2")
    gen_p2(a, P)
    a.lines += a.tail
    a.lab("L_exit")
    a.e("s_endpgm")
    ftr = [
        '.section .rodata,"a"',
        ".p2align 6",
        f".amdhsa_kernel {K}",
        "  .amdhsa_next_free_vgpr 256",
        "  .amdhsa_next_free_sgpr 102",
        "  .amdhsa_accum_offset 256",
        "  .amdhsa_group_segment_fixed_size 0",
        "  .amdhsa_kernarg_size 96",
        "  .amdhsa_user_sgpr_count 2",
        "  .amdhsa_user_sgpr_kernarg_segment_ptr 1",
        "  .amdhsa_system_sgpr_workgroup_id_x 1",
        "  .amdhsa_float_denorm_mode_32 3",
        ".end_amdhsa_kernel",
    ]
    return "\n".join(hdr + a.lines + ftr) + "\n"


DEFAULT = dict(_X=0, PRIOB=0, PRIOBN=0, SETL=1, NW1=0, DLY=0, DLY0=0, LATE=0, CPF=0, TM=6, XA=2, JFLIP=1, TCH=-1, TRK=6, LPRIO=0, PUBN=2, WQPA=5, W2PA=4, FA1A=2, RQP=5, W2L=5, W2P=29, ROT=1, ROT2=1, MAPB=1, BGN=3, TFN=4, SWIN=1, RPP=12, FA2P=1, PLAG=1, X2=0, FQ=0xB4, RPA=3, RPF=21, BLAG=5, PRIO=0, RPK=2, P0=4, LD=3, LDB=0, EXP=0, PD=5, PDT=1, LA=5, SIG=12, CHK=3, LAB=6, BTHR=13, NWPRE=4, FBP=9)

if __name__ == "__main__":
    P = dict(DEFAULT)
    out = f"cdna_kernels/{NAME}.s"
    for arg in sys.argv[1:]:
        if "=" in arg:
            k, v = arg.split("=")
            if k == "out":
                out = v
            elif k == "NOPUB":
                NOPUB = int(v)
            elif k == "STMODE":
                STMODE = int(v)
            elif k == "X3":
                X3 = int(v)
            elif k == "P2SC":
                P2SC = v.replace("_", " ")
            elif k == "DBGWG":
                DBGWG = int(v)
            elif k == "OUTSC":
                OUTSC = v.replace("_", " ")
            elif k == "SLEEP":
                SLEEP = int(v)
            elif k == "STAMPS":
                STAMPS = int(v)
            else:
                P[k] = int(v)
    for u in range(504):
        assert (u * 911) >> 16 == u // 72
    for u in range(256):
        assert (u * 4682) >> 16 == u // 14
    for u in range(504):
        assert (u * 9363) >> 16 == u // 7
    open(out, "w").write(generate(P))
    print("wrote", out)
```

```python
import sys

NAME = "gated_mix__sliding_local_dilated__dense_activation_squared_relu__prompt"

WS_A2 = 0
WS_W2R = 0x900000
WS_WQR = WS_W2R + 7 * 72 * 4096
WS_G = WS_WQR + 16 * 14 * 6144
WS_FA = WS_G + 16 * 32 * 256
FSTRIDE = 32 * 16 * 2 * 128
WS_FWQ = WS_FA + 3 * FSTRIDE
WS_FW2 = WS_FWQ + 16 * 128
WS_EPOCH = WS_FW2 + 28 * 128
WS_END = WS_EPOCH + 128

L_X = 0
L_WA = 65536
L_WB = 122880
L_RP = 147456
L_XB = 49152
L_TS = 145408
L_FL = 161792
L_BIAS = L_FL + 512
L_END = L_BIAS + 512
L_RED = 0


def wb_addr(ks):
    if ks < 6:
        return L_WB + ks * 4096
    if ks < 10:
        return 3 * 16384 + (ks - 6) * 4096
    return (ks - 10) * 4096


def sb_addr(ks):
    if ks < 8:
        return L_WA + ks * 7168
    if ks < 12:
        return 16384 + (ks - 8) * 7168
    return L_WB + (ks - 12) * 7168


XQ = [0, 1, 2, 3, 4, 5, 6]


def sb_free_step(ks):
    if ks < 8:
        kmax = (7168 * (ks + 1) + 4095) // 4096 - 1
        return kmax // 2 + 2
    if ks < 12:
        return XQ[5] + 1 if 7168 * (ks - 7) <= 16384 else XQ[6] + 1
    kmax = (7168 * (ks - 11) + 4095) // 4096 - 1
    return 8 + kmax // 2 + 1


def loader_items(P):
    it = [("bias", 0, 4, 0)]
    for p in range(7):
        XQ[p] = max(min(p, 1), p - P["XA"])
    for q in range(7):
        for p in range(7):
            if XQ[p] == q:
                it.append(("x", p, 4, 0 if p < 4 else XQ[p - 4] + 1))
        it.append(("a", 2 * q, 1, 0))
        it.append(("a", 2 * q + 1, 1, 0))
    for ks in range(14):
        if ks == 14 - P["WQPA"]:
            it.append(("pwq", 0, 1, 0))
        it.append(("b", ks, 1, 0 if ks < 6 else (XQ[3] + 1 if ks < 10 else XQ[4] + 1)))
    it.append(("cwq", 0, 0, 0))
    for i in range(P["NW1"]):
        it.append(("W", i, 4, 0))
    it.append(("gwq", 0, 0, 0))
    for ks in range(14):
        if P["W2M"] and ks == 14 - P["W2PA"]:
            it.append(("pw2", 0, 1, 0))
        it.append(("B", ks, 2, sb_free_step(ks)))
    b = it.pop(0)
    it.insert(6, b)
    if P["TCH"] >= 0:
        it.insert(P["TCH"], ("touch", 0, 2, 0))
    if P["TL2"] >= 0:
        it.insert(P["TL2"], ("tl2", 0, 2, 0))
    if P["TM"] >= 0:
        it.insert(P["TM"], ("tmall", 0, 2, 0))
    cnt = {}
    n = 0
    for (k, i, ops, st) in it:
        n += ops
        cnt[(k, i)] = n
    ncnt = {}
    n = 0
    for (k, i, ops, st) in it:
        if k not in ("a", "b"):
            n += ops
        ncnt[(k, i)] = n
    return it, cnt, ncnt


SPIN_MAX = 1 << 15


class Asm:
    def __init__(self):
        self.lines = []
        self.nlab = 0
        self.tail = []

    def e(self, s):
        self.lines.append("  " + s)

    def c(self, s):
        self.lines.append("  ; " + s)

    def lab(self, l):
        self.lines.append(l + ":")

    def newlab(self, p="L"):
        self.nlab += 1
        return f"{p}_{self.nlab}"


class Cnt:
    def __init__(self, a, name, mx):
        self.a, self.name, self.mx = a, name, mx
        self.n = 0
        self.done = 0

    def issue(self):
        self.n += 1
        return self.n

    def wait(self, tok):
        if tok is None or tok <= self.done:
            return
        k = min(self.n - tok, self.mx)
        self.a.e(f"s_waitcnt {self.name}({k})")
        self.done = self.n - k

    def drain(self):
        self.a.e(f"s_waitcnt {self.name}(0)")
        self.done = self.n

    def mark_drained(self):
        self.done = self.n


def vr(b, n=1):
    return f"v{b}" if n == 1 else f"v[{b}:{b+n-1}]"


def sr(b, n=1):
    return f"s{b}" if n == 1 else f"s[{b}:{b+n-1}]"


S_X, S_WQKV, S_WO, S_BX, S_W1, S_B1, S_W2, S_B2 = 8, 10, 12, 14, 16, 18, 20, 22
S_GATE, S_OUT, S_DBG, S_WS = 24, 26, 28, 30
SRD_WS, SRD_X, SRD_A, SRD_B, SRD_O = 32, 36, 40, 44, 48
S_WAVE, S_XCD, S_IDX, S_M, S_J, S_RB, S_NT = 52, 53, 54, 55, 56, 57, 58
S_T0, S_T1, S_T2, S_T3, S_T4, S_T5 = 60, 61, 62, 63, 64, 65
S_SPIN = 66
S_NONCE = 67
S_W = 68
S_SO0, S_SO1 = 70, 71
S_BASEA, S_BASEW = 72, 73
S_RPF = 69
S_SEEN = 25
S_RO2 = 8
S_ROT, S_PP, S_PB = 59, 62, 63
S_FLA, S_FDONE = 6, 7
S_PG0, S_PG1, S_PG2, S_PG3 = 3, 4, 5, 7


def mk_srd(a, d, p, nbytes):
    a.e(f"s_mov_b32 s{d}, s{p}")
    a.e(f"s_and_b32 s{d+1}, s{p+1}, 0xffff")
    a.e(f"s_mov_b32 s{d+2}, {nbytes}")
    a.e(f"s_mov_b32 s{d+3}, 0x00020000")


def lds_wait_min4(a, lg, vaddr, vtmp, off, need, pre_tok=None):
    if pre_tok is None:
        a.e(f"ds_read_b128 {vr(vtmp,4)}, {vr(vaddr)} offset:{off}")
        pre_tok = lg.issue()
    lg.wait(pre_tok)
    ok = a.newlab("Lok")
    spin = a.newlab("Lspin")
    a.e(f"v_min3_u32 {vr(vtmp)}, {vr(vtmp)}, {vr(vtmp+1)}, {vr(vtmp+2)}")
    a.e(f"v_min_u32 {vr(vtmp)}, {vr(vtmp)}, {vr(vtmp+3)}")
    a.e(f"v_cmp_gt_u32 vcc, {need}, {vr(vtmp)}")
    a.e(f"s_cbranch_vccnz {spin}")
    a.lab(ok)
    t = a.tail
    t.append(f"{spin}:")
    t.append(f"  s_mov_b32 s{S_SPIN}, 0")
    t.append(f"{spin}_l:")
    t.append(f"  ds_read_b128 {vr(vtmp,4)}, {vr(vaddr)} offset:{off}")
    t.append(f"  s_add_u32 s{S_SPIN}, s{S_SPIN}, 1")
    t.append(f"  s_cmp_gt_u32 s{S_SPIN}, {SPIN_MAX*8}")
    t.append(f"  s_waitcnt lgkmcnt(0)")
    t.append(f"  s_cbranch_scc1 {ok}")
    t.append(f"  v_min3_u32 {vr(vtmp)}, {vr(vtmp)}, {vr(vtmp+1)}, {vr(vtmp+2)}")
    t.append(f"  v_min_u32 {vr(vtmp)}, {vr(vtmp)}, {vr(vtmp+3)}")
    t.append(f"  v_cmp_gt_u32 vcc, {need}, {vr(vtmp)}")
    t.append(f"  s_cbranch_vccnz {spin}_l")
    t.append(f"  s_branch {ok}")


def lds_wait_word(a, lg, vaddr, vtmp, off, need, pre_tok=None):
    if pre_tok is None:
        a.e(f"ds_read_b32 {vr(vtmp)}, {vr(vaddr)} offset:{off}")
        pre_tok = lg.issue()
    lg.wait(pre_tok)
    ok = a.newlab("Lok")
    spin = a.newlab("Lspin")
    a.e(f"v_cmp_gt_u32 vcc, {need}, {vr(vtmp)}")
    a.e(f"s_cbranch_vccnz {spin}")
    a.lab(ok)
    t = a.tail
    t.append(f"{spin}:")
    t.append(f"  s_mov_b32 s{S_SPIN}, 0")
    t.append(f"{spin}_l:")
    t.append(f"  ds_read_b32 {vr(vtmp)}, {vr(vaddr)} offset:{off}")
    t.append(f"  s_add_u32 s{S_SPIN}, s{S_SPIN}, 1")
    t.append(f"  s_cmp_gt_u32 s{S_SPIN}, {SPIN_MAX*8}")
    t.append(f"  s_waitcnt lgkmcnt(0)")
    t.append(f"  s_cbranch_scc1 {ok}")
    t.append(f"  v_cmp_gt_u32 vcc, {need}, {vr(vtmp)}")
    t.append(f"  s_cbranch_vccnz {spin}_l")
    t.append(f"  s_branch {ok}")


def lds_signal(a, lg, vaddr, vtmp, val):
    a.e(f"v_mov_b32 {vr(vtmp)}, {val}")
    a.e(f"ds_write_b32 {vr(vaddr)}, {vr(vtmp)}")
    lg.issue()


def mk_sig_addr(a, vdst, vlane, sword):
    a.e(f"v_lshlrev_b32 v{vdst}, 2, v{vlane}")
    a.e(f"v_add_u32 v{vdst}, {L_FL+256}, v{vdst}")
    a.e(f"v_writelane_b32 v{vdst}, s{sword}, 0")


class Prog:
    def __init__(self, a, vm, lg, vaddr, vtmp, base=0):
        self.a, self.vm, self.lg, self.vaddr, self.vtmp, self.base = a, vm, lg, vaddr, vtmp, base
        self.extra = []

    def note_extra(self, pos_before):
        cnt = self.vm.n - pos_before
        if cnt:
            self.extra.append((pos_before, cnt))

    def lines(self, young=0):
        o = []
        o.append(f"s_getreg_b32 s{S_PG0}, hwreg(HW_REG_IB_STS)")
        o.append(f"s_bfe_u32 s{S_PG1}, s{S_PG0}, 0x20016")
        o.append(f"s_and_b32 s{S_PG0}, s{S_PG0}, 15")
        o.append(f"s_lshl4_add_u32 s{S_PG3}, s{S_PG1}, s{S_PG0}")
        o.append(f"s_sub_u32 s{S_PG0}, {self.vm.n + young}, s{S_PG3}")
        if young:
            o.append(f"s_min_u32 s{S_PG0}, s{S_PG0}, {self.vm.n}")
        o.append(f"v_mov_b32 {vr(self.vtmp)}, s{S_PG0}")
        o.append(f"ds_write_b32 {vr(self.vaddr)}, {vr(self.vtmp)}")
        return o

    def publish(self):
        if NOPUB:
            return
        for l in self.lines():
            self.a.e(l)
        self.lg.issue()

    def wait_prog(self, vfl, vtmp4, need):
        a = self.a
        top, done, first = a.newlab("Lwp"), a.newlab("Lwpd"), a.newlab("Lwpf")
        a.e(f"s_cmp_lt_u32 s{S_SEEN}, {need}")
        a.e(f"s_cbranch_scc1 {first}")
        a.lab(done)
        t = a.tail
        t.append(f"{first}:")
        t.append(f"  s_mov_b32 s{S_SPIN}, 0")
        t.append(f"  s_branch {first}_e")
        t.append(f"{top}:")
        if SLEEP:
            t.append(f"  s_sleep {SLEEP}")
        t.append(f"{first}_e:")
        t.append(f"  ds_read_b128 {vr(vtmp4,4)}, {vr(vfl)}")
        for l in self.lines():
            t.append("  " + l)
        t.append(f"  s_add_u32 s{S_SPIN}, s{S_SPIN}, 1")
        t.append(f"  s_cmp_gt_u32 s{S_SPIN}, {SPIN_MAX*8}")
        t.append("  s_waitcnt lgkmcnt(1)")
        t.append(f"  s_cbranch_scc1 {done}")
        t.append(f"  v_min3_u32 {vr(vtmp4)}, {vr(vtmp4)}, {vr(vtmp4+1)}, {vr(vtmp4+2)}")
        t.append(f"  v_min_u32 {vr(vtmp4)}, {vr(vtmp4)}, {vr(vtmp4+3)}")
        t.append("  s_nop 0")
        t.append(f"  v_readfirstlane_b32 s{S_SEEN}, {vr(vtmp4)}")
        t.append("  s_nop 0")
        t.append(f"  s_cmp_lt_u32 s{S_SEEN}, {need}")
        t.append(f"  s_cbranch_scc1 {top}")
        t.append(f"  s_branch {done}")

    def wait_tok(self, tok):
        if tok <= self.vm.done:
            return
        a = self.a
        top, done = a.newlab("Lwt"), a.newlab("Lwtd")
        a.e(f"s_branch {done}")
        a.lab(top)
        if SLEEP:
            a.e(f"s_sleep {SLEEP}")
        a.lab(done)
        for l in self.lines():
            a.e(l)
        a.e(f"s_cmp_gt_u32 s{S_PG3}, {self.vm.n - tok}")
        a.e(f"s_cbranch_scc1 {top}")
        self.lg.issue()
        self.vm.wait(tok)

    def gate_issue(self, vreg, voff, soff):
        pos = self.vm.n
        self.a.e(f"buffer_load_dword v{vreg}, v{voff}, {sr(SRD_WS,4)}, s{soff} offen sc1")
        tok = self.vm.issue()
        return tok

    def gate_check(self, tok, vreg, voff, soff, vnonce, publish=True, skip=False):
        a = self.a
        if publish:
            self.wait_tok(tok)
        else:
            self.vm.wait(tok)
        ok, slow = a.newlab("Lgok"), a.newlab("Lgslow")
        a.e(f"v_cmp_ne_u32 vcc, v{vreg}, v{vnonce}")
        if not skip:
            a.e(f"s_cbranch_vccnz {slow}")
        a.lab(ok)
        t = a.tail
        t.append(f"{slow}:")
        t.append(f"  s_mov_b32 s{S_SPIN}, 0")
        t.append(f"{slow}_l:")
        t.append(f"  buffer_load_dword v{vreg}, v{voff}, {sr(SRD_WS,4)}, s{soff} offen sc1")
        if publish:
            t.append(f"{slow}_w:")
            for l in self.lines(young=1):
                t.append("  " + l)
            t.append(f"  s_cmp_lg_u32 s{S_PG3}, 0")
            t.append(f"  s_cbranch_scc1 {slow}_w")
        t.append(f"  s_add_u32 s{S_SPIN}, s{S_SPIN}, 1")
        t.append(f"  s_cmp_gt_u32 s{S_SPIN}, {SPIN_MAX}")
        t.append(f"  s_waitcnt vmcnt(0)")
        t.append(f"  s_cbranch_scc1 {ok}")
        t.append(f"  v_cmp_ne_u32 vcc, v{vreg}, v{vnonce}")
        t.append(f"  s_cbranch_vccz {ok}")
        t.append(f"  s_sleep 1")
        t.append(f"  s_branch {slow}_l")


def get_nonce(a, lg, vzero_fl, vtmp, vdst):
    a.e(f"v_mov_b32 v{vdst}, s{S_NONCE}")


def kernarg_wait(a):
    a.e("s_waitcnt lgkmcnt(0)")
    a.e(f"s_mov_b32 s{S_T5}, {WS_EPOCH}")
    a.e(f"s_load_dword s{S_NONCE}, {sr(S_WS,2)}, s{S_T5}")


def init_barrier(a):
    a.e("s_waitcnt lgkmcnt(0)")
    a.e(f"s_add_u32 s{S_NONCE}, s{S_NONCE}, 1")
    a.e("s_barrier")


def flag_store(a, vm, vnonce, vzero, soff):
    a.e("s_mov_b64 exec, 1")
    a.e(f"buffer_store_dword {vr(vnonce)}, {vr(vzero)}, {sr(SRD_WS,4)}, s{soff} offen sc1")
    vm.issue()
    a.e("s_mov_b64 exec, -1")


def flag_poll(a, vm, polls, vnonce, sleep=1):
    top = a.newlab("Lpoll")
    done = a.newlab("Lpdone")
    a.e(f"s_mov_b32 s{S_SPIN}, 0")
    a.lab(top)
    for (vd, vo, so) in polls:
        a.e(f"buffer_load_dword {vr(vd)}, {vr(vo)}, {sr(SRD_WS,4)}, s{so} offen sc1")
        vm.issue()
    a.e(f"s_add_u32 s{S_SPIN}, s{S_SPIN}, 1")
    a.e(f"s_waitcnt vmcnt(0)")
    vm.mark_drained()
    vd0 = polls[0][0]
    a.e(f"v_xor_b32 {vr(vd0)}, {vr(vd0)}, {vr(vnonce)}")
    for (vd, vo, so) in polls[1:]:
        a.e(f"v_xor_b32 {vr(vd)}, {vr(vd)}, {vr(vnonce)}")
        a.e(f"v_or_b32 {vr(vd0)}, {vr(vd0)}, {vr(vd)}")
    a.e(f"v_cmp_ne_u32 vcc, 0, {vr(vd0)}")
    a.e(f"s_cbranch_vccz {done}")
    a.e(f"s_cmp_gt_u32 s{S_SPIN}, {SPIN_MAX}")
    a.e(f"s_cbranch_scc1 {done}")
    if sleep:
        a.e(f"s_sleep {sleep}")
    a.e(f"s_branch {top}")
    a.lab(done)


STAMPS = False
SLEEP = 1
OUTSC = 'nt'
P2SC = 'sc1'
X3 = 0
NOPUB = 0
S_ST = 80


STMODE = 0
NSWAP_A = 56
P2CTX = [False]


def stamp2(a, i):
    if STAMPS and STMODE == 1:
        a.e(f"s_memrealtime {sr(S_ST+2*i,2)}")


def stamp(a, i):
    if STMODE == 1 and 0 < i < 7:
        return
    if STMODE == 2 and 0 < i and not P2CTX[0]:
        return
    if STMODE == 3 and 0 < i and P2CTX[0]:
        return
    if STAMPS:
        a.e(f"{'s_memtime' if STAMPS == 2 else 's_memrealtime'} {sr(S_ST+2*i,2)}")


DBGWG = -1


def stamp_flush(a, n):
    if not STAMPS:
        return
    a.e("s_waitcnt lgkmcnt(0)")
    if DBGWG >= 0:
        sk = a.newlab("Lsf")
        a.e(f"s_cmp_lg_u32 s2, {DBGWG}")
        a.e(f"s_cbranch_scc1 {sk}")
        a.e(f"s_cmp_lg_u32 s{S_W}, 0")
        a.e(f"s_cbranch_scc1 {sk}")
        a.e(f"s_load_dwordx2 s[60:61], s[0:1], 80")
        a.e(f"s_lshl_b32 s62, s{S_WAVE}, 3")
        a.e("s_waitcnt lgkmcnt(0)")
        a.e("s_mov_b64 exec, 1")
        a.e("v_mov_b32 v1, s62")
        for i in range(n):
            a.e(f"v_mov_b32 v2, s{S_ST+2*i}")
            a.e(f"global_store_dword v1, v2, s[60:61] offset:{4*i}")
            a.e("s_nop 1")
        a.e("s_mov_b64 exec, -1")
        a.lab(sk)
        return
    a.e(f"s_lshl_b32 s{S_T0}, s2, 3")
    a.e(f"s_add_u32 s{S_T0}, s{S_T0}, s{S_WAVE}")
    a.e(f"s_lshl_b32 s{S_T0}, s{S_T0}, 6")
    a.e(f"s_add_u32 s{S_T0}, s{S_T0}, {WS_END}")
    a.e("s_mov_b64 exec, 1")
    a.e("v_mov_b32 v1, 0")
    for i in range(n):
        a.e(f"v_mov_b32 v2, s{S_ST+2*i}")
        a.e(f"buffer_store_dword v2, v1, {sr(SRD_WS,4)}, s{S_T0} offen offset:{4*i}")
        a.e("s_nop 1")
    a.e("s_mov_b64 exec, -1")


def mfma(a, d, A, B, C):
    c = "0" if C is None else vr(C, 4)
    a.e(f"v_mfma_f32_16x16x32_bf16 {vr(d,4)}, {vr(A,4)}, {vr(B,4)}, {c}")


SRD_R = SRD_A
SRD_RS = SRD_O
S_RST, S_RST2 = 74, 75
RW2 = 240
RQL, RQT, RQG = 64, 120, 240
RV8, RV9 = 6, 7
S_FIDX = 76
V_LANE, V_L16, V_ZERO = 0, 14, 15


def rp_srd_store(a):
    a.e(f"s_mov_b32 s{SRD_RS}, s{SRD_WS}")
    a.e(f"s_mov_b32 s{SRD_RS+1}, s{SRD_WS+1}")
    a.e(f"s_cselect_b32 s{SRD_RS+2}, s{SRD_WS+2}, 0")
    if X3 & 1:
        a.e(f"s_mov_b32 s{SRD_RS+2}, 0")
    a.e(f"s_mov_b32 s{SRD_RS+3}, 0x00020000")

def w2_loads(a, vm):
    a.e(f"s_lshl_b32 s{S_T0}, s2, 1")
    a.e(f"s_add_u32 s{S_T0}, s{S_T0}, s{S_W}")
    a.e(f"s_sub_u32 s{S_T0}, s{S_T0}, 1")
    a.e(f"s_cmp_lt_u32 s{S_T0}, 504")
    rp_srd_store(a)
    a.e(f"s_min_u32 s{S_T0}, s{S_T0}, 503")
    a.e(f"s_mul_i32 s{S_T1}, s{S_T0}, 911")
    a.e(f"s_lshr_b32 s{S_T1}, s{S_T1}, 16")
    a.e(f"s_mul_i32 s{S_T2}, s{S_T1}, 72")
    a.e(f"s_sub_u32 s{S_T2}, s{S_T0}, s{S_T2}")
    a.e(f"s_cmp_lt_u32 s{S_T2}, 56")
    a.e(f"s_cselect_b32 s{SRD_R}, s{S_W2}, s{S_WO}")
    a.e(f"s_cselect_b32 s{SRD_R+1}, s{S_W2+1}, s{S_WO+1}")
    a.e(f"s_mov_b32 s{S_T3}, {1792*896}")
    a.e(f"s_mov_b32 s{S_T4}, {448*896}")
    a.e(f"s_cselect_b32 s{SRD_R+2}, s{S_T3}, s{S_T4}")
    a.e(f"s_mov_b32 s{SRD_R+3}, 0x00020000")
    if X3 & 2:
        a.e(f"s_mov_b32 s{SRD_R+2}, 0")
    a.e(f"s_cselect_b64 vcc, 0, -1")
    a.e(f"s_cmp_ge_u32 s{S_T2}, 28")
    a.e(f"s_cselect_b32 s{S_T4}, 28, 0")
    a.e(f"s_cselect_b32 s{S_T5}, 64, 0")
    a.e(f"s_sub_u32 s{S_T4}, s{S_T2}, s{S_T4}")
    a.e(f"s_lshr_b32 s{S_T3}, s{S_T4}, 1")
    a.e(f"s_lshl_b32 s{S_T3}, s{S_T3}, 7")
    a.e(f"s_add_u32 s{S_T3}, s{S_T3}, s{S_T5}")
    a.e(f"s_and_b32 s{S_T4}, s{S_T4}, 1")
    a.e(f"s_lshl_b32 s{S_T4}, s{S_T4}, 5")
    a.e(f"s_add_u32 s{S_T3}, s{S_T3}, s{S_T4}")
    a.e(f"s_sub_u32 s{S_T4}, s{S_T2}, 56")
    a.e(f"s_mul_i32 s{S_T4}, s{S_T4}, 28")
    a.e(f"s_cmp_lt_u32 s{S_T2}, 56")
    a.e(f"s_cselect_b32 s{S_T3}, s{S_T3}, s{S_T4}")
    a.e(f"s_and_b32 s{SRD_R+1}, s{SRD_R+1}, 0xffff")
    a.e(f"s_mul_i32 s{S_T3}, s{S_T3}, 896")
    a.e(f"s_lshl_b32 s{S_T4}, s{S_T1}, 7")
    a.e(f"s_add_u32 s{S_T3}, s{S_T3}, s{S_T4}")
    a.e(f"v_and_b32 v4, 1, v1")
    a.e(f"v_lshrrev_b32 v5, 1, v1")
    a.e(f"v_lshlrev_b32 v4, 2, v4")
    a.e(f"v_lshl_add_u32 v4, v5, 4, v4")
    a.e(f"v_lshlrev_b32 v5, 2, v1")
    a.e(f"v_cndmask_b32 v{RV8}, v4, v5, vcc")
    a.e(f"v_mov_b32 v4, 1024")
    a.e(f"v_mov_b32 v5, 2048")
    a.e(f"v_cndmask_b32 v{RV9}, v4, v5, vcc")
    a.e(f"v_lshrrev_b32 v4, 3, v{V_LANE}")
    a.e(f"v_mul_u32_u24 v4, 896, v4")
    a.e(f"v_and_b32 v5, 7, v{V_LANE}")
    a.e(f"v_lshl_add_u32 v4, v5, 4, v4")
    a.e(f"s_mov_b32 vcc_lo, 0")
    a.e(f"v_mov_b32 v5, 0x40000000")
    a.e("s_nop 1")
    a.e(f"v_cndmask_b32 v5, v4, v5, vcc")
    a.e(f"s_lshl_b32 s{S_T4}, s{S_W}, 12")
    a.e(f"s_add_u32 m0, s{S_T4}, {L_RP + 6144 - 4096}")
    a.e("s_nop 0")
    for i in range(4):
        vo = 5 if i == 3 else 4
        a.e(f"buffer_load_dwordx4 v{vo}, {sr(SRD_R,4)}, s{S_T3} offen offset:{i*1024} lds")
        vm.issue()
        if i < 3:
            a.e(f"s_add_u32 s{S_T3}, s{S_T3}, {8*896-1024}")
    a.e(f"v_add_u32 v{RV8}, v{RV8}, v2")
    a.e(f"v_lshlrev_b32 v{RV8}, 7, v{RV8}")
    a.e(f"v_lshl_add_u32 v{RV8}, v3, 3, v{RV8}")
    a.e(f"v_add_u32 v{RV8}, m0, v{RV8}")
    a.e(f"v_add_u32 v{RV9}, v{RV8}, v{RV9}")
    a.e(f"s_mul_i32 s{S_T3}, s{S_T2}, 9363")
    a.e(f"s_lshr_b32 s{S_T3}, s{S_T3}, 16")
    a.e(f"s_mul_i32 s{S_T4}, s{S_T3}, 7")
    a.e(f"s_sub_u32 s{S_T4}, s{S_T2}, s{S_T4}")
    a.e(f"s_lshr_b32 s{S_T5}, s{S_T3}, 2")
    a.e(f"s_mul_i32 s{S_T5}, s{S_T5}, 7")
    a.e(f"s_add_u32 s{S_T4}, s{S_T4}, s{S_T5}")
    a.e(f"s_and_b32 s{S_T3}, s{S_T3}, 3")
    a.e(f"s_sub_u32 s{S_T5}, s{S_T2}, 56")
    a.e(f"s_lshr_b32 s{S_SO0}, s{S_T5}, 2")
    a.e(f"s_and_b32 s{S_T5}, s{S_T5}, 3")
    a.e(f"s_add_u32 s{S_T5}, s{S_T5}, 14")
    a.e(f"s_cmp_lt_u32 s{S_T2}, 56")
    a.e(f"s_cselect_b32 s{S_T3}, s{S_T3}, s{S_SO0}")
    a.e(f"s_cselect_b32 s{S_T4}, s{S_T4}, s{S_T5}")
    a.e(f"s_lshl_b32 s{S_T1}, s{S_T1}, 2")
    a.e(f"s_add_u32 s{S_T1}, s{S_T1}, s{S_T3}")
    a.e(f"s_lshl_b32 s{S_T1}, s{S_T1}, 7")
    a.e(f"s_lshl_b32 s{S_T4}, s{S_T4}, 2")
    a.e(f"s_add_u32 s{S_T1}, s{S_T1}, s{S_T4}")
    a.e(f"s_add_u32 s{S_RPF}, s{S_T1}, {WS_FW2}")
    a.e(f"s_lshl_b32 s{S_RST}, s{S_T0}, 12")
    a.e(f"s_add_u32 s{S_RST}, s{S_RST}, {WS_W2R}")

def w2_proc(a, vm, lg):
    toks = []
    for ct in range(4):
        a.e(f"ds_read_b64_tr_b16 {vr(RW2+ct*4,2)}, v{RV8} offset:{ct*32}")
        lg.issue()
        a.e(f"ds_read_b64_tr_b16 {vr(RW2+ct*4+2,2)}, v{RV9} offset:{ct*32}")
        toks.append(lg.issue())
    for ct in range(4):
        lg.wait(toks[ct])
        a.e(f"buffer_store_dwordx4 {vr(RW2+ct*4,4)}, v{V_L16}, {sr(SRD_RS,4)}, s{S_RST} offen offset:{ct*1024} sc1")
        t = vm.issue()
    return t

def wq_loads(a, vm):
    a.e(f"s_cmp_lt_u32 s2, 224")
    rp_srd_store(a)
    mk_srd(a, SRD_R, S_WQKV, 0 if X3 & 2 else 448 * 2688)
    a.e(f"s_min_u32 s{S_T5}, s2, 223")
    a.e(f"s_mul_i32 s{S_T0}, s{S_T5}, 4682")
    a.e(f"s_lshr_b32 s{S_T0}, s{S_T0}, 16")
    a.e(f"s_mul_i32 s{S_T1}, s{S_T0}, 14")
    a.e(f"s_sub_u32 s{S_T1}, s{S_T5}, s{S_T1}")
    a.e(f"v_lshrrev_b32 v4, 2, v{V_LANE}")
    a.e(f"v_mul_u32_u24 v5, 2688, v4")
    a.e(f"v_lshl_add_u32 v5, v3, 4, v5")
    a.e(f"s_mul_i32 s{S_T2}, s{S_T1}, {32*2688}")
    a.e(f"s_mul_i32 s{S_T3}, s{S_T0}, 56")
    a.e(f"s_add_u32 s{S_T2}, s{S_T2}, s{S_T3}")
    a.e(f"s_add_u32 s{S_T3}, s{S_T2}, {16*2688}")
    for i in range(6):
        seg, hf = i >> 1, i & 1
        so = S_T3 if hf else S_T2
        a.e(f"buffer_load_dwordx4 {vr(RQL+i*4,4)}, v5, {sr(SRD_R,4)}, s{so} offen offset:{seg*896}")
        vm.issue()
    a.e(f"s_lshl_b32 s{S_T4}, s{S_T1}, 6")
    a.e(f"v_lshl_add_u32 v5, v4, 1, s{S_T4}")
    a.e(f"global_load_ushort v{RQG}, v5, {sr(S_GATE,2)}")
    vm.issue()
    a.e(f"global_load_ushort v{RQG+1}, v5, {sr(S_GATE,2)} offset:32")
    vm.issue()
    a.e(f"v_mul_u32_u24 v{RV8}, 192, v4")
    a.e(f"v_lshl_add_u32 v{RV8}, v3, 4, v{RV8}")
    a.e(f"v_add_u32 v{RV8}, {L_RP}, v{RV8}")
    a.e(f"v_and_b32 v4, 1, v1")
    a.e(f"v_lshrrev_b32 v5, 1, v1")
    a.e(f"v_lshl_add_u32 v4, v4, 1, v5")
    a.e(f"v_lshl_add_u32 v{RV9}, v4, 3, v2")
    a.e(f"v_mul_u32_u24 v{RV9}, 192, v{RV9}")
    a.e(f"v_lshl_add_u32 v{RV9}, v3, 3, v{RV9}")
    a.e(f"v_add_u32 v{RV9}, {L_RP}, v{RV9}")
    a.e(f"s_lshl_b32 s{S_T0}, s{S_T0}, 7")
    a.e(f"s_lshl_b32 s{S_T1}, s{S_T1}, 2")
    a.e(f"s_add_u32 s{S_T0}, s{S_T0}, s{S_T1}")
    a.e(f"s_add_u32 s{S_RPF}, s{S_T0}, {WS_FWQ}")
    a.e(f"s_mul_i32 s{S_RST}, s{S_T5}, 6144")
    a.e(f"s_add_u32 s{S_RST}, s{S_RST}, {WS_WQR}")
    a.e(f"s_add_u32 s{S_RST2}, s{S_RST}, 4096")

def wq_proc(a, vm, lg):
    a.e(f"v_cmp_eq_u32 vcc, 3, v3")
    a.e("s_nop 1")
    for i in range(6):
        seg, hf = i >> 1, i & 1
        if seg == 0:
            a.e(f"v_cndmask_b32 v{RQL+i*4+2}, v{RQL+i*4+2}, v{RQG+hf}, vcc")
        else:
            a.e(f"v_cndmask_b32 v{RQL+i*4+2}, v{RQL+i*4+2}, v{V_ZERO}, vcc")
        a.e(f"v_cndmask_b32 v{RQL+i*4+3}, v{RQL+i*4+3}, v{V_ZERO}, vcc")
        a.e(f"ds_write_b128 v{RV8}, {vr(RQL+i*4,4)} offset:{hf*3072+seg*64}")
        lg.issue()
    Q = RQT
    toks = []
    for c6 in range(6):
        for hh in range(2):
            a.e(f"ds_read_b64_tr_b16 {vr(Q+c6*4+hh*2,2)}, v{RV9} offset:{hh*768+c6*32}")
            tk = lg.issue()
        toks.append(tk)
    for c6 in range(6):
        so = S_RST if c6 < 4 else S_RST2
        lg.wait(toks[c6])
        a.e(f"buffer_store_dwordx4 {vr(Q+c6*4,4)}, v{V_L16}, {sr(SRD_RS,4)}, s{so} offen offset:{(c6%4)*1024} sc1")
        t = vm.issue()
    return t


def gen_p1(a, P):
    vm = Cnt(a, "vmcnt", 63)
    lg = Cnt(a, "lgkmcnt", 15)
    V_LANE = 0
    V_T = 1
    V_XR = 8
    V_FL = 12
    V_PROG = 13
    V_L16 = 14
    V_ZERO = 15
    V_TA = 16
    V_SO = 22
    V_BA = 23
    V_F = 24
    V_NONCE = 28
    V_SIG = 29
    V_PA, V_QA = 30, 31
    V_X = 32
    V_ACC = 144
    V_WR = 208
    V_E = 240
    NR = 8

    def X(c, ks):
        return V_X + (c * 14 + ks) * 4

    def ACC(t):
        return V_ACC + t * 16

    a.c("==== P1 program ====")
    kernarg_wait(a)
    if P["EXP"] & 4096:
        a.e(f"v_lshlrev_b32 v4, 2, v0")
        a.e(f"v_add_u32 v4, {L_FL}, v4")
        a.e(f"v_mov_b32 v5, 100")
        a.e(f"ds_write_b32 v4, v5")
        a.e("s_waitcnt lgkmcnt(0)")
        a.e("s_barrier")
        a.e("s_endpgm")
    stamp2(a, 1)
    if P["EXP"] & 2048:
        a.e("s_barrier")
        a.e("s_endpgm")
    if P["PRIO"]:
        a.e(f"s_setprio {P['PRIO']}")
    a.e(f"v_mov_b32 v{V_ZERO}, 0")
    a.e(f"v_mov_b32 v{V_FL}, {L_FL}")
    mk_srd(a, SRD_WS, S_WS, WS_END + 2048 * 64)
    a.e(f"v_lshlrev_b32 v{V_L16}, 4, v{V_LANE}")
    l_nr = a.newlab("Lnorp")
    mk_srd(a, SRD_RS, S_WS, 0)
    a.e(f"s_mov_b32 s{S_RPF}, 0")
    a.e(f"s_mov_b32 s{S_RST}, 0")
    a.e(f"s_mov_b32 s{S_RST2}, 0")
    a.e(f"v_mov_b32 v{RQG+2}, 0")
    a.e(f"v_mov_b32 v{RQG+3}, 0")
    a.e(f"s_cmp_lg_u32 s{S_W}, 0")
    a.e(f"s_cbranch_scc1 {l_nr}")
    a.e(f"v_lshrrev_b32 v1, 4, v{V_LANE}")
    a.e(f"v_bfe_u32 v2, v{V_LANE}, 2, 2")
    a.e(f"v_and_b32 v3, 3, v{V_LANE}")
    wq_loads(a, vm)
    a.e(f"v_mov_b32 v{RQG+2}, v{RV8}")
    a.e(f"v_mov_b32 v{RQG+3}, v{RV9}")
    a.lab(l_nr)
    l_n3 = a.newlab("Lnot3")
    l_bj = a.newlab("Lbj")
    a.e(f"s_cmp_lg_u32 s{S_W}, 3")
    a.e(f"s_cbranch_scc1 {l_n3}")
    mk_srd(a, SRD_B, S_B1, 1792 * 2)
    a.e(f"v_lshlrev_b32 v4, 2, v{V_LANE}")
    a.e(f"s_lshl_b32 s{S_T3}, s{S_J}, 8")
    a.e(f"buffer_load_dword v5, v4, {sr(SRD_B,4)}, s{S_T3} offen")
    a.e(f"v_add_u32 v6, {L_FL}, v4")
    a.e(f"ds_write_b32 v6, v{V_ZERO}")
    init_barrier(a)
    a.e(f"v_lshlrev_b32 v6, 3, v{V_LANE}")
    a.e(f"v_add_u32 v6, {L_BIAS}, v6")
    a.e("s_waitcnt vmcnt(0)")
    a.e(f"v_lshlrev_b32 v2, 16, v5")
    a.e(f"v_and_b32 v3, 0xffff0000, v5")
    a.e(f"ds_write_b64 v6, v[2:3]")
    a.e(f"v_mov_b32 v2, 1")
    a.e("s_waitcnt lgkmcnt(0)")
    a.e("s_mov_b64 exec, 1")
    a.e(f"ds_write_b32 v{V_FL}, v2 offset:36")
    a.e("s_mov_b64 exec, -1")
    a.e(f"s_branch {l_bj}")
    a.lab(l_n3)
    init_barrier(a)
    a.lab(l_bj)
    stamp2(a, 2)
    a.e(f"s_lshl_b32 s{S_T3}, s{S_W}, 2")
    a.e(f"s_add_u32 s{S_T3}, s{S_T3}, {L_FL}")
    mk_sig_addr(a, V_PROG, V_LANE, S_T3)
    a.e(f"v_and_b32 v1, 31, v{V_LANE}")
    a.e(f"v_lshrrev_b32 v2, 5, v{V_LANE}")
    a.e(f"v_bfe_u32 v3, v{V_LANE}, 1, 3")
    a.e(f"v_xor_b32 v3, v3, v2")
    a.e(f"v_lshlrev_b32 v3, 4, v3")
    a.e(f"v_lshl_add_u32 v3, v1, 7, v3")
    a.e(f"s_lshl_b32 s{S_T3}, s{S_W}, 12")
    a.e(f"v_add_u32 v{V_XR}, s{S_T3}, v3")
    for c in range(1, 4):
        a.e(f"v_xor_b32 v{V_XR+c}, {32*c}, v{V_XR}")
    a.e(f"v_lshlrev_b32 v{V_BA}, 4, v2")
    a.e(f"v_add_u32 v{V_BA}, {L_BIAS}, v{V_BA}")
    a.e(f"v_and_b32 v3, 15, v{V_LANE}")
    a.e(f"v_bfe_u32 v4, v{V_LANE}, 4, 1")
    a.e(f"v_lshlrev_b32 v3, 4, v3")
    a.e(f"v_lshl_add_u32 v3, v4, 10, v3")
    a.e(f"v_lshl_add_u32 v{V_SO}, v2, 8, v3")
    a.e(f"v_bfe_u32 v3, v{V_LANE}, 2, 2")
    a.e(f"v_lshl_add_u32 v5, v2, 3, v3")
    a.e(f"v_lshlrev_b32 v5, 7, v5")
    a.e(f"v_lshl_add_u32 v5, v4, 5, v5")
    a.e(f"v_and_b32 v6, 3, v{V_LANE}")
    a.e(f"v_lshl_add_u32 v5, v6, 3, v5")
    a.e(f"v_lshrrev_b32 v6, 1, v3")
    a.e(f"v_lshl_add_u32 v{V_TA}, v6, 6, v5")
    a.e(f"v_xor_b32 v{V_TA+1}, 64, v{V_TA}")
    for wi, wbase in ((1, L_WA), (2, L_WB)):
        for t in range(2):
            a.e(f"v_add_u32 v{V_TA+2*wi+t}, {wbase}, v{V_TA+t}")
    a.e(f"v_and_b32 v1, 15, v{V_LANE}")
    a.e(f"v_lshl_add_u32 v2, v4, 1, v2")
    a.e(f"v_lshrrev_b32 v3, 2, v1")
    a.e(f"v_lshlrev_b32 v4, 1, v3")
    a.e(f"v_mov_b32 v5, {P['FQ']}")
    a.e(f"v_lshrrev_b32 v4, v4, v5")
    a.e(f"v_and_b32 v4, 3, v4")
    a.e(f"v_xor_b32 v4, v4, v2")
    a.e(f"v_lshl_add_u32 v4, v1, 2, v4")
    a.e(f"v_lshlrev_b32 v4, 4, v4")
    a.e(f"v_add_u32 v4, 6144, v4")
    a.e(f"s_lshl_b32 s{S_T3}, s{S_W}, 10")
    a.e(f"s_add_u32 s{S_T3}, s{S_T3}, 2048")
    a.e(f"v_add_u32 v5, s{S_T3}, v{V_L16}")
    a.e(f"s_cmp_lt_u32 s{S_W}, 2")
    a.e(f"s_cselect_b64 vcc, -1, 0")
    a.e(f"v_cndmask_b32 v{V_PA}, v4, v5, vcc")
    a.e(f"v_cndmask_b32 v{V_QA}, v5, v4, vcc")
    a.e(f"s_lshr_b32 s{S_T3}, s{S_W}, 1")
    a.e(f"s_lshl_b32 s{S_RB}, s{S_M}, 1")
    a.e(f"s_add_u32 s{S_RB}, s{S_RB}, s{S_T3}")
    a.e(f"s_lshl_b32 s{S_T3}, s{S_RB}, 4")
    a.e(f"s_add_u32 s{S_T3}, s{S_T3}, s{S_J}")
    a.e(f"s_lshl_b32 s{S_T3}, s{S_T3}, 1")
    a.e(f"s_and_b32 s{S_T4}, s{S_W}, 1")
    a.e(f"s_add_u32 s{S_T3}, s{S_T3}, s{S_T4}")
    a.e(f"s_lshl_b32 s{S_T5}, s{S_T3}, 7")
    a.e(f"s_mov_b32 s{S_FIDX}, s{S_T5}")

    def w2_guard(sk):
        a.e(f"s_sub_u32 s{S_T0}, s{S_W}, 1")
        a.e(f"s_cmp_ge_u32 s{S_T0}, 2")
        a.e(f"s_cbranch_scc1 {sk}")

    def blk_w2_loads():
        sk = a.newlab("Lsk")
        w2_guard(sk)
        a.e(f"v_lshrrev_b32 v1, 4, v{V_LANE}")
        a.e(f"v_bfe_u32 v2, v{V_LANE}, 2, 2")
        a.e(f"v_and_b32 v3, 3, v{V_LANE}")
        w2_loads(a, vm)
        a.lab(sk)

    def blk_w2_proc():
        sk = a.newlab("Lsk")
        w2_guard(sk)
        a.e("s_waitcnt vmcnt(0)")
        w2_proc(a, vm, Cnt(a, "lgkmcnt", 15))
        a.e(f"s_mov_b32 s{S_FDONE}, 0")
        a.lab(sk)

    def blk_wq_proc():
        sk = a.newlab("Lsk")
        a.e(f"s_cmp_lg_u32 s{S_W}, 0")
        a.e(f"s_cbranch_scc1 {sk}")
        a.e(f"v_mov_b32 v{RV8}, v{RQG+2}")
        a.e(f"v_mov_b32 v{RV9}, v{RQG+3}")
        a.e(f"v_and_b32 v3, 3, v{V_LANE}")
        a.e("s_waitcnt vmcnt(0)")
        wq_proc(a, vm, Cnt(a, "lgkmcnt", 15))
        a.e(f"s_mov_b32 s{S_FDONE}, 0")
        a.lab(sk)

    a.e(f"s_cmp_ge_u32 s{S_J}, 14")
    a.e(f"s_cbranch_scc1 L_p1_noa")

    xr_tok = {}

    def x_read1(p, cp):
        ks, c = 2 * p + (cp >> 1), cp & 1
        a.e(f"ds_read_b128 {vr(X(c,ks),4)}, v{V_XR+cp} offset:{(p%4)*16384}")
        xr_tok[(c, ks)] = lg.issue()

    def x_swap(ks, i):
        a.e(f"v_permlane16_swap_b32 v{X(0,ks)+i}, v{X(1,ks)+i}")

    a.e(f"s_mul_i32 s{S_T3}, s{S_RB}, 72")
    a.e(f"s_lshl_b32 s{S_T4}, s{S_J}, 1")
    a.e(f"s_add_u32 s{S_T3}, s{S_T3}, s{S_T4}")
    a.e(f"s_lshl_b32 s{S_T3}, s{S_T3}, 12")
    a.e(f"s_and_b32 s{S_T4}, s{S_W}, 1")
    a.e(f"s_lshl_b32 s{S_T4}, s{S_T4}, 11")
    a.e(f"s_add_u32 s{S_BASEA}, s{S_T3}, s{S_T4}")
    a.e(f"s_add_u32 s{S_FLA}, s{S_FIDX}, {WS_FA}")
    lds_wait_word(a, lg, V_FL, V_F, 36, 1)
    for t in range(4):
        for q in range(4):
            a.e(f"ds_read_b128 {vr(ACC(t)+4*q,4)}, v{V_BA} offset:{t*128+q*32}")
            btk = lg.issue()
    lg.wait(btk)
    stamp2(a, 5)

    LA = P["LA"]
    NF = 112
    rtok = {}
    fixed = {}
    bg = []

    def at(n, f):
        fixed.setdefault(max(n, -1), []).append(f)

    def need_of(ps, p):
        if ps == 0:
            return ITEM_CNT[("a", 2 * p + 1)]
        return ITEM_CNT[("b", 2 * p + 1)]

    def sched_check(n0, need):
        st = {}
        ok, spin = a.newlab("Lok"), a.newlab("Lspin")

        def f0():
            a.e(f"ds_read_b128 {vr(V_F,4)}, v{V_FL} offset:16")
            st["tok"] = lg.issue()

        def f1():
            lg.wait(st["tok"])
            a.e(f"v_min3_u32 v{V_F}, v{V_F}, v{V_F+1}, v{V_F+2}")

        def f2():
            a.e(f"v_min_u32 v{V_F}, v{V_F}, v{V_F+3}")

        def f3():
            a.e(f"v_cmp_gt_u32 vcc, {need}, v{V_F}")

        def f4():
            a.e(f"s_cbranch_vccnz {spin}")
            a.lab(ok)
            t = a.tail
            t.append(f"{spin}:")
            t.append(f"  s_mov_b32 s{S_SPIN}, 0")
            t.append(f"{spin}_l:")
            if X3 & 4:
                t.append("  s_sleep 2")
            t.append(f"  ds_read_b128 {vr(V_F,4)}, v{V_FL} offset:16")
            t.append(f"  s_add_u32 s{S_SPIN}, s{S_SPIN}, 1")
            t.append(f"  s_cmp_gt_u32 s{S_SPIN}, {SPIN_MAX*8}")
            t.append(f"  s_waitcnt lgkmcnt(0)")
            t.append(f"  s_cbranch_scc1 {ok}")
            t.append(f"  v_min3_u32 v{V_F}, v{V_F}, v{V_F+1}, v{V_F+2}")
            t.append(f"  v_min_u32 v{V_F}, v{V_F}, v{V_F+3}")
            t.append(f"  v_cmp_gt_u32 vcc, {need}, v{V_F}")
            t.append(f"  s_cbranch_vccnz {spin}_l")
            t.append(f"  s_branch {ok}")
        at(n0 - 3 - P["CHK"], f0)
        at(n0 - 3, f1); at(n0 - 2, f2); at(n0 - 1, f3); at(n0, f4)

    def rd(n):
        ps, ks, c, t = n // 56, (n % 56) // 4, (n % 4) // 2, n % 2
        ad = (L_WA + ks * 4096) if ps == 0 else wb_addr(ks)
        wi, base = (1, L_WA) if ps == 0 else ((2, L_WB) if ks < 6 else (0, 0))
        off = ad - base + c * 2048
        d = V_WR + (n % NR) * 4
        a.e(f"ds_read_b64_tr_b16 {vr(d,2)}, v{V_TA+2*wi+t} offset:{off}")
        lg.issue()
        a.e(f"ds_read_b64_tr_b16 {vr(d+2,2)}, v{V_TA+2*wi+t} offset:{off+512}")
        rtok[n] = lg.issue()

    def epi_items(t):
        items = []
        blk = (t & 1) + 28 * (t >> 1)
        for u in range(2):
            e = V_E + ((2 * t + u) % 2) * 4
            for h in range(2):
                sreg = ACC(t) + 8 * u + 4 * h
                tm = V_E + 8 + 4 * h
                for i in range(4):
                    items.append(lambda i=i, sreg=sreg, tm=tm: a.e(f"v_max_f32 v{tm+i}, 0, v{sreg+i}"))
                for i in range(4):
                    items.append(lambda i=i, tm=tm: a.e(f"v_mul_f32 v{tm+i}, v{tm+i}, v{tm+i}"))
                items.append(lambda e=e, h=h, tm=tm: a.e(f"v_cvt_pk_bf16_f32 v{e+2*h}, v{tm}, v{tm+1}"))
                items.append(lambda e=e, h=h, tm=tm: a.e(f"v_cvt_pk_bf16_f32 v{e+2*h+1}, v{tm+2}, v{tm+3}"))

            def st(e=e, u=u):
                a.e(f"s_add_u32 s{S_T3}, s{S_BASEA}, {blk*4096 + (0x40000000 if X3 & 64 else 0)}")
                a.e(f"buffer_store_dwordx4 {vr(e,4)}, v{V_SO}, {sr(SRD_WS,4)}, s{S_T3} offen offset:{u*512} sc1")
                vm.issue()
            items.append(st)
        return items

    def try_flag(srd=SRD_WS, so=S_FLA):
        sk = a.newlab("Ltf")
        a.e(f"s_getreg_b32 s{S_PG0}, hwreg(HW_REG_IB_STS)")
        a.e(f"s_and_b32 s{S_PG0}, s{S_PG0}, 0x00c0000f")
        a.e(f"s_or_b32 s{S_PG0}, s{S_PG0}, s{S_FDONE}")
        a.e(f"s_cbranch_scc1 {sk}")
        a.e("s_mov_b64 exec, 1")
        a.e(f"buffer_store_dword v{V_NONCE}, v{V_ZERO}, {sr(srd,4)}, s{so} offen sc1")
        a.e("s_mov_b64 exec, -1")
        a.e(f"s_mov_b32 s{S_FDONE}, 1")
        a.lab(sk)

    def force_flag(srd, so):
        sk = a.newlab("Lff")
        a.e(f"s_cmp_lg_u32 s{S_FDONE}, 0")
        a.e(f"s_cbranch_scc1 {sk}")
        a.e("s_waitcnt vmcnt(0)")
        a.e("s_mov_b64 exec, 1")
        a.e(f"buffer_store_dword v{V_NONCE}, v{V_ZERO}, {sr(srd,4)}, s{so} offen sc1")
        a.e("s_mov_b64 exec, -1")
        a.lab(sk)
        a.e(f"s_mov_b32 s{S_FDONE}, 0")

    a.e(f"s_mov_b32 s{S_FDONE}, 1")
    for ps in range(2):
        for p in range(7):
            n0 = ps * 56 + p * 8 - LA
            if ps == 0:
                sched_check(n0 - 2, need_of(ps, p))
                k = 0
                for xp in range(7):
                    if XQ[xp] == p:
                        for cp in range(4):
                            at(n0 - 2 + k // 2, lambda xp=xp, cp=cp: x_read1(xp, cp))
                            k += 1
            else:
                sched_check(n0, need_of(ps, p))

            def sig(ps=ps, p=p):
                if ps == 0:
                    xs = [xp for xp in range(7) if XQ[xp] <= p]
                    lg.wait(xr_tok[(1, 2 * max(xs) + 1)])
                lds_signal(a, lg, V_PROG, V_SIG, ps * 7 + p + 2)
            at(ps * 56 + p * 8 + 1, sig)
    get_nonce(a, lg, V_FL, None, V_NONCE)
    assert (P["RQP"] + LA + 3) % 8 != 0, "vcc live"
    assert P["RQP"] < 8 * XQ[4] - LA - 2, "repack registers overlap x pair 4"
    if P["RQP"] < 0:
        blk_wq_proc()
    else:
        at(P["RQP"], blk_wq_proc)
    if P["W2M"]:
        for nn in (P["W2L"], P["W2P"]):
            assert (nn + LA + 3) % 8 != 0, "vcc live"
        at(P["W2L"], blk_w2_loads)
        at(P["W2P"], blk_w2_proc)
    for n in range(max(P["RQP"], 0) + 4, 56, P["TFN"]):
        at(n, lambda: try_flag(SRD_RS, S_RPF))
    at(57, lambda: force_flag(SRD_RS, S_RPF))
    at(58, lambda: bg.extend(epi_items(0) + epi_items(1)))
    for f in fixed.pop(-1, []):
        f()
    for n in range(LA):
        rd(n)
    stamp(a, 1)
    stamp2(a, 6)
    nswap = [0]
    for n in range(NF):
        ps, ks, c, t = n // 56, (n % 56) // 4, (n % 4) // 2, n % 2
        nfix = 0
        for f in fixed.pop(n, []):
            f()
            nfix += 1
        if n + LA < NF:
            rd(n + LA)
        if (P["EXP"] & 256) and n % 16 == 0 and n > 0:
            stamp(a, 1 + n // 16)
        if STAMPS and STMODE == 2 and n % 16 == 0:
            a.e(f"s_memrealtime {sr(S_ST+2*(1+n//16),2)}")
        lg.wait(rtok[n])
        lg.wait(xr_tok[(c, ks)])
        w = V_WR + (n % NR) * 4
        acc = ACC(2 * ps + t)
        a.e(f"v_mfma_f32_32x32x16_bf16 {vr(acc,16)}, {vr(w,4)}, {vr(X(c,ks),4)}, {vr(acc,16)}")
        budget = P["BGN"] - nfix
        had_bg = bool(bg)
        while bg and budget > 0:
            bg.pop(0)()
            budget -= 1
        if ps == 1 and not bg and not had_bg and n > 60:
            if n % P["TFN"] == 0:
                try_flag()
            elif budget > 0 and nswap[0] < min(4 * ks, NSWAP_A) and P["SWIN"]:
                x_swap(nswap[0] // 4, nswap[0] % 4)
                nswap[0] += 1
    assert not fixed and not bg, (fixed.keys(), len(bg))
    lds_signal(a, lg, V_PROG, V_SIG, 16)
    if P["EXP"] & 256:
        stamp_flush(a, 8)
        a.e("s_endpgm")
    stamp(a, 2)
    force_flag(SRD_WS, S_FLA)
    a.e("s_nop 7")
    for f in epi_items(2) + epi_items(3):
        f()
    while nswap[0] < NSWAP_A:
        x_swap(nswap[0] // 4, nswap[0] % 4)
        nswap[0] += 1
    assert nswap[0] == NSWAP_A, nswap
    a.e(f"s_add_u32 s{S_FLA}, s{S_FLA}, {FSTRIDE}")
    stamp(a, 3)
    a.e("s_branch L_p1_b")
    a.lab("L_p1_noa")
    if P["EXP"] & 1024:
        a.e("s_endpgm")
    lg = Cnt(a, "lgkmcnt", 15)
    get_nonce(a, lg, V_FL, None, V_NONCE)

    def x_pair(p):
        lds_wait_min4(a, lg, V_FL, V_F, 16, NOA_CNT[("x", p)])
        for cp in range(4):
            x_read1(p, cp)
        lg.drain()
        qs = [q for q in range(7) if all(xp <= p for xp in range(7) if XQ[xp] <= q)]
        lds_signal(a, lg, V_PROG, V_SIG, max(qs) + 2)
        for ks in (2 * p, 2 * p + 1):
            for i in range(4):
                if 4 * ks + i < NSWAP_A:
                    x_swap(ks, i)

    a.e(f"s_mov_b32 s{S_FDONE}, 1")
    if P["W2M"]:
        blk_w2_loads()
    blk_wq_proc()
    if P["W2M"]:
        blk_w2_proc()
    for p in range(7):
        if p == 2:
            force_flag(SRD_RS, S_RPF)
        x_pair(p)
    lds_signal(a, lg, V_PROG, V_SIG, 16)
    get_nonce(a, lg, V_FL, None, V_NONCE)
    a.e(f"s_mov_b32 s{S_FDONE}, 1")
    a.e(f"s_mov_b32 s{S_FLA}, 0")
    if P["EXP"] & 256:
        a.e("s_endpgm")
    stamp(a, 1); stamp(a, 2); stamp(a, 3)
    a.lab("L_p1_b")


def gen_p1_stage_b(a, P):
    vm = Cnt(a, "vmcnt", 63)
    lg = Cnt(a, "lgkmcnt", 15)
    V_LANE = 0
    V_T = 1
    V_FL = 12
    V_PROG = 13
    V_L16 = 14
    V_ZERO = 15
    V_SBA = 16
    V_F = 24
    V_NONCE = 28
    V_SIG = 29
    V_PA, V_QA = 30, 31
    V_X = 32
    V_ACC = 144
    V_HALO = 192
    V_WR = 196
    V_M = 236
    NR = 10

    def X(T, ks):
        return V_X + (T * 14 + ks) * 4

    def ACC(T, c):
        return V_ACC + (T * 6 + c) * 4

    a.c("==== P1 stage B ====")
    if P["EXP"] & 1:
        for i in range(4, 8):
            stamp(a, i)
        stamp_flush(a, 8)
        a.e("s_endpgm")
    a.e("s_waitcnt lgkmcnt(0)")
    bases = {0: 0, 1: L_WA, 2: L_WB}

    def reg_off(ks):
        ad = sb_addr(ks)
        k = 1 if ks < 8 else (0 if ks < 12 else 2)
        return k, ad - bases[k]
    for k, bv in bases.items():
        a.e(f"v_add_u32 v{V_SBA+k}, {bv}, v{V_L16}")
        a.e(f"v_add_u32 v{V_SBA+3+k}, {bv}, v{V_PA}")
        a.e(f"v_add_u32 v{V_M+17+k}, {bv}, v{V_QA}")
    VQ = V_M + 17
    V_MC = V_M
    V_MP = V_M + 4
    V_MP0 = V_M + 8
    V_NEG = V_M + 12
    S_MK = 60
    bg = []

    def mask_bits(f):
        m = 0
        for l in range(64):
            if f(l & 15, l >> 4):
                m |= 1 << l
        return m
    bg.append(lambda: a.e(f"v_mov_b32 v{V_NEG}, 0xf149f2ca"))
    for e in range(4):
        for (dst, f) in ((V_MC + e, lambda q, g, e=e: (q - 4 * g - e) >= 0 and (q - 4 * g - e) % 2 == 0),
                         (V_MP + e, lambda q, g, e=e: (4 * g + e - q) >= 2 and (4 * g + e - q) % 2 == 0)):
            mb = mask_bits(f)

            def mk(dst=dst, mb=mb):
                a.e(f"s_mov_b32 s{S_MK}, 0x{mb & 0xffffffff:08x}")
                a.e(f"s_mov_b32 s{S_MK+1}, 0x{mb >> 32:08x}")
                a.e(f"v_cndmask_b32 v{dst}, v{V_NEG}, 0, {sr(S_MK,2)}")
            bg.append(mk)

    def mk0():
        a.e(f"s_or_b32 s{S_T3}, s{S_M}, s{S_W}")
        a.e(f"s_cselect_b64 {sr(S_MK,2)}, 0, -1")
        for e in range(4):
            a.e(f"v_cndmask_b32 v{V_MP0+e}, v{V_MP+e}, v{V_NEG}, {sr(S_MK,2)}")
    bg.append(mk0)

    def try_flag():
        sk = a.newlab("Ltf")
        a.e(f"s_getreg_b32 s{S_PG0}, hwreg(HW_REG_IB_STS)")
        a.e(f"s_and_b32 s{S_PG0}, s{S_PG0}, 0x00c0000f")
        a.e(f"s_or_b32 s{S_PG0}, s{S_PG0}, s{S_FDONE}")
        a.e(f"s_cbranch_scc1 {sk}")
        a.e("s_mov_b64 exec, 1")
        a.e(f"buffer_store_dword v{V_NONCE}, v{V_ZERO}, {sr(SRD_WS,4)}, s{S_FLA} offen sc1")
        a.e("s_mov_b64 exec, -1")
        a.e(f"s_mov_b32 s{S_FDONE}, 1")
        a.lab(sk)

    LA = P["LAB"]
    NFK = 8
    NF = 14 * NFK
    rtok = {}
    fixed = {}

    def at(n, f):
        fixed.setdefault(max(n, -1), []).append(f)

    def sched_check(n0, need):
        st = {}
        ok, spin = a.newlab("Lok"), a.newlab("Lspin")

        def f0():
            a.e(f"ds_read_b128 {vr(V_F,4)}, v{V_FL} offset:16")
            st["tok"] = lg.issue()

        def f1():
            lg.wait(st["tok"])
            a.e(f"v_min3_u32 v{V_F}, v{V_F}, v{V_F+1}, v{V_F+2}")

        def f4():
            a.e(f"s_cbranch_vccnz {spin}")
            a.lab(ok)
            t = a.tail
            t.append(f"{spin}:")
            t.append(f"  s_mov_b32 s{S_SPIN}, 0")
            t.append(f"{spin}_l:")
            t.append(f"  ds_read_b128 {vr(V_F,4)}, v{V_FL} offset:16")
            t.append(f"  s_getreg_b32 s{S_PG0}, hwreg(HW_REG_IB_STS)")
            t.append(f"  s_and_b32 s{S_PG0}, s{S_PG0}, 0x00c0000f")
            t.append(f"  s_or_b32 s{S_PG0}, s{S_PG0}, s{S_FDONE}")
            t.append(f"  s_cbranch_scc1 {spin}_n")
            t.append(f"  s_mov_b64 exec, 1")
            t.append(f"  buffer_store_dword v{V_NONCE}, v{V_ZERO}, {sr(SRD_WS,4)}, s{S_FLA} offen sc1")
            t.append(f"  s_mov_b64 exec, -1")
            t.append(f"  s_mov_b32 s{S_FDONE}, 1")
            t.append(f"{spin}_n:")
            t.append(f"  s_add_u32 s{S_SPIN}, s{S_SPIN}, 1")
            t.append(f"  s_cmp_gt_u32 s{S_SPIN}, {SPIN_MAX*8}")
            t.append(f"  s_waitcnt lgkmcnt(0)")
            t.append(f"  s_cbranch_scc1 {ok}")
            t.append(f"  v_min3_u32 v{V_F}, v{V_F}, v{V_F+1}, v{V_F+2}")
            t.append(f"  v_min_u32 v{V_F}, v{V_F}, v{V_F+3}")
            t.append(f"  v_cmp_gt_u32 vcc, {need}, v{V_F}")
            t.append(f"  s_cbranch_vccnz {spin}_l")
            t.append(f"  s_branch {ok}")
        at(n0 - 7, f0)
        at(n0 - 3, f1)
        at(n0 - 2, lambda: a.e(f"v_min_u32 v{V_F}, v{V_F}, v{V_F+3}"))
        at(n0 - 1, lambda: a.e(f"v_cmp_gt_u32 vcc, {need}, v{V_F}"))
        at(n0, f4)

    for p in range(7):
        sched_check(16 * p - LA, ITEM_CNT[("B", 2 * p + 1)])
    for sw in range(NSWAP_A, 56):
        ks, i = divmod(sw, 4)
        at((ks - 2) * NFK + 2 * i, lambda ks=ks, i=i: a.e(f"v_permlane16_swap_b32 v{X(0,ks)+i}, v{X(1,ks)+i}"))
    for n in range(1, 64, 8):
        at(n, try_flag)

    def rd(n):
        ks, c = divmod(n, NFK)
        k, off = reg_off(ks)
        d = V_WR + (n % NR) * 4
        if c < 6:
            a.e(f"ds_read_b128 {vr(d,4)}, v{V_SBA+k} offset:{off + c*1024}")
        elif c == 6:
            a.e(f"ds_read_b128 {vr(d,4)}, v{V_SBA+3+k} offset:{off}")
        else:
            a.e(f"ds_read_b128 {vr(d,4)}, v{VQ+k} offset:{off}")
        rtok[n] = lg.issue()

    for f in fixed.pop(-1, []):
        f()
    for n in range(LA):
        rd(n)
    stamp(a, 4)
    for n in range(NF):
        ks, c = divmod(n, NFK)
        if P["PRIOB"] and n == P["PRIOBN"]:
            a.e(f"s_setprio {P['PRIOB']}")
        for f in fixed.pop(n, []):
            f()
        if n + LA < NF:
            rd(n + LA)
        w = V_WR + (n % NR) * 4
        if c < 6:
            lg.wait(rtok[n])
            for T in range(2):
                C = None if ks == 0 else ACC(T, c)
                if c < 4:
                    mfma(a, ACC(T, c), w, X(T, ks), C)
                else:
                    mfma(a, ACC(T, c), X(T, ks), w, C)
        elif c == 7:
            lg.wait(rtok[n])
            wp = V_WR + ((n - 1) % NR) * 4
            mfma(a, V_HALO, wp, w, None if ks == 0 else V_HALO)
        if n >= 64 and bg and n % 2 == 1:
            bg.pop(0)()
    assert not fixed and not bg

    a.c("---- attention ----")
    stamp(a, 5)
    R = V_X
    QF = [R, R + 4]
    KF = [R + 8, R + 12]
    KP = R + 16
    VV = [R + 20, R + 26]
    VPX = R + 32
    HX = R + 36
    VT1 = R + 40
    SC = [R + 44, R + 48]
    SP = [R + 52, R + 56]
    PF = [R + 60, R + 64]
    OO = [[R + 68, R + 72], [R + 76, R + 80]]
    OP = [R + 84, R + 88]
    TM = [R + 92, R + 96]
    ZG = [R + 100, R + 101]
    GO = R + 102
    V_EXW, V_EXH, V_EXR = 1, 2, 3
    a.e(f"ds_read_b128 {vr(V_F,4)}, v{V_FL}")
    ptk = lg.issue()
    a.e(f"s_lshl_b32 s{S_T3}, s{S_W}, 11")
    a.e(f"s_add_u32 s{S_T3}, s{S_T3}, {L_XB}")
    a.e(f"v_add_u32 v{V_EXR}, s{S_T3}, v{V_L16}")
    a.e(f"v_add_u32 v{V_EXW}, 2048, v{V_EXR}")
    a.e(f"s_lshr_b32 s{S_T3}, s{S_W}, 1")
    a.e(f"s_lshl_b32 s{S_T3}, s{S_T3}, 10")
    a.e(f"s_and_b32 s{S_T4}, s{S_W}, 1")
    a.e(f"s_lshl_b32 s{S_T4}, s{S_T4}, 3")
    a.e(f"s_add_u32 s{S_T3}, s{S_T3}, s{S_T4}")
    a.e(f"s_add_u32 s{S_T3}, s{S_T3}, {L_XB}")
    a.e(f"v_add_u32 v{V_EXH}, s{S_T3}, v{V_L16}")

    def pk(d, s):
        a.e(f"v_cvt_pk_bf16_f32 v{d}, v{s}, v{s+1}")
        a.e(f"v_cvt_pk_bf16_f32 v{d+1}, v{s+2}, v{s+3}")

    pk(KF[1], ACC(1, 2)); pk(KF[1] + 2, ACC(1, 3))
    pk(QF[1], ACC(1, 0)); pk(QF[1] + 2, ACC(1, 1))
    pk(KF[0], ACC(0, 2)); pk(KF[0] + 2, ACC(0, 3))
    pk(VT1, ACC(1, 4)); pk(VT1 + 2, ACC(1, 5))
    pk(HX, V_HALO)
    lds_wait_min4(a, lg, V_FL, V_F, 0, 16, ptk)
    a.e(f"ds_write_b128 v{V_EXW}, {vr(KF[1],4)}")
    a.e(f"ds_write_b128 v{V_EXW}, {vr(VT1,4)} offset:1024")
    a.e(f"ds_write_b64 v{V_EXH}, {vr(HX,2)}")
    mfma(a, SC[1], KF[1], QF[1], V_MC)
    mfma(a, SP[1], KF[0], QF[1], V_MP)
    pk(QF[0], ACC(0, 0)); pk(QF[0] + 2, ACC(0, 1))
    a.e("s_waitcnt lgkmcnt(0)")
    lg.issue(); lg.issue(); lg.issue(); lg.mark_drained()
    lds_signal(a, lg, V_PROG, V_SIG, 17)
    mfma(a, SC[0], KF[0], QF[0], V_MC)
    for dt in range(2):
        pk(VV[dt] + 2, ACC(0, 4 + dt))
        a.e(f"v_mov_b32 v{VV[dt]+4}, v{VT1+2*dt}")
        a.e(f"v_mov_b32 v{VV[dt]+5}, v{VT1+2*dt+1}")

    def zipped(l0, l1):
        for x, y in zip(l0, l1):
            a.e(x)
            a.e(y)

    def gate_code(T):
        z, t0, t1 = ACC(T, 1), TM[T], TM[T] + 1
        return [
            f"v_mov_b32 v{t0}, v{z}",
            f"v_mov_b32 v{t1}, v{z}",
            "s_nop 0",
            f"v_permlane32_swap_b32 v{t0}, v{t1}",
            f"v_mov_b32 v{t0}, v{t1}",
            "s_nop 0",
            f"v_permlane16_swap_b32 v{t0}, v{t1}",
            f"v_mul_f32 v{t1}, 0xbfb8aa3b, v{t1}",
            f"v_exp_f32 v{t1}, v{t1}",
            f"v_add_f32 v{t1}, 1.0, v{t1}",
            f"v_rcp_f32 v{ZG[T]}, v{t1}",
            f"v_sub_f32 v{GO+T}, 1.0, v{ZG[T]}",
        ]
    zipped(gate_code(0), gate_code(1))
    a.e(f"s_mul_i32 s{S_T4}, s{S_RB}, 72")
    a.e(f"s_add_u32 s{S_T4}, s{S_T4}, s{S_J}")
    a.e(f"s_add_u32 s{S_T4}, s{S_T4}, 56")
    a.e(f"s_lshl_b32 s{S_T4}, s{S_T4}, 12")
    a.e(f"s_and_b32 s{S_T0}, s{S_W}, 1")
    a.e(f"s_lshl_b32 s{S_T1}, s{S_T0}, 11")
    a.e(f"s_add_u32 s{S_T4}, s{S_T4}, s{S_T1}")
    a.e(f"s_lshl_b32 s{S_T1}, s{S_J}, 5")
    a.e(f"s_add_u32 s{S_T1}, s{S_T1}, s{S_RB}")
    a.e(f"s_lshl_b32 s{S_T1}, s{S_T1}, 8")
    a.e(f"s_lshl_b32 s{S_T0}, s{S_T0}, 3")
    a.e(f"s_add_u32 s{S_T1}, s{S_T1}, s{S_T0}")
    a.e(f"s_add_u32 s{S_T1}, s{S_T1}, {WS_G}")
    sk = a.newlab("Lff")
    a.e(f"s_cmp_lg_u32 s{S_FDONE}, 0")
    a.e(f"s_cbranch_scc1 {sk}")
    a.e("s_waitcnt vmcnt(0)")
    flag_store(a, vm, V_NONCE, V_ZERO, S_FLA)
    a.lab(sk)
    a.e("s_mov_b64 exec, 0xffff")
    a.e(f"buffer_store_dwordx2 {vr(GO,2)}, v{V_L16}, {sr(SRD_WS,4)}, s{S_T1} offen sc1")
    vm.issue()
    a.e("s_mov_b64 exec, -1")
    lds_wait_min4(a, lg, V_FL, V_F, 0, 17)
    a.e(f"ds_read_b128 {vr(KP,4)}, v{V_EXR}")
    a.e(f"ds_read_b128 {vr(VPX,4)}, v{V_EXR} offset:1024")
    a.e("s_waitcnt lgkmcnt(1)")
    mfma(a, SP[0], KP, QF[0], V_MP0)
    a.e("s_waitcnt lgkmcnt(0)")
    lg.issue(); lg.issue(); lg.mark_drained()
    lds_signal(a, lg, V_PROG, V_SIG, 18)
    for dt in range(2):
        a.e(f"v_mov_b32 v{VV[dt]}, v{VPX+2*dt}")
        a.e(f"v_mov_b32 v{VV[dt]+1}, v{VPX+2*dt+1}")
    CL = (28 ** -0.5) * 1.4426950408889634
    import struct
    clbits = struct.unpack("<I", struct.pack("<f", CL))[0]
    a.e(f"s_mov_b32 s{S_T3}, 0x{clbits:08x}")
    a.e("s_nop 1")

    def xred(op, x, t):
        return [
            f"v_mov_b32 v{t}, v{x}",
            "s_nop 0",
            f"v_permlane32_swap_b32 v{x}, v{t}",
            f"{op} v{x}, v{x}, v{t}",
            f"v_mov_b32 v{t}, v{x}",
            "s_nop 0",
            f"v_permlane16_swap_b32 v{x}, v{t}",
            f"{op} v{x}, v{x}, v{t}",
        ]

    def soft_code(T):
        m, sm, t = TM[T], TM[T] + 1, TM[T] + 2
        sp, sc = SP[T], SC[T]
        o = []
        o.append(f"v_max3_f32 v{m}, v{sc}, v{sc+1}, v{sc+2}")
        o.append(f"v_max3_f32 v{m}, v{m}, v{sc+3}, v{sp}")
        o.append(f"v_max3_f32 v{m}, v{m}, v{sp+1}, v{sp+2}")
        o.append(f"v_max_f32 v{m}, v{m}, v{sp+3}")
        o += xred("v_max_f32", m, t)
        o.append(f"v_mul_f32 v{m}, s{S_T3}, v{m}")
        for e in range(4):
            o.append(f"v_fma_f32 v{sp+e}, v{sp+e}, s{S_T3}, -v{m}")
            o.append(f"v_fma_f32 v{sc+e}, v{sc+e}, s{S_T3}, -v{m}")
        for e in range(4):
            o.append(f"v_exp_f32 v{sp+e}, v{sp+e}")
            o.append(f"v_exp_f32 v{sc+e}, v{sc+e}")
        o.append(f"v_cvt_pk_bf16_f32 v{PF[T]}, v{sp}, v{sp+1}")
        o.append(f"v_cvt_pk_bf16_f32 v{PF[T]+1}, v{sp+2}, v{sp+3}")
        o.append(f"v_cvt_pk_bf16_f32 v{PF[T]+2}, v{sc}, v{sc+1}")
        o.append(f"v_cvt_pk_bf16_f32 v{PF[T]+3}, v{sc+2}, v{sc+3}")
        o.append(f"v_add_f32 v{sm}, v{sp}, v{sp+1}")
        for dt in range(2):
            o.append(f"v_mfma_f32_16x16x32_bf16 {vr(OO[T][dt],4)}, {vr(VV[dt]+2*T,4)}, {vr(PF[T],4)}, 0")
        o.append(f"v_add_f32 v{t}, v{sp+2}, v{sp+3}")
        o.append(f"v_add_f32 v{m}, v{sc}, v{sc+1}")
        o.append(f"v_add3_u32 v{V_SIG}, v{V_SIG}, 0, 0" if False else f"v_add_f32 v{sm}, v{sm}, v{t}")
        o.append(f"v_add_f32 v{t}, v{sc+2}, v{sc+3}")
        o.append(f"v_add_f32 v{sm}, v{sm}, v{m}")
        o.append(f"v_add_f32 v{sm}, v{sm}, v{t}")
        o += xred("v_add_f32", sm, t)
        o.append(f"v_rcp_f32 v{sm}, v{sm}")
        o.append(f"v_mul_f32 v{sm}, v{sm}, v{ZG[T]}")
        for dt in range(2):
            for e in range(4):
                o.append(f"v_mul_f32 v{OO[T][dt]+e}, v{OO[T][dt]+e}, v{sm}")
        for dt in range(2):
            o.append(f"v_cvt_pk_bf16_f32 v{OP[T]+2*dt}, v{OO[T][dt]}, v{OO[T][dt]+1}")
            o.append(f"v_cvt_pk_bf16_f32 v{OP[T]+2*dt+1}, v{OO[T][dt]+2}, v{OO[T][dt]+3}")
        o.append(f"buffer_store_dwordx4 {vr(OP[T],4)}, v{V_L16}, {sr(SRD_WS,4)}, s{S_T4} offen offset:{T*1024} sc1")
        return o
    zipped(soft_code(1), soft_code(0))
    a.e(f"s_add_u32 s{S_T3}, s{S_FIDX}, {WS_FA + 2*FSTRIDE}")
    stamp(a, 6)
    vm.drain()
    flag_store(a, vm, V_NONCE, V_ZERO, S_T3)
    stamp(a, 7)
    stamp_flush(a, 8)
    a.e("s_endpgm")


def gen_p2(a, P):
    vm = Cnt(a, "vmcnt", 63)
    lg = Cnt(a, "lgkmcnt", 15)
    V_LANE = 0
    V_T = 1
    V_L16 = 10
    V_ZERO = 11
    V_FL = 12
    V_NONCE = 13
    V_SIG = 14
    V_BF = 15
    V_F = 16
    V_P0, V_P1 = 20, 21
    V_PO0, V_PO1 = 22, 23
    V_G = 24
    V_HO = 28
    V_ACC = 32
    V_POOL = 96
    NSLOT = 10

    def ACC(ct, rt):
        return V_ACC + (ct * 4 + rt) * 4

    a.c("==== P2 program ====")
    P2CTX[0] = True
    S_W2K, S_WOK = 72, 28

    V_XO, V_WO, V_BO = 29, 30, 31
    SRD_L = SRD_O
    S_EXM = 24
    S_BA, S_BB, S_BSTEP, S_LA_, S_LB_, S_FWQO, S_FW2O, S_BST2 = 15, 16, 17, 18, 19, 20, 21, 24
    a.e(f"s_lshl_b32 s{S_T0}, s{S_M}, 7")
    a.e(f"s_lshl_b32 s{S_T1}, s{S_W}, 5")
    a.e(f"s_add_u32 s{S_T0}, s{S_T0}, s{S_T1}")
    a.e(f"v_lshrrev_b32 v1, 3, v{V_LANE}")
    a.e(f"v_add_u32 v1, s{S_T0}, v1")
    a.e(f"v_mul_u32_u24 v1, 896, v1")
    a.e(f"v_and_b32 v2, 7, v{V_LANE}")
    a.e(f"v_lshrrev_b32 v3, 4, v{V_LANE}")
    a.e(f"v_xor_b32 v2, v2, v3")
    a.e(f"v_lshl_add_u32 v{V_XO}, v2, 4, v1")
    a.e(f"v_xor_b32 v{V_BO}, 64, v{V_XO}")
    a.e(f"v_and_b32 v6, 1, v3")
    a.e(f"v_lshlrev_b32 v6, 2, v6")
    a.e(f"v_and_b32 v7, 7, v{V_LANE}")
    a.e(f"v_xor_b32 v6, v6, v7")
    a.e(f"s_lshl_b32 s{S_T3}, s{S_W}, 3")
    a.e(f"v_lshrrev_b32 v4, 3, v{V_LANE}")
    a.e(f"v_add_u32 v4, s{S_T3}, v4")
    a.e(f"v_mul_u32_u24 v4, 3584, v4")
    a.e(f"v_lshl_add_u32 v4, v6, 4, v4")
    a.e(f"s_lshl_b32 s{S_T3}, s{S_J}, 8")
    a.e(f"v_add_u32 v{V_WO}, s{S_T3}, v4")
    a.e(f"s_and_b32 s{S_ROT}, s{S_IDX}, 7")
    a.e(f"s_lshr_b32 s{S_T3}, s{S_IDX}, 3")
    a.e(f"s_lshl_b32 s{S_T3}, s{S_T3}, 1")
    a.e(f"s_add_u32 s{S_ROT}, s{S_ROT}, s{S_T3}")
    a.e(f"s_sub_u32 s{S_T3}, s{S_ROT}, 7")
    a.e(f"s_cmp_ge_u32 s{S_ROT}, 7")
    a.e(f"s_cselect_b32 s{S_ROT}, s{S_T3}, s{S_ROT}")
    if not P["ROT"]:
        a.e(f"s_mov_b32 s{S_ROT}, 0")
    S_LX, S_LW, S_LM = 78, 79, 77
    a.e(f"s_lshl_b32 s{S_LX}, s{S_W}, 12")
    a.e(f"s_lshl_b32 s{S_LW}, s{S_W}, 10")
    a.e(f"s_cmp_ge_u32 s{S_J}, 14")
    a.e(f"s_cselect_b32 s{S_LM}, 0x30000, 0")
    a.e(f"v_lshlrev_b32 v{V_L16}, 4, v{V_LANE}")
    a.e(f"v_mov_b32 v{V_ZERO}, 0")
    a.e(f"v_mov_b32 v{V_FL}, {L_FL}")
    a.e(f"s_lshl_b32 s{S_T0}, s{S_W}, 2")
    a.e(f"s_add_u32 s{S_T0}, s{S_T0}, {L_FL+16}")
    mk_sig_addr(a, V_BF, V_LANE, S_T0)
    if P["EXP"] & 1024:
        a.e("s_barrier")
        a.e("s_endpgm")

    def stage_b_setup():
        a.e(f"s_and_b32 s{S_RB}, s{S_IDX}, 3")
        a.e(f"s_lshl_b32 s{S_T0}, s{S_XCD}, 2")
        a.e(f"s_add_u32 s{S_RB}, s{S_RB}, s{S_T0}")
        a.e(f"s_lshr_b32 s{S_NT}, s{S_IDX}, 2")
        a.e(f"v_and_b32 v3, 3, v{V_LANE}")
        a.e(f"v_lshrrev_b32 v4, 2, v{V_LANE}")
        a.e(f"v_lshrrev_b32 v5, 4, v{V_LANE}")
        a.e(f"v_lshlrev_b32 v5, 1, v5")
        a.e(f"v_mov_b32 v6, {P['FQ']}")
        a.e(f"v_lshrrev_b32 v5, v5, v6")
        a.e(f"v_and_b32 v5, 3, v5")
        a.e(f"v_xor_b32 v5, v5, v3")
        a.e(f"s_lshl_b32 s{S_T0}, s{S_M}, 7")
        a.e(f"s_sub_u32 s{S_T0}, s{S_T0}, 16")
        a.e(f"s_max_i32 s{S_T0}, s{S_T0}, 0")
        a.e(f"v_add_u32 v4, s{S_T0}, v4")
        a.e(f"v_mul_u32_u24 v4, 896, v4")
        a.e(f"v_lshl_add_u32 v4, v5, 4, v4")
        a.e(f"v_mov_b32 v5, 0x40000000")
        a.e(f"s_cmp_eq_u32 s{S_M}, 0")
        a.e(f"s_cselect_b64 vcc, -1, 0")
        a.e(f"v_cndmask_b32 v{V_HO}, v4, v5, vcc")
        a.e(f"s_cmp_lt_u32 s{S_W}, 2")
        a.e(f"s_cselect_b64 vcc, -1, 0")
        a.e(f"v_cndmask_b32 v{V_HO}, v{V_HO}, v{V_L16}, vcc")
        a.e(f"s_cselect_b32 s{SRD_L}, s{SRD_WS}, s{SRD_X}")
        a.e(f"s_cselect_b32 s{SRD_L+1}, s{SRD_WS+1}, s{SRD_X+1}")
        a.e(f"s_cselect_b32 s{SRD_L+2}, s{SRD_WS+2}, s{SRD_X+2}")
        a.e(f"s_mov_b32 s{SRD_L+3}, 0x00020000")
        a.e(f"s_cselect_b32 s{S_BSTEP}, 6144, 64") if False else None
        a.e(f"s_mov_b32 s{S_T0}, 6144")
        a.e(f"s_cselect_b32 s{S_BSTEP}, s{S_T0}, 64")
        a.e(f"s_mul_i32 s{S_BA}, s{S_J}, {14*6144}")
        a.e(f"s_lshl_b32 s{S_T0}, s{S_W}, 10")
        a.e(f"s_add_u32 s{S_BA}, s{S_BA}, s{S_T0}")
        a.e(f"s_add_u32 s{S_BA}, s{S_BA}, {WS_WQR}")
        a.e(f"s_add_u32 s{S_T1}, s{S_BA}, 4096")
        a.e(f"s_cmp_lt_u32 s{S_W}, 2")
        a.e(f"s_cselect_b32 s{S_BB}, s{S_T1}, 0")
        a.e(f"s_add_u32 s{S_T1}, s{S_T0}, 4096")
        a.e(f"s_min_u32 s{S_LB_}, s{S_T1}, 6144")
        a.e(f"s_mov_b32 s{S_LA_}, s{S_T0}")
        a.e(f"s_lshl_b32 s{S_BST2}, s{S_BSTEP}, 1")
        a.e(f"v_min_u32 v{V_PO0}, 13, v{V_LANE}")
        a.e(f"v_lshlrev_b32 v{V_PO0}, 2, v{V_PO0}")
        a.e(f"v_min_u32 v{V_PO1}, 17, v{V_LANE}")
        a.e(f"v_lshlrev_b32 v{V_PO1}, 2, v{V_PO1}")
        a.e(f"s_lshl_b32 s{S_T0}, s{S_J}, 7")
        a.e(f"s_add_u32 s{S_FWQO}, s{S_T0}, {WS_FWQ}")
        a.e(f"s_min_u32 s{S_T1}, s{S_NT}, 6")
        a.e(f"s_lshl_b32 s{S_T1}, s{S_T1}, 2")
        a.e(f"s_add_u32 s{S_T1}, s{S_T1}, s{S_W}")
        a.e(f"s_lshl_b32 s{S_T1}, s{S_T1}, 7")
        a.e(f"s_add_u32 s{S_FW2O}, s{S_T1}, {WS_FW2}")

    TWO = [22, 23, 30, 31, 69, 53, 73]
    S_AH, S_AO, S_WOO = 74, 75, 76
    SRD_W2, SRD_WO = SRD_A, SRD_X
    S_FBO, S_GO, S_FA2, S_FA1 = 78, 79, 6, 77
    V_WQ = 1
    V_TW, V_TD = 6, 7
    V_TR = [29, 30, 31, 8]
    V_FAO = 9
    VT8, VT9 = V_POOL + 16, V_POOL + 17
    def p2_setup():
        mk_srd(a, SRD_W2, S_W2K, 1792 * 896)
        mk_srd(a, SRD_WO, S_WOK, 448 * 896)
        a.e(f"s_mul_i32 s{S_BASEA}, s{S_RB}, {72*4096}")
        a.e(f"s_mul_i32 s{S_T0}, s{S_W}, {7*4096}")
        a.e(f"s_lshl_b32 s{S_T1}, s{S_W}, 14")
        a.e(f"s_add_u32 s{S_T1}, s{S_T1}, {56*4096}")
        a.e(f"s_add_u32 s{S_AH}, s{S_BASEA}, s{S_T0}")
        a.e(f"s_add_u32 s{S_AO}, s{S_BASEA}, s{S_T1}")
        a.e(f"s_lshl_b32 s{S_T5}, s{S_NT}, 7")
        a.e(f"s_mul_i32 s{S_WOO}, s{S_W}, {112*896}")
        a.e(f"s_add_u32 s{S_WOO}, s{S_WOO}, s{S_T5}")
        a.e(f"s_and_b32 s{S_T0}, s{S_RB}, 3")
        a.e(f"s_lshl_b32 s{S_T0}, s{S_T0}, 1")
        a.e(f"s_add_u32 s{S_T0}, s{S_T0}, s{S_NT}")
        a.e(f"s_sub_u32 s{S_T1}, s{S_T0}, 7")
        a.e(f"s_cmp_ge_u32 s{S_T0}, 7")
        a.e(f"s_cselect_b32 s{S_T0}, s{S_T1}, s{S_T0}")
        if not P["ROT2"]:
            a.e(f"s_mov_b32 s{S_T0}, 0")
        a.e(f"s_mul_i32 s{S_T4}, s{S_W}, 7")
        for q in range(7):
            a.e(f"s_lshl_b32 s{S_RO2+q}, s{S_T0}, 12")
            if not P["W2M"]:
                a.e(f"s_add_u32 s{S_T1}, s{S_T4}, s{S_T0}")
                a.e(f"s_lshr_b32 s{S_T2}, s{S_T1}, 1")
                a.e(f"s_mul_i32 s{S_T2}, s{S_T2}, {128*896}")
                a.e(f"s_and_b32 s{S_T1}, s{S_T1}, 1")
                a.e(f"s_mul_i32 s{S_T1}, s{S_T1}, {32*896}")
                a.e(f"s_add_u32 s{S_T2}, s{S_T2}, s{S_T1}")
                a.e(f"s_add_u32 s{TWO[q]}, s{S_T2}, s{S_T5}")
            if q < 6:
                a.e(f"s_add_u32 s{S_T0}, s{S_T0}, 1")
                a.e(f"s_cmp_eq_u32 s{S_T0}, 7")
                a.e(f"s_cselect_b32 s{S_T0}, 0, s{S_T0}")
        if not P["W2M"]:
            a.e(f"v_lshrrev_b32 v{VT8}, 3, v{V_LANE}")
            a.e(f"v_lshrrev_b32 v{VT9}, 4, v{V_LANE}")
            a.e(f"v_lshlrev_b32 v5, 1, v{VT9}")
            a.e(f"v_and_b32 v6, 7, v{V_LANE}")
            a.e(f"v_xor_b32 v5, v5, v6")
            a.e(f"v_mul_u32_u24 v{V_WQ}, 896, v{VT8}")
            a.e(f"v_lshl_add_u32 v{V_WQ}, v5, 4, v{V_WQ}")
            for q in range(1, 4):
                a.e(f"v_add_u32 v{V_WQ+q}, {q*8*896}, v{V_WQ}")
            a.e(f"v_mov_b32 v5, 0x40000000")
            a.e(f"s_mov_b32 vcc_lo, 0")
            a.e(f"s_mov_b32 vcc_hi, -1")
            a.e("s_nop 1")
            a.e(f"v_cndmask_b32 v5, v{V_WQ+3}, v5, vcc")
            a.e(f"s_lshl_b32 s{S_T0}, s{S_W}, 12")
            a.e(f"s_add_u32 s{S_T0}, s{S_T0}, {L_TS}")
            a.e(f"v_add_u32 v{V_TW}, s{S_T0}, v{V_L16}")
            a.e(f"v_bfe_u32 v{VT8}, v{V_LANE}, 2, 2")
            a.e(f"v_and_b32 v{V_F}, 1, v{VT9}")
            a.e(f"v_lshrrev_b32 v{V_F+1}, 1, v{VT9}")
            a.e(f"v_lshl_add_u32 v{V_F+2}, v{V_F}, 2, v{VT8}")
            a.e(f"v_lshrrev_b32 v{V_F+3}, 1, v{V_F+2}")
            a.e(f"v_lshl_add_u32 v{V_F+2}, v{V_F+1}, 4, v{V_F+2}")
            a.e(f"v_lshlrev_b32 v{V_F+2}, 7, v{V_F+2}")
            a.e(f"v_and_b32 v{VT8}, 3, v{V_LANE}")
            a.e(f"v_lshl_add_u32 v{V_F+2}, v{VT8}, 3, v{V_F+2}")
            a.e(f"v_add_u32 v{V_F+2}, s{S_T0}, v{V_F+2}")
            for ct in range(4):
                a.e(f"v_xor_b32 v{VT8}, {ct}, v{V_F+3}")
                a.e(f"v_lshl_add_u32 v{V_TR[ct]}, v{VT8}, 5, v{V_F+2}")
            a.e(f"v_lshlrev_b32 v{V_TD}, 10, v{V_F+1}")
        a.e(f"s_mul_i32 s{S_T0}, s{S_W}, 7")
        a.e(f"s_lshr_b32 s{S_T0}, s{S_T0}, 1")
        a.e(f"s_lshl_b32 s{S_T0}, s{S_T0}, 8")
        a.e(f"s_lshl_b32 s{S_T1}, s{S_RB}, 12")
        a.e(f"s_add_u32 s{S_T0}, s{S_T0}, s{S_T1}")
        a.e(f"s_add_u32 s{S_FA1}, s{S_T0}, {WS_FA}")
        a.e(f"s_add_u32 s{S_FA2}, s{S_FA1}, {FSTRIDE}")
        a.e(f"v_and_b32 v{V_FAO}, 7, v{V_LANE}")
        a.e(f"v_lshlrev_b32 v{V_FAO}, 7, v{V_FAO}")
        a.e(f"s_lshl_b32 s{S_T2}, s{S_W}, 10")
        a.e(f"s_add_u32 s{S_FBO}, s{S_T2}, s{S_T1}")
        a.e(f"s_add_u32 s{S_FBO}, s{S_FBO}, {WS_FA + 2*FSTRIDE}")
        a.e(f"s_lshl_b32 s{S_T2}, s{S_W}, 7")
        a.e(f"s_add_u32 s{S_T2}, s{S_T2}, s{S_RB}")
        a.e(f"s_lshl_b32 s{S_T2}, s{S_T2}, 8")
        a.e(f"s_add_u32 s{S_GO}, s{S_T2}, {WS_G}")
        a.e(f"v_and_b32 v{V_PO1}, 15, v{V_LANE}")
        a.e(f"v_lshlrev_b32 v{V_PO1}, 4, v{V_PO1}")

    free = list(range(NSLOT))
    wslot, aslot, wtok, atok, ttok = {}, {}, {}, {}, {}

    def load_items(kind, i):
        s = free.pop(0)
        base = V_POOL + s * 16
        (wslot if kind == "W" else aslot)[i] = s
        so = S_SO0 if kind == "W" else S_SO1

        def one(q):
            if kind == "A":
                if q == 0:
                    if i < 14:
                        a.e(f"s_add_u32 s{so}, s{S_AH}, s{S_RO2 + i % 7}")
                        if i >= 7:
                            a.e(f"s_add_u32 s{so}, s{so}, {28*4096}")
                    else:
                        a.e(f"s_add_u32 s{so}, s{S_AO}, {(i-14)*4096}")
                a.e(f"buffer_load_dwordx4 {vr(base+q*4,4)}, v{V_L16}, {sr(SRD_WS,4)}, {'0' if X3 & 128 else 's%d' % so} offen offset:{q*1024} {P2SC}")
                atok[(i, q)] = vm.issue()
            elif P["W2M"]:
                if q == 0:
                    if i < 14:
                        a.e(f"s_add_u32 s{so}, s{TWO[0]}, s{S_RO2 + i % 7}")
                        if i >= 7:
                            a.e(f"s_add_u32 s{so}, s{so}, {28*4096}")
                    else:
                        a.e(f"s_add_u32 s{so}, s{TWO[1]}, {(i-14)*4096}")
                a.e(f"buffer_load_dwordx4 {vr(base+q*4,4)}, v{V_L16}, {sr(SRD_WS,4)}, s{so} offen offset:{q*1024} {P2SC}")
                wtok[(i, q)] = vm.issue()
            else:
                if i < 7:
                    sreg, srd = TWO[i], SRD_W2
                else:
                    sreg, srd = so, (SRD_W2 if i < 14 else SRD_WO)
                    if q == 0:
                        if i < 14:
                            a.e(f"s_add_u32 s{so}, s{TWO[i-7]}, {64*896}")
                        else:
                            a.e(f"s_add_u32 s{so}, s{S_WOO}, {(i-14)*28*896}")
                vo = 5 if (i >= 14 and q == 3) else V_WQ + q
                a.e(f"buffer_load_dwordx4 {vr(base+q*4,4)}, v{vo}, {sr(srd,4)}, {'0' if X3 & 256 else 's%d' % sreg} offen")
                wtok[(i, q)] = vm.issue()
        return [lambda q=q: one(q) for q in range(4)]

    def load_blk(kind, i):
        for f in load_items(kind, i):
            f()

    def trans_items(i):
        base = V_POOL + wslot[i] * 16
        out = []
        if P["W2M"]:
            for ct in range(4):
                ttok[(i, ct)] = None
            return []

        def wr(q):
            vm.wait(wtok[(i, q)])
            a.e(f"ds_write_b128 v{V_TW}, {vr(base+q*4,4)} offset:{q*1024}")
            lg.issue()

        def rdt(ct):
            if i == 14 and ct == 0:
                for c2 in range(4):
                    a.e(f"v_sub_u32 v{V_TR[c2]}, v{V_TR[c2]}, v{V_TD}")
            a.e(f"ds_read_b64_tr_b16 {vr(base+ct*4,2)}, v{V_TR[ct]}")
            lg.issue()
            a.e(f"ds_read_b64_tr_b16 {vr(base+ct*4+2,2)}, v{V_TR[ct]} offset:{1024 if i < 14 else 2048}")
            ttok[(i, ct)] = lg.issue()
        return [lambda q=q: wr(q) for q in range(4)] + [lambda ct=ct: rdt(ct) for ct in range(4)]

    def setup_all():
        pg.publish()
        if P["W2M"]:
            assert P["SETL"]
            pg.gate_check(st["w2_tok"], V_P1, V_PO1, S_FW2O, V_NONCE, skip=P2O)
        p2_setup()
        if P["W2M"]:
            a.e(f"s_mul_i32 s{S_T0}, s{S_NT}, {72*4096}")
            a.e(f"s_add_u32 s{S_T0}, s{S_T0}, {WS_W2R}")
            a.e(f"s_mul_i32 s{S_T1}, s{S_W}, {7*4096}")
            a.e(f"s_add_u32 s{TWO[0]}, s{S_T0}, s{S_T1}")
            a.e(f"s_lshl_b32 s{S_T1}, s{S_W}, 14")
            a.e(f"s_add_u32 s{S_T1}, s{S_T1}, {56*4096}")
            a.e(f"s_add_u32 s{TWO[1]}, s{S_T0}, s{S_T1}")
        pg.publish()
        for ct in range(4):
            for rt in range(1, 4):
                for q in range(4):
                    a.e(f"v_mov_b32 v{ACC(ct,rt)+q}, v{ACC(ct,0)+q}")
            pg.publish()
        a.e(f"s_cmp_ge_u32 s{S_NT}, 7")
        a.e(f"s_cselect_b32 s{SRD_W2+2}, 0, s{SRD_W2+2}")

    P2O = bool(P["EXP"] & 4096)
    if P["LPRIO"]:
        a.e(f"s_setprio {P['LPRIO']}")
    pg = Prog(a, vm, lg, V_BF, V_SIG)
    waited = 0
    barrier_done = False
    S_PH, S_TA_, S_TB_ = 96, 36 + 0, 0
    PH = [S_ROT, 96, 97, 98, 99, 100, 101]
    TW = [8, 9, 10, 11, 12, 13, 14]
    TV = [66 + 100] * 7
    V_XQ = V_POOL
    for q in range(4):
        src = V_BO if q & 1 else V_XO
        a.e(f"v_add_u32 v{V_XQ+q}, {q*(8*896-1024)}, v{src}")
    st = dict(since_pub=0, last=0, blast=0, waited=0, barrier_done=False, btok=None, wq_tok=None)
    VB = V_POOL + (NSLOT - 1) * 16

    def run_items(lo, hi, noa):
      since_pub, last, blast, waited, barrier_done, btok, wq_tok = (st[k] for k in ("since_pub", "last", "blast", "waited", "barrier_done", "btok", "wq_tok"))
      for idx in range(lo, hi):
        (kind, i, ops, step) = ITEMS[idx]
        if idx == 1:
            mk_srd(a, SRD_A, S_W1, 0 if X3 & 16 else 448 * 3584)
        if idx == 3:
            mk_srd(a, SRD_WS, S_WS, WS_END + 2048 * 64)
            a.e(f"s_mov_b64 {sr(S_W2K,2)}, {sr(S_W2,2)}")
            a.e(f"s_mov_b64 {sr(S_WOK,2)}, {sr(S_WO,2)}")
            a.e(f"s_mov_b32 s{S_SEEN}, 0")
        if idx == 0:
            stamp2(a, 1)
            if noa:
                init_barrier(a)
        if idx == 3:
            if not noa:
                init_barrier(a)
            barrier_done = True
            stamp2(a, 2)
            for p in range(1, 7):
                a.e(f"s_add_u32 s{PH[p]}, s{PH[p-1]}, 1")
                a.e(f"s_cmp_eq_u32 s{PH[p]}, 7")
                a.e(f"s_cselect_b32 s{PH[p]}, 0, s{PH[p]}")
        if kind == "bias":
            stage_b_setup()
            get_nonce(a, lg, V_FL, None, V_NONCE)
            mk_srd(a, SRD_B, S_B2, 448 * 2)
            a.e(f"v_lshrrev_b32 v4, 4, v{V_LANE}")
            a.e(f"s_lshl_b32 s{S_T0}, s{S_NT}, 7")
            a.e(f"v_lshl_add_u32 v4, v4, 3, s{S_T0}")
            a.e(f"v_mov_b32 v5, 0x40000000")
            a.e(f"s_cmp_eq_u32 s{S_W}, 0")
            a.e(f"s_cselect_b64 vcc, -1, 0")
            a.e(f"v_cndmask_b32 v4, v5, v4, vcc")
            for ct in range(4):
                a.e(f"buffer_load_dwordx2 {vr(VB+2*ct,2)}, v4, {sr(SRD_B,4)}, 0 offen offset:{ct*32}")
                btok = vm.issue()
            continue
        if kind == "tl2":
            a.e(f"s_lshl_b32 s{S_T0}, s{S_IDX}, 2")
            a.e(f"s_add_u32 s{S_T0}, s{S_T0}, s{S_W}")
            a.e(f"s_lshr_b32 s{S_T1}, s{S_M}, 3")
            a.e(f"s_lshl_b32 s{S_T1}, s{S_T1}, 7")
            a.e(f"s_add_u32 s{S_T1}, s{S_T1}, s{S_T0}")
            a.e(f"s_mul_i32 s{S_T1}, s{S_T1}, 7168")
            a.e(f"v_min_u32 v{V_POOL+8}, 55, v{V_LANE}")
            a.e(f"v_lshlrev_b32 v{V_POOL+8}, 7, v{V_POOL+8}")
            a.e(f"buffer_load_dword v{V_POOL+9}, v{V_POOL+8}, {sr(SRD_X,4)}, s{S_T1} offen")
            vm.issue()
            a.e(f"s_and_b32 s{S_T1}, s{S_T0}, 31")
            a.e(f"s_mul_i32 s{S_T1}, s{S_T1}, {14*3584}")
            a.e(f"s_lshr_b32 s{S_T0}, s{S_T0}, 5")
            a.e(f"s_lshl_b32 s{S_T0}, s{S_T0}, 10")
            a.e(f"s_add_u32 s{S_T1}, s{S_T1}, s{S_T0}")
            a.e(f"s_and_b32 s{S_T0}, s{S_J}, 3")
            a.e(f"s_lshl_b32 s{S_T0}, s{S_T0}, 8")
            a.e(f"s_add_u32 s{S_T1}, s{S_T1}, s{S_T0}")
            a.e(f"v_min_u32 v{V_POOL+10}, 27, v{V_LANE}")
            a.e(f"v_lshrrev_b32 v{V_POOL+11}, 1, v{V_POOL+10}")
            a.e(f"v_mul_u32_u24 v{V_POOL+11}, 3584, v{V_POOL+11}")
            a.e(f"v_and_b32 v{V_POOL+10}, 1, v{V_POOL+10}")
            a.e(f"v_lshl_add_u32 v{V_POOL+10}, v{V_POOL+10}, 7, v{V_POOL+11}")
            a.e(f"buffer_load_dword v{V_POOL+12}, v{V_POOL+10}, {sr(SRD_A,4)}, s{S_T1} offen")
            vm.issue()
            continue
        if kind == "tmall":
            SRD_T = SRD_O
            a.e(f"s_lshl_b32 s{S_T0}, s2, 2")
            a.e(f"s_add_u32 s{S_T0}, s{S_T0}, s{S_W}")
            a.e(f"s_sub_u32 s{S_T1}, s{S_T0}, 784")
            a.e(f"s_mov_b32 s{S_T4}, {1792*896}")
            a.e(f"s_mov_b32 s{S_T5}, {448*896}")
            a.e(f"s_cmp_lt_u32 s{S_T0}, 784")
            a.e(f"s_cselect_b32 s{SRD_T}, s{S_W2K}, s{S_WOK}")
            a.e(f"s_cselect_b32 s{SRD_T+1}, s{S_W2K+1}, s{S_WOK+1}")
            a.e(f"s_cselect_b32 s{SRD_T+2}, s{S_T4}, s{S_T5}")
            a.e(f"s_mov_b32 s{SRD_T+3}, 0x00020000")
            a.e(f"s_cselect_b32 s{S_T1}, s{S_T0}, s{S_T1}")
            a.e(f"s_and_b32 s{SRD_T+1}, s{SRD_T+1}, 0xffff")
            a.e(f"s_lshl_b32 s{S_T1}, s{S_T1}, 11")
            a.e(f"v_lshlrev_b32 v{V_POOL+8}, 7, v{V_LANE}")
            a.e(f"v_lshlrev_b32 v{V_POOL+11}, 8, v{V_LANE}")
            a.e("s_mov_b64 exec, 0xffff")
            a.e(f"buffer_load_dword v{V_POOL+9}, v{V_POOL+8}, {sr(SRD_T,4)}, s{S_T1} offen")
            vm.issue()
            mk_srd(a, SRD_T, S_W1, 448 * 3584)
            a.e(f"s_mul_i32 s{S_T0}, s{S_T0}, {7*256}")
            a.e("s_mov_b64 exec, 0x7f")
            a.e(f"buffer_load_dword v{V_POOL+10}, v{V_POOL+11}, {sr(SRD_T,4)}, s{S_T0} offen offset:128")
            vm.issue()
            a.e("s_mov_b64 exec, -1")
            continue
        if kind == "touch":
            SRD_T = SRD_B if idx > 6 else SRD_O
            a.e(f"s_lshl_b32 s{S_T0}, s{S_IDX}, 2")
            a.e(f"s_add_u32 s{S_T0}, s{S_T0}, s{S_W}")
            a.e(f"s_sub_u32 s{S_T1}, s{S_T0}, 98")
            a.e(f"s_mov_b32 s{S_T4}, {1792*896}")
            a.e(f"s_mov_b32 s{S_T5}, {448*896}")
            a.e(f"s_cmp_lt_u32 s{S_T0}, 98")
            a.e(f"s_cselect_b32 s{SRD_T}, s{S_W2K}, s{S_WOK}")
            a.e(f"s_cselect_b32 s{SRD_T+1}, s{S_W2K+1}, s{S_WOK+1}")
            a.e(f"s_cselect_b32 s{SRD_T+2}, s{S_T4}, s{S_T5}")
            a.e(f"s_mov_b32 s{SRD_T+3}, 0x00020000")
            a.e(f"s_cselect_b32 s{S_T0}, s{S_T0}, s{S_T1}")
            a.e(f"s_and_b32 s{SRD_T+1}, s{SRD_T+1}, 0xffff")
            a.e(f"s_lshl_b32 s{S_T0}, s{S_T0}, 14")
            a.e(f"s_add_u32 s{S_T1}, s{S_T0}, 8192")
            a.e(f"v_lshlrev_b32 v{V_POOL+8}, 7, v{V_LANE}")
            a.e(f"buffer_load_dword v{V_POOL+9}, v{V_POOL+8}, {sr(SRD_T,4)}, s{S_T0} offen")
            vm.issue()
            a.e(f"buffer_load_dword v{V_POOL+10}, v{V_POOL+8}, {sr(SRD_T,4)}, s{S_T1} offen")
            vm.issue()
            continue
        if kind == "pw2":
            st["w2_tok"] = pg.gate_issue(V_P1, V_PO1, S_FW2O)
            continue
        if kind == "cwq":
            stamp2(a, 6)
            stamp(a, 1)
            if P["EXP"] & 1:
                pg.wait_tok(last)
                pg.publish()
                for q in range(2, 8):
                    stamp(a, q)
                stamp_flush(a, 8)
                a.e("s_endpgm")
            vm.wait(btok)
            for ct in range(4):
                d = ACC(ct, 0)
                a.e(f"v_lshlrev_b32 v{d}, 16, v{VB+2*ct}")
                a.e(f"v_and_b32 v{d+1}, 0xffff0000, v{VB+2*ct}")
                a.e(f"v_lshlrev_b32 v{d+2}, 16, v{VB+2*ct+1}")
                a.e(f"v_and_b32 v{d+3}, 0xffff0000, v{VB+2*ct+1}")
            if not P["SETL"]:
                setup_all()
            continue
        if kind == "W":
            for q, f in enumerate(load_items("W", i)):
                f()
                if q % 2 == 1:
                    pg.publish()
            continue
        if kind == "gwq":
            if not P2O:
                pg.gate_check(wq_tok, V_P0, V_PO0, S_FWQO, V_NONCE)
            stamp(a, 2)
            continue
        if P2O:
            continue
        if idx == 13:
            stamp2(a, 3)
        if idx == 14:
            stamp2(a, 4)
        if idx == 22:
            stamp2(a, 5)
        if kind == "pwq":
            wq_tok = pg.gate_issue(V_P0, V_PO0, S_FWQO)
            continue
        if STAMPS and STMODE == 3 and kind == "B" and i % 2 == 0:
            a.e(f"s_memrealtime {sr(S_ST+2*(1+i//2),2)}")
        if noa and kind in "ab":
            continue
        if step > waited and not (P["EXP"] & (2048 | 16384)):
            pg.wait_prog(V_FL, V_F, step + 1)
            waited = step
            since_pub = 0
        if kind == "x":
            a.e(f"s_add_u32 m0, s{S_LX}, {(i%4)*16384}")
            a.e(f"s_lshl_b32 s{S_SO1}, s{PH[i]}, 7")
            for q in range(4):
                a.e(f"buffer_load_dwordx4 v{V_XQ+q}, {sr(SRD_X,4)}, s{S_SO1} offen offset:{q*1024} lds")
                last = vm.issue()
            a.e(f"s_mul_i32 s{TW[i]}, s{PH[i]}, {64*3584}")
        elif kind in "ab":
            ad = L_WA + i * 4096 if kind == "a" else wb_addr(i)
            a.e(f"s_add_u32 m0, s{S_LW}, {ad}")
            a.e(f"s_add_u32 s{S_SO0}, s{TW[i//2]}, {32*(i%2)*3584 + (128 if kind == 'b' else 0)}")
            a.e(f"buffer_load_dwordx4 v{V_WO}, {sr(SRD_A,4)}, s{S_SO0} offen lds")
            last = vm.issue()
        else:
            if i % 2 == 0:
                a.e(f"s_mul_i32 s{S_SO0}, s{PH[i//2]}, 12288")
                a.e(f"s_mul_i32 s{S_SO1}, s{PH[i//2]}, s{S_BST2}")
                a.e(f"s_add_u32 s{S_SO0}, s{S_SO0}, s{S_BA}")
                a.e(f"s_add_u32 s{S_SO1}, s{S_SO1}, s{S_BB}")
            else:
                a.e(f"s_add_u32 s{S_SO0}, s{S_SO0}, 6144")
                a.e(f"s_add_u32 s{S_SO1}, s{S_SO1}, s{S_BSTEP}")
            if X3 & 32:
                a.e(f"s_mov_b32 s{S_SO0}, {WS_WQR}")
                a.e(f"s_mov_b32 s{S_SO1}, 0")
            a.e(f"s_add_u32 m0, s{S_LA_}, {sb_addr(i)}")
            a.e("s_nop 0")
            a.e(f"buffer_load_dwordx4 v{V_L16}, {sr(SRD_WS,4)}, s{S_SO0} offen sc1 lds")
            vm.issue()
            a.e(f"s_add_u32 m0, s{S_LB_}, {sb_addr(i)}")
            a.e("s_nop 0")
            a.e(f"buffer_load_dwordx4 v{V_HO}, {sr(SRD_L,4)}, s{S_SO1} offen sc1 lds")
            blast = vm.issue()
        assert vm.n == (NOA_CNT if noa else ITEM_CNT)[(kind, i)] or P2O, (kind, i, vm.n)
        since_pub += ops
        if barrier_done and since_pub >= P["PUBN"]:
            pg.publish()
            since_pub = 0
      st.update(since_pub=since_pub, last=last, blast=blast, waited=waited, barrier_done=barrier_done, btok=btok, wq_tok=wq_tok)

    kernarg_wait(a)
    mk_srd(a, SRD_X, S_X, 0 if X3 & 8 else 2048 * 896)
    icwq = [k for k, it in enumerate(ITEMS) if it[0] == "cwq"][0]
    l_lnoa, l_ljoin = a.newlab("Llnoa"), a.newlab("Lljoin")
    a.e(f"s_cmp_ge_u32 s{S_J}, 14")
    a.e(f"s_cbranch_scc1 {l_lnoa}")
    st0 = dict(st); c0 = (vm.n, vm.done, lg.n, lg.done)
    run_items(0, icwq, False)
    a.e(f"s_branch {l_ljoin}")
    st1 = dict(st); c1 = (vm.n, vm.done, lg.n, lg.done)
    a.lab(l_lnoa)
    st.update(st0); vm.n, vm.done, lg.n, lg.done = c0
    run_items(0, icwq, True)
    pg.wait_tok(vm.n)
    st.update(st1); vm.n, vm.done, lg.n, lg.done = c1
    pg.publish()
    st["waited"] = 0
    a.lab(l_ljoin)
    run_items(icwq, len(ITEMS), False)
    blast = st["blast"]
    stamp(a, 3)
    l_noP2 = a.newlab("LnoP2")
    a.e(f"s_cmp_ge_u32 s{S_NT}, 7")
    a.e(f"s_cbranch_scc1 {l_noP2}")
    vm_snap = (vm.n, vm.done)
    if P["SETL"]:
        assert P["NW1"] == 0
        setup_all()
    pgb = pg
    btok_ = {13: blast}

    NWPRE = P["NWPRE"]
    if P["NW1"] >= NWPRE:
        fa1_tok = pg.gate_issue(V_P0, V_FAO, S_FA1)
    for i in range(P["NW1"], NWPRE):
        if i == max(P["NW1"], NWPRE - P["FA1A"]):
            fa1_tok = pg.gate_issue(V_P0, V_FAO, S_FA1)
        for q, f in enumerate(load_items("W", i)):
            f()
            if q % 2 == 1:
                pg.publish()
    stamp(a, 4)
    if not P2O and not P["W2M"]:
        pg.wait_prog(V_FL, V_F, 12)
    for f in trans_items(0):
        f()
    pg.gate_check(fa1_tok, V_P0, V_FAO, S_FA1, V_NONCE, skip=P2O)
    pg.publish()
    stamp(a, 5)

    NB = 18
    nextA, nextW = 0, NWPRE
    ptok = {}
    checked = set()
    g_tok = [None]
    gate = {7: (S_FA2, V_P0, P["FA2P"]), 14: (S_FBO, V_P1, P["FBP"])}

    def async_check(first):
        if first in checked:
            return
        checked.add(first)
        so, vreg, _ = gate[first]
        vm.wait(ptok[first])
        ok, slow = a.newlab("Lfok"), a.newlab("Lfslow")
        a.e(f"v_cmp_ne_u32 vcc, v{vreg}, v{V_NONCE}")
        if not (P["EXP"] & 4096):
            a.e(f"s_cbranch_vccnz {slow}")
        a.lab(ok)
        t = a.tail
        t.append(f"{slow}:")
        t.append(f"  s_mov_b32 s{S_SPIN}, 0")
        t.append(f"{slow}_l:")
        t.append(f"  buffer_load_dword v{vreg}, v{V_FAO}, {sr(SRD_WS,4)}, s{so} offen sc1")
        t.append(f"  s_add_u32 s{S_SPIN}, s{S_SPIN}, 1")
        t.append(f"  s_cmp_gt_u32 s{S_SPIN}, {SPIN_MAX}")
        t.append(f"  s_waitcnt vmcnt(0)")
        t.append(f"  s_cbranch_scc1 {ok}")
        t.append(f"  v_cmp_ne_u32 vcc, v{vreg}, v{V_NONCE}")
        t.append(f"  s_cbranch_vccz {ok}")
        t.append(f"  s_branch {slow}_l")
        if first == 14:
            a.e(f"buffer_load_dwordx4 {vr(V_G,4)}, v{V_PO1}, {sr(SRD_WS,4)}, s{S_GO} offen sc1")
            g_tok[0] = vm.issue()

    def plan_refill(cur):
        nonlocal nextA, nextW
        out = []
        while free:
            a_blocked = nextA in gate and (nextA not in ptok or gate[nextA][2] + P["PLAG"] > cur or (nextA == 14 and P["LATE"]))
            if nextW < NB and (nextW <= nextA + (0 if P["W2M"] else 1) or nextA >= NB or a_blocked):
                out += load_items("W", nextW); nextW += 1
            elif nextA < NB and not a_blocked:
                if nextA in gate:
                    out.append(lambda f=nextA: async_check(f))
                out += load_items("A", nextA); nextA += 1
            else:
                break
        return out

    for f in plan_refill(-1):
        f()
    pend = []
    V_RW, V_RR, V_RO = [V_WQ, V_WQ + 1, V_WQ + 2, V_WQ + 3], 5, V_PO0

    def red_setup():
        a.e(f"v_and_b32 v{V_F}, 15, v{V_LANE}")
        a.e(f"v_lshrrev_b32 v{V_F+1}, 4, v{V_LANE}")
        a.e(f"s_lshl_b32 s{S_T0}, s{S_W}, 12")
        a.e(f"v_lshl_add_u32 v{V_F+1}, v{V_F+1}, 8, s{S_T0}")
        for ct in range(4):
            a.e(f"v_add_u32 v{V_F+2}, {4*ct}, v{V_F}")
            a.e(f"v_and_b32 v{V_F+2}, 15, v{V_F+2}")
            a.e(f"v_lshl_add_u32 v{V_RW[ct]}, v{V_F+2}, 4, v{V_F+1}")
        a.e(f"v_lshrrev_b32 v{V_F}, 2, v{V_LANE}")
        a.e(f"v_and_b32 v{V_F+1}, 3, v{V_LANE}")
        a.e(f"v_lshl_add_u32 v{V_F+2}, v{V_F+1}, 2, v{V_F}")
        a.e(f"v_and_b32 v{V_F+2}, 15, v{V_F+2}")
        a.e(f"v_lshlrev_b32 v{V_F+2}, 4, v{V_F+2}")
        a.e(f"v_lshl_add_u32 v{V_F+2}, v{V_F+1}, 10, v{V_F+2}")
        a.e(f"s_lshl_b32 s{S_T0}, s{S_W}, 14")
        a.e(f"v_add_u32 v{V_RR}, s{S_T0}, v{V_F+2}")
        mk_srd(a, SRD_O, S_OUT, 2048 * 896)
        a.e(f"s_lshl_b32 s{S_T0}, s{S_RB}, 6")
        a.e(f"s_lshl_b32 s{S_T1}, s{S_W}, 4")
        a.e(f"s_add_u32 s{S_T0}, s{S_T0}, s{S_T1}")
        a.e(f"v_add_u32 v{V_F}, s{S_T0}, v{V_F}")
        a.e(f"v_mul_u32_u24 v{V_F}, 896, v{V_F}")
        a.e(f"v_lshl_add_u32 v{V_RO}, v{V_F+1}, 5, v{V_F}")
        a.e(f"s_lshl_b32 s{S_T5}, s{S_NT}, 7")

    LATE = P["LATE"]
    for i in range(NB):
        if i == 14 and LATE:
            for f in pend:
                f()
            pend = []
            while nextW < NB:
                load_blk("W", nextW); nextW += 1
            for b in range(15, 18):
                for f in trans_items(b):
                    f()
            red_setup()
            async_check(14)
            for b in range(14, 18):
                load_blk("A", b)
            nextA = NB
        if i == NB - 2 and not LATE:
            for f in pend:
                f()
            pend = []
            assert nextW == NB
            red_setup()
        if i == 14:
            vm.wait(g_tok[0])
            a.e("s_nop 7")
            for ct in range(4):
                for rt in range(4):
                    for e in range(4):
                        a.e(f"v_mul_f32 v{ACC(ct,rt)+e}, v{ACC(ct,rt)+e}, v{V_G+rt}")
            a.e("s_nop 1")
        while (i, 3) not in atok or (i, 3) not in wtok:
            if not pend:
                pend = plan_refill(99)
            pend.pop(0)()
        wb, ab = V_POOL + wslot[i] * 16, V_POOL + aslot[i] * 16
        while i + 1 < NB and (i + 1, 3) not in wtok and not P["W2M"]:
            if not pend:
                pend = plan_refill(99)
            pend.pop(0)()
        if P["W2M"]:
            trans_items(i)
        tr = trans_items(i + 1) if (i + 1 < NB and not (LATE and i >= 14) and not P["W2M"]) else []
        if i == NB - 1:
            a.e(f"ds_read_b128 {vr(V_F,4)}, v{V_FL}")
            done_tok = lg.issue()
        k = 0
        for ct in range(4):
            for rt in range(4):
                vm.wait(max(atok[(i, rt)], wtok[(i, ct)]) if P["W2M"] else atok[(i, rt)])
                lg.wait(ttok[(i, ct)])
                if not (P["EXP"] & 8192):
                    mfma(a, ACC(ct, rt), wb + ct * 4, ab + rt * 4, ACC(ct, rt))
                k += 1
                if k % 2 == 0 and pend:
                    pend.pop(0)()
                if k >= P["TRK"] and tr:
                    tr.pop(0)()
        for f in pend + tr:
            f()
        free.append(wslot[i]); free.append(aslot[i])
        for first, (so, vreg, pb) in gate.items():
            if i == pb:
                a.e(f"buffer_load_dword v{vreg}, v{V_FAO}, {sr(SRD_WS,4)}, s{so} offen sc1")
                ptok[first] = vm.issue()
        pend = plan_refill(i)

    a.c("---- reduction ----")
    for _ in range(P["DLY"]):
        a.e("s_sleep 64")
    if P["AMP"]:
        k = P["AMP"]
        a.e(f"s_memrealtime {sr(S_ST+12,2)}")
        a.e("s_waitcnt lgkmcnt(0)")
        a.e(f"s_sub_u32 s{S_T0}, s{S_ST+2*k}, s{S_ST}")
        a.e(f"s_add_u32 s{S_T0}, s{S_T0}, s{S_ST+12}")
        lp = a.newlab("Lamp")
        a.lab(lp)
        a.e(f"s_memrealtime {sr(S_ST+14,2)}")
        a.e("s_waitcnt lgkmcnt(0)")
        a.e(f"s_sub_u32 s{S_T1}, s{S_ST+14}, s{S_T0}")
        a.e(f"s_cmp_lt_i32 s{S_T1}, 0")
        a.e(f"s_cbranch_scc1 {lp}")
    stamp(a, 6)
    lds_wait_min4(a, lg, V_FL, V_F, 0, 18, done_tok)
    a.e("s_nop 2")
    for rt in range(4):
        for ct in range(4):
            a.e(f"ds_write_b128 v{V_RW[ct]}, {vr(ACC(ct,rt),4)} offset:{L_RED + rt*16384 + ct*1024}")
    a.e("s_waitcnt lgkmcnt(0)")
    a.e("s_barrier")
    RD = V_POOL
    for g in range(4):
        for src in range(4):
            a.e(f"ds_read_b128 {vr(RD+(g*4+src)*4,4)}, v{V_RR} offset:{L_RED + src*4096 + g*256}")
    OUTR = V_ACC
    for g in range(4):
        a.e(f"s_waitcnt lgkmcnt({12-4*g})")
        b = RD + g * 16
        for e in range(4):
            a.e(f"v_add_f32 v{b+e}, v{b+e}, v{b+4+e}")
            a.e(f"v_add_f32 v{b+8+e}, v{b+8+e}, v{b+12+e}")
        for e in range(4):
            a.e(f"v_add_f32 v{b+e}, v{b+e}, v{b+8+e}")
        a.e(f"v_cvt_pk_bf16_f32 v{OUTR+2*g}, v{b}, v{b+1}")
        a.e(f"v_cvt_pk_bf16_f32 v{OUTR+2*g+1}, v{b+2}, v{b+3}")
        if g % 2 == 1:
            a.e(f"buffer_store_dwordx4 {vr(OUTR+2*g-2,4)}, v{V_RO}, {sr(SRD_O,4)}, s{S_T5} offen offset:{(g//2)*16} {OUTSC}")
    if STAMPS:
        a.e("s_waitcnt vmcnt(0)")
    stamp(a, 7)
    stamp_flush(a, 8)
    a.e("s_endpgm")

    a.lab(l_noP2)
    vm.n, vm.done = vm_snap
    pgb.wait_tok(btok_[13])
    pgb.publish()
    l_e = a.newlab("Lnoep")
    if P["EXP"]:
        a.e("s_endpgm")
    a.e(f"s_cmp_lg_u32 s2, 255")
    a.e(f"s_cbranch_scc1 {l_e}")
    a.e(f"s_cmp_lg_u32 s{S_W}, 0")
    a.e(f"s_cbranch_scc1 {l_e}")
    a.e(f"v_lshrrev_b32 v1, 2, v{V_LANE}")
    a.e(f"v_and_b32 v2, 3, v{V_LANE}")
    a.e(f"v_lshlrev_b32 v1, 13, v1")
    a.e(f"v_lshl_add_u32 v1, v2, 10, v1")
    for q in range(1, 4):
        a.e(f"v_add_u32 v{1+q}, {q*256}, v1")
    a.e(f"s_mov_b32 s{S_T0}, {WS_FA + 2*FSTRIDE}")
    vm2 = Cnt(a, "vmcnt", 63)
    flag_poll(a, vm2, [(5 + q, 1 + q, S_T0) for q in range(4)], V_NONCE, sleep=8)
    a.e(f"s_mov_b32 s{S_T0}, {WS_EPOCH}")
    flag_store(a, vm2, V_NONCE, V_ZERO, S_T0)
    a.lab(l_e)
    a.e("s_endpgm")


def generate(P):
    global ITEMS, ITEM_CNT, NOA_CNT
    ITEMS, ITEM_CNT, NOA_CNT = loader_items(P)
    a = Asm()
    K = NAME + "_kernel"
    hdr = [
        "; fused gated-mix kernel: generated by gen/gen.py (hand-written generator)",
        f"; @launch grid=(256,1,1) block=(512,1,1) lds={L_END}",
        '.amdgcn_target "amdgcn-amd-amdhsa--gfx950"',
        ".text",
        f".globl {K}",
        ".p2align 8",
        f".type {K},@function",
        f"{K}:",
    ]
    a.e("s_cmp_ge_u32 s2, 256")
    a.e("s_cbranch_scc1 L_exit")
    a.e("s_load_dwordx16 s[8:23], s[0:1], 0")
    a.e("s_load_dwordx8 s[24:31], s[0:1], 64")
    stamp(a, 0)
    a.e("v_lshrrev_b32 v1, 6, v0")
    a.e("v_and_b32 v0, 63, v0")
    a.e(f"v_readfirstlane_b32 s{S_WAVE}, v1")
    a.e(f"s_and_b32 s{S_XCD}, s2, 7")
    a.e(f"s_lshr_b32 s{S_IDX}, s2, 3")
    MB = P["MAPB"]
    a.e(f"s_and_b32 s{S_M}, s{S_XCD}, {(1<<MB)-1}")
    a.e(f"s_lshl_b32 s{S_M}, s{S_M}, {4-MB}")
    a.e(f"s_and_b32 s{S_T0}, s{S_IDX}, {(1<<(4-MB))-1}")
    a.e(f"s_add_u32 s{S_M}, s{S_M}, s{S_T0}")
    a.e(f"s_lshr_b32 s{S_J}, s{S_IDX}, {4-MB}")
    a.e(f"s_lshl_b32 s{S_J}, s{S_J}, {3-MB}")
    a.e(f"s_lshr_b32 s{S_T0}, s{S_XCD}, {MB}")
    if P["JFLIP"]:
        a.e(f"s_xor_b32 s{S_T0}, s{S_T0}, {(1<<(3-MB))-1}")
    a.e(f"s_add_u32 s{S_J}, s{S_J}, s{S_T0}")
    a.e(f"s_and_b32 s{S_W}, s{S_WAVE}, 3")
    if P["CPF"]:
        a.e("s_getpc_b64 s[4:5]")
        a.lab("L_pc")
        a.e(f"s_lshr_b32 s6, s2, 3")
        a.e(f"s_lshl_b32 s6, s6, 3")
        a.e(f"s_add_u32 s6, s6, s{S_WAVE}")
        a.e(f"s_lshl_b32 s6, s6, 8")
        a.e(f"s_min_u32 s6, s6, L_exit-L_pc-256")
        a.e("s_load_dword s7, s[4:5], s6")
        a.e("s_add_u32 s6, s6, 128")
        a.e("s_load_dword s3, s[4:5], s6")
    for _ in range(P["DLY0"]):
        a.e("s_sleep 64")
    a.e(f"s_cmp_ge_u32 s{S_WAVE}, 4")
    a.e("s_cbranch_scc1 L_p2")
    gen_p1(a, P)
    gen_p1_stage_b(a, P)
    a.lab("L_p2")
    gen_p2(a, P)
    a.lines += a.tail
    a.lab("L_exit")
    a.e("s_endpgm")
    ftr = [
        '.section .rodata,"a"',
        ".p2align 6",
        f".amdhsa_kernel {K}",
        "  .amdhsa_next_free_vgpr 256",
        "  .amdhsa_next_free_sgpr 102",
        "  .amdhsa_accum_offset 256",
        "  .amdhsa_group_segment_fixed_size 0",
        "  .amdhsa_kernarg_size 96",
        "  .amdhsa_user_sgpr_count 2",
        "  .amdhsa_user_sgpr_kernarg_segment_ptr 1",
        "  .amdhsa_system_sgpr_workgroup_id_x 1",
        "  .amdhsa_float_denorm_mode_32 3",
        ".end_amdhsa_kernel",
    ]
    return "\n".join(hdr + a.lines + ftr) + "\n"


DEFAULT = dict(TL2=-1, W2M=1, AMP=0, _X=0, PRIOB=0, PRIOBN=0, SETL=1, NW1=0, DLY=0, DLY0=0, LATE=0, CPF=0, TM=-1, XA=0, JFLIP=1, TCH=-1, TRK=6, LPRIO=0, PUBN=2, WQPA=5, W2PA=4, FA1A=2, RQP=5, W2L=5, W2P=29, ROT=0, ROT2=1, MAPB=1, BGN=3, TFN=4, SWIN=1, RPP=12, FA2P=1, PLAG=1, X2=0, FQ=0xB4, RPA=3, RPF=21, BLAG=5, PRIO=0, RPK=2, P0=4, LD=3, LDB=0, EXP=0, PD=5, PDT=1, LA=5, SIG=12, CHK=3, LAB=6, BTHR=13, NWPRE=6, FBP=9)

if __name__ == "__main__":
    P = dict(DEFAULT)
    out = f"cdna_kernels/{NAME}.s"
    for arg in sys.argv[1:]:
        if "=" in arg:
            k, v = arg.split("=")
            if k == "out":
                out = v
            elif k == "NOPUB":
                NOPUB = int(v)
            elif k == "STMODE":
                STMODE = int(v)
            elif k == "X3":
                X3 = int(v)
            elif k == "P2SC":
                P2SC = v.replace("_", " ")
            elif k == "DBGWG":
                DBGWG = int(v)
            elif k == "OUTSC":
                OUTSC = v.replace("_", " ")
            elif k == "SLEEP":
                SLEEP = int(v)
            elif k == "STAMPS":
                STAMPS = int(v)
            else:
                P[k] = int(v)
    for u in range(504):
        assert (u * 911) >> 16 == u // 72
    for u in range(256):
        assert (u * 4682) >> 16 == u // 14
    for u in range(504):
        assert (u * 9363) >> 16 == u // 7
    open(out, "w").write(generate(P))
    print("wrote", out)
```
